```python
import torch

def _softmax(x, axis=-1):
    return torch.softmax(x, dim=axis)

def _gelu(x):
    return torch.nn.functional.gelu(x, approximate='tanh')

def _silu(x):
    return torch.nn.functional.silu(x)

def _sigmoid(x):
    return torch.sigmoid(x)

def _layernorm(x, axis=-1, eps=1e-05):
    m = x.mean(dim=axis, keepdim=True)
    v = x.var(dim=axis, keepdim=True, unbiased=False)
    return (x - m) / torch.sqrt(v + eps)

def _scatter_add(tgt, idx, src, axis=0):
    return tgt.clone().index_add_(axis, idx, src)

def _segment_sum(src, seg, n):
    out = torch.zeros((n,) + src.shape[1:], dtype=src.dtype)
    return out.index_add_(0, seg, src)

def _pad(x, pw):
    flat = tuple((v for pair in reversed(pw) for v in pair))
    return torch.nn.functional.pad(x, flat)
kernel_name = 'parallel_sum__spectral_fnet__mixer_gmlp__prompt'

def setup_inputs():

    _w = lambda a: (lambda t: t.to(torch.bfloat16) if t.is_floating_point() else t)(torch.as_tensor(a))

    def _A_setup():
        B, S, D = (1, 2048, 512)
        ns = torch.arange(S)[:, None] * torch.arange(S)[None, :]
        nd = torch.arange(D)[:, None] * torch.arange(D)[None, :]
        Ws_re = torch.cos(-2.0 * torch.pi * ns / S).to(float)
        Ws_im = torch.sin(-2.0 * torch.pi * ns / S).to(float)
        Wd_re = torch.cos(-2.0 * torch.pi * nd / D).to(float)
        Wd_im = torch.sin(-2.0 * torch.pi * nd / D).to(float)
        return {'x': _w((lambda *s: torch.randn(*s, dtype=torch.bfloat16) * 0.05)(B, S, D)), 'dft_seq_re': _w(Ws_re), 'dft_seq_im': _w(Ws_im), 'dft_hid_re': _w(Wd_re), 'dft_hid_im': _w(Wd_im)}
    _A_in = _A_setup()

    def _B_setup():
        B, S, D, F = (1, 2048, 512, 1376)
        Fh = F // 2
        return {'x': _w((lambda *s: torch.randn(*s, dtype=torch.bfloat16) * 0.05)(B, S, D)), 'w_in': _w((lambda *s: torch.randn(*s, dtype=torch.bfloat16) * 1.6)(D, 2 * Fh)), 'w_sp': _w(0.01 * (lambda *s: torch.randn(*s, dtype=torch.bfloat16) * 1.6)(S, S)), 'b_sp': _w(1.0 + 0.01 * (lambda *s: torch.randn(*s, dtype=torch.bfloat16) * 0.8)(S)), 'w_out': _w((lambda *s: torch.randn(*s, dtype=torch.bfloat16) * 0.8)(Fh, D))}
    _B_in = _B_setup()
    return {'A_x': _A_in['x'], 'A_dft_seq_re': _A_in['dft_seq_re'], 'A_dft_seq_im': _A_in['dft_seq_im'], 'A_dft_hid_re': _A_in['dft_hid_re'], 'A_dft_hid_im': _A_in['dft_hid_im'], 'B_x': _B_in['x'], 'B_w_in': _B_in['w_in'], 'B_w_sp': _B_in['w_sp'], 'B_b_sp': _B_in['b_sp'], 'B_w_out': _B_in['w_out']}

def reference(A_x, A_dft_seq_re, A_dft_seq_im, A_dft_hid_re, A_dft_hid_im, B_x, B_w_in, B_w_sp, B_b_sp, B_w_out):

    def _A_ref(x, dft_seq_re, dft_seq_im, dft_hid_re, dft_hid_im):
        a = torch.einsum('bsd,ed->bse', x, dft_hid_re)
        b = torch.einsum('bsd,ed->bse', x, dft_hid_im)
        y = torch.einsum('ts,bse->bte', dft_seq_re, a) - torch.einsum('ts,bse->bte', dft_seq_im, b)
        return y

    def _B_ref(x, w_in, w_sp, b_sp, w_out):
        B, S, D = x.shape
        F = w_in.shape[-1]
        Fh = F // 2
        z = _gelu(torch.einsum('bsd,df->bsf', x, w_in))
        z1 = z[..., :Fh].clone()
        z2 = _layernorm(z[..., Fh:], axis=-1)
        g = torch.einsum('ts,bsf->btf', w_sp, z2) + b_sp[None, :, None]
        return torch.einsum('bsf,fd->bsd', z1 * g, w_out)
    x = A_x
    xn = _layernorm(x, axis=-1)
    return x + _A_ref(xn, A_dft_seq_re, A_dft_seq_im, A_dft_hid_re, A_dft_hid_im) + _B_ref(xn, B_w_in, B_w_sp, B_b_sp, B_w_out)
```

```python
import re, copy
TRANS = ('v_exp_f32','v_log_f32','v_rcp_f32','v_rsq_f32','v_sqrt_f32','v_sin_f32','v_cos_f32')
RX = re.compile(r'(?<![A-Za-z_0-9])([vas])(?:(\d+)|\[(\d+):(\d+)\])(?![A-Za-z_0-9])')
def regs(tok):
    out = set()
    for m in RX.finditer(tok):
        k = m.group(1)
        if m.group(2) is not None: out.add((k, int(m.group(2))))
        else:
            for i in range(int(m.group(3)), int(m.group(4))+1): out.add((k, i))
    if re.search(r'\bvcc\b', tok): out.add(('s', 'vcc'))
    if re.search(r'\bm0\b', tok): out.add(('s', 'm0'))
    return out
class Ins:
    def __init__(s, text):
        s.text = text
        p = text.split(None, 1); op = p[0]; rest = p[1] if len(p) > 1 else ''
        s.op = op
        ops = [o.strip() for o in re.split(r',(?![^\[]*\])', rest)] if rest else []
        if ops:
            last = ops[-1].split(None, 1); ops[-1] = last[0]; s.mods = last[1] if len(last) > 1 else ''
        else: s.mods = ''
        s.states = 1; s.dst = set(); s.src = set(); s.C = set(); s.AB = set(); s.data = set()
        s.mfma = op.startswith('v_mfma'); s.valu = op.startswith('v_') and not s.mfma
        s.vmem = op.startswith('buffer_') or op.startswith('global_'); s.ds = op.startswith('ds_')
        s.salu = op.startswith('s_')
        base = op.replace('_e32','').replace('_e64','').replace('_dpp','')
        s.base = base
        s.trans = base in TRANS; s.dot = base.startswith('v_dot'); s.dpp = op.endswith('_dpp')
        s.perm = base.startswith('v_permlane'); s.rdl = base in ('v_readfirstlane_b32','v_readlane_b32')
        s.dma = s.vmem and re.search(r'\blds\b', s.mods) is not None
        s.passes = 8 if '32x32x16' in op else 4
        if op == 's_nop': s.states = int(ops[0])+1
        R = [regs(o) for o in ops]
        U = lambda L: set().union(*L) if L else set()
        if s.mfma:
            s.dst = R[0]; s.AB = R[1] | R[2]; s.C = R[3]; s.src = s.AB | s.C
        elif s.valu:
            s.dst = R[0]; s.src = U(R[1:])
            if s.perm: s.dst = R[0] | R[1]; s.src = s.dst
            if s.dpp or base in ('v_dot2c_f32_bf16','v_fmac_f32','v_writelane_b32'): s.src = s.src | R[0]
            if base == 'v_dot2c_f32_bf16': s.C = R[0]; s.AB = U(R[1:])
            if base == 'v_dot2_f32_bf16': s.C = R[3]; s.AB = R[1] | R[2]
        elif s.vmem:
            if 'store' in op:
                s.src = U(R); s.data = R[1] if op.startswith('global') else R[0]
            elif s.dma: s.src = U(R) | {('s','m0')}
            else: s.dst = R[0]; s.src = U(R[1:])
        elif s.ds:
            if 'write' in op: s.src = U(R)
            else: s.dst = R[0]; s.src = U(R[1:])
        elif s.salu:
            if op.startswith(('s_cmp','s_cbranch','s_branch','s_waitcnt','s_barrier','s_nop','s_endpgm','s_setprio','s_sleep')): s.src = U(R)
            else: s.dst = R[0]; s.src = U(R[1:])
        s.wide = s.vmem and 'store' in op and ('x4' in op or 'x3' in op)
def vec(S): return {r for r in S if r[0] in 'va'}
def sca(S): return {r for r in S if r[0] == 's'}
def need(P, I):
    n = 0
    if P.valu:
        d = vec(P.dst)
        if I.mfma and d & I.src: n = max(n, 2)
        if (I.dpp or I.perm) and d & I.src: n = max(n, 2)
        if I.rdl and d & I.src: n = max(n, 1)
        if P.trans and (I.valu or I.ds or I.vmem) and d & I.src: n = max(n, 1)
        if P.dot and d & (I.src | I.dst):
            if not (I.base == P.base and not (d & I.AB)): n = max(n, 3)
        sd = sca(P.dst)
        if sd & I.src:
            if I.vmem: n = max(n, 5)
            elif I.valu: n = max(n, 4 if I.base in ('v_readlane_b32','v_writelane_b32') else 2)
            elif I.salu and not I.op.startswith('s_cbranch'): n = max(n, 1)
    if P.mfma:
        big = 12 if P.passes == 8 else 8
        if I.mfma:
            if P.dst & I.AB: n = max(n, big)
            if P.dst & I.C and not (P.dst == I.C and P.passes == I.passes): n = max(n, big-2)
            if P.dst & I.dst and not P.dst == I.dst: n = max(n, big)
        elif P.dst & (I.src | I.dst): n = max(n, big)
        if I.valu and P.C & I.dst: n = max(n, 7 if P.passes == 8 else 3)
    if P.salu and ('s','m0') in P.dst and I.dma: n = max(n, 1)
    if P.wide and P.data & I.dst: n = max(n, 2 if (I.valu or I.mfma) else 1)
    return n
class Asm:
    def __init__(s):
        s.out = []; s.hist = []; s.vm_n = 0; s.vm_done = 0; s.lg_n = 0; s.lg_done = 0
        s.m0 = None; s.t = 0; s.mf_free = 0; s.bg = []; s.bg_i = 0; s.bg_on = False; s.bg_next = 0; s.in_bg = False
        s.tok = {}; s.nops = 0
    def fork(s):
        o = Asm(); o.out = s.out
        for k in ('vm_n','vm_done','lg_n','lg_done','m0','t','mf_free','bg','bg_i','bg_on','bg_next'): setattr(o, k, getattr(s, k))
        o.hist = list(s.hist); o.tok = dict(s.tok); return o
    def raw(s, text): s.out.append(text)
    def cmt(s, text): s.out.append(f'    ; ---- {text} (t~{s.t})')
    def label(s, name, keep_m0=True):
        s.out.append(name + ':')
        if not keep_m0: s.m0 = None
    def __call__(s, text):
        for ln in text.strip().split('\n'):
            ln = ln.split(';')[0].strip()
            if ln: s.one(ln)
    def one(s, text):
        I = Ins(text)
        d = 0; pad = 0
        for P in reversed(s.hist):
            pad = max(pad, need(P, I) - d)
            d += P.states
            if d >= 12: break
        while pad > 0:
            k = min(pad, 8); s.emit(Ins(f's_nop {k-1}')); pad -= k; s.nops += k
        s.emit(I)
        tok = None
        if I.vmem: s.vm_n += 1; tok = s.vm_n
        elif I.ds: s.lg_n += 1; tok = s.lg_n
        if s.bg_on and not s.in_bg and s.t >= s.bg_next and s.bg_i < len(s.bg) and not (I.salu and ('s','m0') in I.dst):
            s.bg_step()
        return tok
    def emit(s, I):
        s.out.append('    ' + I.text); s.hist.append(I); s.hist = s.hist[-14:]
        if I.salu and ('s','m0') in I.dst: s.m0 = None
        if I.mfma:
            s.t = max(s.t, s.mf_free); s.mf_free = s.t + 4*I.passes; s.t += 8
        elif I.trans or I.perm: s.t += 8
        else: s.t += 4*I.states
    def bg_step(s):
        if s.bg_i >= len(s.bg): return
        s.in_bg = True
        f, gap = s.bg[s.bg_i]; s.bg_i += 1
        f(s); s.bg_next = s.t + gap
        s.in_bg = False
    def bg_flush(s, upto=None):
        while s.bg_i < (len(s.bg) if upto is None else upto): s.bg_step()
    def wait(s, vm=None, lg=None):
        p = []
        if vm is not None and vm > s.vm_done:
            n = min(s.vm_n - vm, 63); p.append(f'vmcnt({n})'); s.vm_done = s.vm_n - n
        if lg is not None and lg > s.lg_done:
            n = min(s.lg_n - lg, 15); p.append(f'lgkmcnt({n})'); s.lg_done = s.lg_n - n
        if p:
            b = s.in_bg; s.in_bg = True; s.one('s_waitcnt ' + ' '.join(p)); s.in_bg = b
    def waitall(s, vm=True, lg=True):
        p = []
        if vm: p.append('vmcnt(0)'); s.vm_done = s.vm_n
        if lg: p.append('lgkmcnt(0)'); s.lg_done = s.lg_n
        b = s.in_bg; s.in_bg = True; s.one('s_waitcnt ' + ' '.join(p)); s.in_bg = b
    def dma(s, m0, text):
        if s.m0 != m0:
            b = s.in_bg; s.in_bg = True
            s.one(f's_add_u32 m0, {m0[0]}, {m0[1]}' if m0[1] else f's_mov_b32 m0, {m0[0]}')
            s.m0 = m0; s.in_bg = b
        return s.one(text)
def V(i, n=1): return f'v{i}' if n == 1 else f'v[{i}:{i+n-1}]'
def A(i, n=1): return f'a{i}' if n == 1 else f'a[{i}:{i+n-1}]'
def S(i, n=1): return f's{i}' if n == 1 else f's[{i}:{i+n-1}]'
```

```python
from asmlib import *
def tail(a, NP, env):
    globals().update({k: v for k, v in env.items() if not k.startswith('__') and k not in ('a', 'tail')})
    P = 'A' if NP == 3 else 'B'
    D = cfg.get('depth', 10); RING = 128
    if NP == 2:
        a.cmt('FFT constants -> LDS [0,30720)')
        a('s_barrier')
        a.bg_on = True
        a(f'''v_and_b32 v32, 31, v0
        v_cvt_f32_u32 v32, v32
        v_lshrrev_b32 v33, 5, v0
        s_lshl_b32 s3, s{sB}, 10
        v_add_u32 v36, s3, v{vL16}
        s_lshl_b32 s3, s{sW}, 12
        v_add_u32 v37, s3, v{vL16}
        s_lshl_b32 s3, s{sW}, 11
        v_add_u32 v38, s3, v{vL16}''')
        AR, CO, SI, PKD = 80, 88, 96, 104
        def args(kf, n0, steps):
            a(f'v_mul_f32 v34, {H(kf)}, v32\n {n0}\n v_cvt_f32_u32 v35, v35')
            for i, st in enumerate(steps):
                if st == 0: a(f'v_mul_f32 v{AR+i}, v35, v34')
                else: a(f'v_add_f32 v39, {H(float(st))}, v35\n v_mul_f32 v{AR+i}, v39, v34')
        args(1/32, f's_lshl_b32 s3, s{sB}, 4\n v_lshl_add_u32 v35, v33, 3, s3', range(8))
        for i in range(8): a(f'v_cos_f32 v{CO+i}, v{AR+i}')
        for i in range(8): a(f'v_sin_f32 v{SI+i}, v{AR+i}')
        for i in range(8): a(f'v_cvt_pk_bf16_f32 v{PKD+i}, v{CO+2*i}, v{CO+2*i+1}')
        for i in range(4): a(f'v_xor_b32 v{PKD+8+i}, 0x80008000, v{PKD+4+i}')
        for q in range(3): a(f'ds_write_b128 v36, {V(PKD+4*q,4)} offset:{2048*q}')
        args(1/2048, f's_lshl_b32 s3, s{sW}, 4\n v_lshl_add_u32 v35, v33, 2, s3', [0,1,2,3,8,9,10,11])
        for i in range(8): a(f'v_cos_f32 v{CO+i}, v{AR+i}')
        for i in range(8): a(f'v_sin_f32 v{SI+i}, v{AR+i}')
        for j in range(2):
            a(f'ds_write_b128 v37, {V(CO+4*j,4)} offset:{6144+j*2048}\n ds_write_b128 v37, {V(SI+4*j,4)} offset:{6144+j*2048+1024}')
        args(1/64, f's_lshl_b32 s3, s{sA}, 5\n s_add_u32 s3, s3, s{sB}\n v_lshl_add_u32 v35, v33, 2, s3', [0,2,8,10,16,18,24,26])
        for i in range(8): a(f'v_cos_f32 v{40+i}, v{AR+i}')
        for i in range(8): a(f'v_sin_f32_e64 v{48+i}, -v{AR+i}')
        for i in range(8): a(f'v_cvt_pk_bf16_f32 v{116+i}, v{40+2*i}, v{41+2*i}')
        for q in range(2): a(f'ds_write_b128 v38, {V(116+4*q,4)} offset:{22528+1024*q}')
        a.bg_on = False
    a.bg_flush()
    for k in range(NEARLY): wo_issue(a, k)
    vX3, vO3, vY3 = vWG, vWG+1, vWG+2; vOR = vSG; vPQG, vPQW = vWR, vWR+1; vPQR, vYS = vZS, vSTA
    sX3, sHB, sYB, sYS, sY13, sPQL = sWO, sWO+1, sWO+2, sWO+3, sWO+4, sWO+5
    a(f'''v_and_b32 v24, 12, v0
    v_and_b32 v25, 15, v0
    v_add_u32 v24, v24, v25
    s_lshl_b32 s3, s{sA}, 5
    s_lshl_b32 s7, s{sB}, 2
    s_add_u32 s3, s3, s7
    v_add_u32 v24, s3, v24
    v_lshrrev_b32 v25, 4, v0
    v_lshlrev_b32 v26, 10, v24
    v_lshl_add_u32 v{vX3}, v25, 3, v26
    v_and_b32 v27, 1, v25
    v_lshl_add_u32 v26, v27, 5, v26
    v_lshrrev_b32 v30, 1, v25
    v_lshl_add_u32 v{vO3}, v30, 4, v26
    s_lshl_b32 s{sX3}, s{sR}, 16
    s_add_u32 s{sX3}, s{sX3}, s{sT+2}
    s_mul_i32 s{sHB}, s{sR}, 90112
    s_lshl_b32 s3, s{sW}, 10
    s_add_u32 s{sHB}, s{sHB}, s3
    s_add_u32 s{sHB}, s{sHB}, {HH}
    s_lshl_b32 s3, s{sG}, 6
    s_sub_u32 s7, 500, s3
    s_cmp_ge_u32 s{sG}, 4
    s_cselect_b32 s3, s7, s3
    s_cselect_b32 s7, -1, 0
    s_cselect_b32 s{sYS}, 0xfffff000, 0x1000
    s_lshl_b32 s3, s3, 12
    s_add_u32 s{sYB}, s3, {YY}
    s_mul_i32 s{sY13}, s{sYS}, 13
    s_lshl_b32 s3, s{sR}, 6
    v_add_u32 v24, s3, v24
    v_xor_b32 v24, s7, v24
    v_subrev_u32 v24, s7, v24
    v_and_b32 v24, 0x7ff, v24
    v_xor_b32 v26, s7, v25
    v_and_b32 v26, 3, v26
    v_lshlrev_b32 v26, 14, v26
    v_lshrrev_b32 v30, 6, v24
    v_lshl_add_u32 v26, v30, 7, v26
    v_and_b32 v30, 31, v24
    v_lshl_add_u32 v26, v30, 2, v26
    v_bfe_u32 v30, v24, 5, 1
    v_lshl_add_u32 v{vY3}, v30, 1, v26
    v_bfe_u32 v24, v0, 2, 2
    v_lshl_add_u32 v26, v25, 3, v24
    v_lshlrev_b32 v26, 7, v26
    v_lshrrev_b32 v30, 1, v24
    v_lshl_add_u32 v30, v27, 1, v30
    v_lshl_add_u32 v26, v30, 5, v26
    v_and_b32 v30, 3, v0
    v_lshl_add_u32 v26, v30, 3, v26
    v_add_u32 v{vOR}, {L_WO+16384}, v26
    v_xor_b32 v{vOR+1}, 32, v{vOR}
    v_xor_b32 v{vOR+2}, 64, v{vOR}
    v_xor_b32 v{vOR+3}, 0x60, v{vOR}'''.replace('s_cselect_b32 s%d, 0xfffff000, 0x1000' % sYS, f's_xor_b32 s{sYS}, s7, 0x1000\n s_sub_u32 s{sYS}, s{sYS}, s7'))
    if NP == 2:
        a(f'''s_and_b32 s3, s{sR}, 3
        s_lshl_b32 s3, s3, 6
        v_xor_b32 v26, s{sW}, v30
        v_lshl_add_u32 v26, v26, 4, s3
        v_lshrrev_b32 v32, 2, v0
        v_lshl_add_u32 v{vPQG}, v32, 8, v26
        s_sub_u32 s3, s{sG}, 6
        s_lshl_b32 s3, s3, 3
        s_lshr_b32 s7, s{sR}, 2
        s_add_u32 s3, s3, s7
        s_lshl_b32 s3, s3, 17
        s_lshl_b32 s7, s{sW}, 12
        s_add_u32 s3, s3, s7
        s_add_u32 s{sPQL}, s3, {PQ}
        s_lshl_b32 s3, s{sW}, 10
        s_add_u32 s3, s3, {L_RED}
        v_add_u32 v{vPQW}, s3, v{vL16}
        v_lshrrev_b32 v32, 5, v0
        v_lshl_add_u32 v26, v32, 3, v24
        v_lshlrev_b32 v26, 10, v26
        v_lshrrev_b32 v33, 1, v30
        v_lshl_add_u32 v33, v27, 1, v33
        v_lshl_add_u32 v26, v33, 6, v26
        v_xor_b32 v33, s{sW}, v24
        v_lshl_add_u32 v26, v33, 4, v26
        v_and_b32 v33, 1, v30
        v_lshl_add_u32 v26, v33, 3, v26
        v_add_u32 v{vPQR}, {L_RED}, v26
        v_and_b32 v33, 31, v0
        v_lshlrev_b32 v33, 2, v33
        v_lshl_add_u32 v{vYS}, v32, 8, v33''')
    stamp(a, 9)
    a.label(f'L_pr{P}')
    a(f'buffer_load_dword v24, v{vPR}, {srd(SWS)}, s{sT+1} offen sc1')
    a.waitall(lg=False)
    a(f'''v_cmp_eq_u32 vcc, -1, v24
    s_cbranch_vccz L_prok{P}
    s_add_u32 s{sCNT}, s{sCNT}, 1
    s_cmp_gt_u32 s{sCNT}, {LIMIT}
    s_cbranch_scc0 L_pr{P}''')
    a.label(f'L_prok{P}')
    stamp(a, 10)
    G = 32*NP; zt = {}
    ACC = lambda r: 224 if (NP-1-r) % 2 == 0 else 192
    def zload(a, gi, reg):
        r, i = divmod(gi, 32)
        return a.one(f'buffer_load_dwordx4 {V(reg,4)}, v{vZ[r]}, {srd(SWS)}, s{sZO+i//4} offen offset:{(i%4)*1024} sc1')
    RG = lambda gi: RING + (gi % D)*4
    for gi in range(D-1): zt[gi] = zload(a, gi, RG(gi))
    a.wait(lg=a.lg_n)
    TP = 80; HP = 112
    def red_ops(r, pk):
        W = [(lambda a, q=q: a.tok.__setitem__('rw', a.one(f'ds_write_b128 v{vRW}, {V(ACC(r)+4*q,4)} offset:{1024*q}'))) for q in range(8)]
        def bar(a): a.wait(lg=a.tok['rw']); a('s_barrier')
        Rd = [(lambda a, q=q: a.tok.__setitem__(('rr', q), a.one(f'ds_read_b128 {V(TP+4*q,4)}, v{vRR} offset:{(q//2)*8192+(q%2)*256}'))) for q in range(8)]
        C = []
        def op(t): C.append(lambda a: a(t))
        def add8(d, x, y):
            if pk:
                for p in range(4): op(f'v_pk_add_f32 {V(d+2*p,2)}, {V(x+2*p,2)}, {V(y+2*p,2)}')
            else:
                for p in range(8): op(f'v_add_f32 v{d+p}, v{x+p}, v{y+p}')
        C.append(lambda a: a.wait(lg=a.tok['rr', 3])); add8(TP, TP, TP+8)
        if pk:
            for p in range(4): op(f'v_pk_add_f32 {V(TP+2*p,2)}, {V(TP+2*p,2)}, {V(vBS,2)} op_sel:[0,{p//2}] op_sel_hi:[1,{p//2}]')
        else:
            for p in range(8): op(f'v_add_f32 v{TP+p}, v{TP+p}, v{vBS+p//4}')
        C.append(lambda a: a.wait(lg=a.tok['rr', 7])); add8(TP+16, TP+16, TP+24); add8(TP, TP, TP+16)
        if pk:
            for p in range(4): op(f'v_pk_mul_f32 {V(TP+2*p,2)}, {V(TP+2*p,2)}, {V(ACC1+8*r+2*p,2)}')
        else:
            for p in range(8): op(f'v_mul_f32 v{TP+p}, v{TP+p}, v{ACC1+8*r+p}')
        for p in range(4): op(f'v_cvt_pk_bf16_f32 v{HP+p}, v{TP+2*p}, v{TP+2*p+1}')
        op(f'v_permlane16_swap_b32 v{HP}, v{HP+2}'); op(f'v_permlane16_swap_b32 v{HP+1}, v{HP+3}')
        op(f'buffer_store_dwordx4 {V(HP,4)}, v{vHS}, {srd(SWS)}, s{sHST+r} offen sc1')
        return W, bar, Rd, C
    PQR = [32, 36, 40, 44, 48, 52, 116, 120]
    def pq_load(a, i):
        a(f's_add_u32 s3, s{sPQL}, {i*16384}')
        a.tok['pq'] = a.one(f'buffer_load_dwordx4 {V(PQR[i],4)}, v{vPQG}, {srd(SWS)}, s3 offen sc1')
    for r in range(NP):
        a.cmt(f'P2 round {r}')
        sched = {}
        def at(g, f): sched.setdefault(g, []).append(f)
        if r > 0:
            W, bar, Rd, C = red_ops(r-1, False)
            for q, f in enumerate(W): at(4+2*q, f)
            at(24, bar)
            for q, f in enumerate(Rd): at(24+q, f)
            for q, f in enumerate(C): at(34+q//2, f)
        at(61, lambda a: (a.wait(lg=a.lg_n), a('s_barrier')))
        MX = 26 + r % 2
        for i in range(32):
            gi = r*32+i
            a.wait(vm=zt[gi])
            if i == 1: a(f'v_max_u32 v{MX}, v{RG(gi-1)}, v{RG(gi)}')
            elif i % 2: a(f'v_max3_u32 v{MX}, v{RG(gi-1)}, v{RG(gi)}, v{MX}')
            for tt in range(2):
                acc = V(ACC(r)+16*tt, 16)
                a(f'v_mfma_f32_32x32x16_bf16 {acc}, {V(RG(gi),4)}, {A(i*8+4*tt,4)}, {acc if i else 0}')
                if tt == 0:
                    nx = gi+D-1
                    if nx < G: zt[nx] = zload(a, nx, RG(nx))
                    elif NP == 2 and nx-G < 8: pq_load(a, nx-G)
                for f in sched.get(2*i+tt, []): f(a)
        a(f'v_cmp_eq_u32 vcc, -1, v{MX}\n s_cbranch_vccnz L_slow{P}{r}')
        a.label(f'L_ret{P}{r}')
        stamp(a, 11+r)
        def mk_slow(r=r, MX=MX):
            def f(s):
                s.label(f'L_slow{P}{r}')
                s(f's_cmp_gt_u32 s{sCNT}, {LIMIT}\n s_cbranch_scc1 L_ret{P}{r}\n s_add_u32 s{sCNT}, s{sCNT}, 1\n v_mov_b32 v{MX}, 0')
                for bb in range(4):
                    for q in range(8): zload(s, r*32+bb*8+q, TP+4*q)
                    s('s_waitcnt vmcnt(0)')
                    for q in range(4): s(f'v_max3_u32 v{MX}, v{TP+8*q}, v{TP+8*q+4}, v{MX}')
                    for q in range(8):
                        i = bb*8+q
                        for tt in range(2):
                            acc = V(ACC(r)+16*tt, 16)
                            s(f'v_mfma_f32_32x32x16_bf16 {acc}, {V(TP+4*q,4)}, {A(i*8+4*tt,4)}, {acc if i else 0}')
                s(f'v_cmp_eq_u32 vcc, -1, v{MX}\n s_cbranch_vccnz L_slow{P}{r}\n s_nop 7\n s_nop 7\n s_branch L_ret{P}{r}')
            return f
        slow.append(mk_slow())
    if NP == 2: stamp(a, 13)
    HF = 128; A3 = 32; XR = 48; YR = 56
    def hload(a, k):
        a(f's_add_u32 s3, s{sHB}, {KORD[k]*4096}')
        a.tok['h', k] = a.one(f'buffer_load_dwordx4 {V(HF+4*k,4)}, v{vL16}, {srd(SWS)}, s3 offen sc1')
    K0 = [0, 8, 16, 22]
    def st_issue(a, s, wo=True, h=True):
        for k in range(K0[s], K0[s+1]):
            if h: hload(a, k)
            if wo and k >= NEARLY: wo_issue(a, k)
    def xload(a):
        for m in range(4): a.tok['x'] = a.one(f'buffer_load_dwordx2 {V(XR+2*m,2)}, v{vX3}, {srd(SX)}, s{sX3} offen offset:{32*m}')
    W, bar, Rd, C = red_ops(NP-1, True)
    for f in W: f(a)
    if NP == 3: st_issue(a, 0)
    bar(a)
    for f in Rd: f(a)
    for f in C: f(a)
    stamp(a, 14)
    if NP == 3:
        xload(a); st_issue(a, 1); st_issue(a, 2, h=False)
    else:
        a.cmt('FFT')
        for s in range(3): st_issue(a, s, h=False)
        B1, B2, A1, TW, D1, A2 = 0, 24, 56, 192, 128, 80
        for q in range(6): a(f'ds_read_b128 {A(B1+4*q,4)}, v{vL16} offset:{1024*q}')
        for q in range(8): a(f'ds_read_b128 {A(B2+4*q,4)}, v{vL16} offset:{22528+1024*q}')
        a.wait(vm=a.tok['pq'])
        a.label('L_pq_chk')
        a(f'v_max_u32 v24, v{PQR[0]}, v{PQR[1]}')
        for q in range(1, 4): a(f'v_max3_u32 v24, v{PQR[2*q]}, v{PQR[2*q+1]}, v24')
        a('v_cmp_eq_u32 vcc, -1, v24\n s_cbranch_vccnz L_pq_retry')
        a.label('L_pq_ok')
        def pq_retry(s):
            s.label('L_pq_retry')
            s(f's_cmp_gt_u32 s{sCNT}, {LIMIT}\n s_cbranch_scc1 L_pq_ok\n s_add_u32 s{sCNT}, s{sCNT}, 1')
            for i in range(8): pq_load(s, i)
            s('s_waitcnt vmcnt(0)\n s_branch L_pq_chk')
        slow.append(pq_retry)
        a('s_barrier')
        for i in range(8): t = a.one(f'ds_write_b128 v{vPQW}, {V(PQR[i],4)} offset:{4096*i}')
        a.wait(lg=t)
        a('s_barrier')
        at1 = {}
        for tile in range(2):
            for ka in range(2):
                for pq in range(2):
                    for u in range(2):
                        at1[tile, ka] = a.one(f'ds_read_b64_tr_b16 {A(A1+((tile*2+ka)*2+pq)*4+2*u,2)}, v{vPQR} offset:{(16*ka+4*u)*1024+tile*512+pq*256}')
        twt = {}
        for tile in range(2):
            U = V(D1+32*tile, 16); Vv = V(D1+32*tile+16, 16)
            for ka in range(2):
                a.wait(lg=at1[tile, ka])
                Pf = A(A1+((tile*2+ka)*2)*4, 4); Qf = A(A1+((tile*2+ka)*2+1)*4, 4)
                cc, ss, ns = A(B1+4*ka, 4), A(B1+8+4*ka, 4), A(B1+16+4*ka, 4)
                for n, (acc, x, y) in enumerate(((U, Pf, cc), (Vv, Pf, ss), (U, Qf, ns), (Vv, Qf, cc))):
                    a(f'v_mfma_f32_32x32x16_bf16 {acc}, {x}, {y}, {acc if (ka or n > 1) else 0}')
                    q = (tile*2+ka)*4+n
                    twt[q] = a.one(f'ds_read_b128 {V(TW+4*q,4)}, v{vL16} offset:{6144+1024*q}')
        E, O = 32, 48
        for tile in range(2):
            a.wait(lg=twt[tile*8+7])
            U = D1+32*tile; Vv = U+16
            for j in range(4):
                tc = TW+((tile*4+j)*2)*4; ts = tc+4
                for p in range(2):
                    a(f'v_pk_mul_f32 {V(112+4*p,2)}, {V(Vv+4*j+2*p,2)}, {V(ts+2*p,2)}')
                    a(f'v_pk_mul_f32 {V(114+4*p,2)}, {V(Vv+4*j+2*p,2)}, {V(tc+2*p,2)}')
                for p in range(2):
                    a(f'v_pk_fma_f32 {V(Vv+4*j+2*p,2)}, {V(U+4*j+2*p,2)}, {V(ts+2*p,2)}, {V(114+4*p,2)}')
                    a(f'v_pk_fma_f32 {V(U+4*j+2*p,2)}, {V(U+4*j+2*p,2)}, {V(tc+2*p,2)}, {V(112+4*p,2)} neg_lo:[0,0,1] neg_hi:[0,0,1]')
                for pi in range(2):
                    for cp, X in enumerate((U, Vv)):
                        a(f'v_cvt_pk_bf16_f32 v{A2+((tile*2+pi)*2+cp)*4+j}, v{X+4*j+pi}, v{X+4*j+pi+2}')
            for cp in range(2):
                for pi in range(2):
                    acc = V(O if pi else E, 16); q = ((tile*2+pi)*2+cp)*4
                    a(f'v_mfma_f32_32x32x16_bf16 {acc}, {A(B2+q,4)}, {V(A2+q,4)}, {acc if (tile or cp) else 0}')
        for hf in range(2):
            for p in range(8):
                a(f'v_pk_add_f32 {V(D1+16*hf+2*p,2)}, {V(E+2*p,2)}, {V(O+2*p,2)}' + (' neg_lo:[0,1] neg_hi:[0,1]' if hf else ''))
            for p in range(8): a(f'v_cvt_pk_bf16_f32 v{64+8*hf+p}, v{D1+16*hf+2*p}, v{D1+16*hf+2*p+1}')
            for p in range(8): a(f'buffer_store_dword v{64+8*hf+p}, v{vYS}, {srd(SWS)}, s{sYST} offen offset:{(p//2)*512+(p%2)*128+hf*2048} sc1')
        xload(a); st_issue(a, 0, wo=False); st_issue(a, 1, wo=False)
    stamp(a, 15)
    def yloads(a):
        a(f's_mov_b32 s7, s{sYB}')
        for q in range(16):
            a.tok['y'] = a.one(f'buffer_load_short_d16_hi v{YR+q}, v{vY3}, {srd(SWS)}, s7 offen sc1')
            if q < 15: a(f's_add_u32 s7, s7, s{sY13 if q % 4 == 3 else sYS}')
    class Cur: base = 4
    def o_reads(k):
        pos = (k+4) % 22; ops = []
        if pos == 0: ops.append(lambda a: [a(f'v_subrev_u32 v{vOR+m}, 16384, v{vOR+m}') for m in range(4)])
        if pos == 20: ops.append(lambda a: [a(f'v_add_u32 v{vOR+m}, 65536, v{vOR+m}') for m in range(4)])
        base = 4 if k < 16 else (0 if pos < 4 else 16)
        AR = (0 if k < 8 else 128 if k < 16 else 0) + (k - (0 if k < 8 else 8 if k < 16 else 16))*16
        for m in range(4):
            for u in range(2):
                ops.append(lambda a, m=m, u=u: a.tok.__setitem__(('or', k), a.one(f'ds_read_b64_tr_b16 {A(AR+4*m+2*u,2)}, v{vOR+m} offset:{(pos-base)*4096+u*512}')))
        return ops
    def mf3(a, k, m):
        AR = (0 if k < 8 else 128 if k < 16 else 0) + (k - (0 if k < 8 else 8 if k < 16 else 16))*16
        a(f'v_mfma_f32_16x16x32_bf16 {V(A3+4*m,4)}, {A(AR+4*m,4)}, {V(HF+4*k,4)}, {V(A3+4*m,4)}')
    def hcheck(a, s, first_wait=True):
        ks = list(range(K0[s], K0[s+1]))
        a.wait(vm=a.tok['h', ks[-1]])
        a.label(f'L_h{P}{s}_chk')
        a(f'v_max_u32 v24, v{HF+4*ks[0]}, v{HF+4*ks[1]}')
        for q in range(1, len(ks)//2): a(f'v_max3_u32 v24, v{HF+4*ks[2*q]}, v{HF+4*ks[2*q+1]}, v24')
        a(f'v_cmp_eq_u32 vcc, -1, v24\n s_cbranch_vccnz L_h{P}{s}_retry')
        a.label(f'L_h{P}{s}_ok')
        def f(r):
            r.label(f'L_h{P}{s}_retry')
            r(f's_cmp_gt_u32 s{sCNT}, {LIMIT}\n s_cbranch_scc1 L_h{P}{s}_ok\n s_add_u32 s{sCNT}, s{sCNT}, 1')
            for k in ks: hload(r, k)
            r(f's_waitcnt vmcnt(0)\n s_branch L_h{P}{s}_chk')
        slow.append(f)
    def wo_bar(a, k):
        if k >= NEARLY and not a.tok.get(('wob', k)):
            a.wait(vm=a.tok['wo', k]); a('s_barrier')
            for kk in range(22):
                if ('wo', kk) in a.tok and a.tok['wo', kk] <= a.vm_done: a.tok['wob', kk] = True
    a.wait(vm=a.tok['x'])
    wo_bar(a, 7)
    for k in range(2):
        for f in o_reads(k): f(a)
    for m in range(4):
        for p in range(2):
            a(f'v_lshlrev_b32 v{A3+4*m+2*p}, 16, v{XR+2*m+p}\n v_and_b32 v{A3+4*m+2*p+1}, 0xffff0000, v{XR+2*m+p}')
    hcheck(a, 0)
    order2 = [18, 19, 20, 21, 16, 17]
    rdq = list(range(2, 16)) + order2
    for k in range(16):
        if k == 8: hcheck(a, 1)
        if k == cfg.get('h2pos', 12): st_issue(a, 2, wo=False); yloads(a)
        nk = rdq.pop(0)
        if nk == 8: wo_bar(a, 15)
        if nk == 18: wo_bar(a, 21)
        ops = o_reads(nk)
        a.wait(lg=a.tok['or', k])
        for m in range(4):
            mf3(a, k, m)
            for _ in range(2 if m else len(ops)-6): ops.pop(0)(a)
    for nk in rdq:
        for f in o_reads(nk): f(a)
    stamp(a, 16)
    a.wait(lg=a.lg_n)
    hcheck(a, 2)
    stamp(a, 17)
    for k in order2:
        for m in range(4): mf3(a, k, m)
    a.wait(vm=a.tok['y'])
    a.label(f'L_y{P}_chk')
    a(f'v_max_u32 v24, v{YR}, v{YR+1}')
    for q in range(1, 8): a(f'v_max3_u32 v24, v{YR+2*q}, v{YR+2*q+1}, v24')
    a(f'v_cmp_eq_u32 vcc, 0xffff0000, v24\n s_cbranch_vccnz L_y{P}_retry')
    a.label(f'L_y{P}_ok')
    def yr(r):
        r.label(f'L_y{P}_retry')
        r(f's_cmp_gt_u32 s{sCNT}, {LIMIT}\n s_cbranch_scc1 L_y{P}_ok\n s_add_u32 s{sCNT}, s{sCNT}, 1')
        yloads(r); r(f's_waitcnt vmcnt(0)\n s_branch L_y{P}_chk')
    slow.append(yr)
    for p in range(8): a(f'v_pk_add_f32 {V(A3+2*p,2)}, {V(A3+2*p,2)}, {V(YR+2*p,2)}')
    for p in range(8): a(f'v_cvt_pk_bf16_f32 v{72+p}, v{A3+2*p}, v{A3+2*p+1}')
    for io in range(2):
        a(f'v_permlane16_swap_b32 v{72+4*io}, v{74+4*io}\n v_permlane16_swap_b32 v{73+4*io}, v{75+4*io}')
        a(f'buffer_store_dwordx4 {V(72+4*io,4)}, v{vO3}, {srd(SOUT)}, s{sX3} offen offset:{64*io}')
    if stamps:
        stamp(a, 18)
        a.waitall(); stamp(a, 19)
        a(f'''s_waitcnt lgkmcnt(0)
        v_writelane_b32 v{vST}, s100, 19
        v_writelane_b32 v{vST}, s{sCNT}, 20
        s_lshl_b32 s3, s2, 2
        s_add_u32 s3, s3, s{sW}
        s_lshl_b32 s3, s3, 8
        s_add_u32 s3, s3, {STAMP}
        v_lshlrev_b32 v24, 2, v0
        buffer_store_dword v{vST}, v24, {srd(SWS)}, s3 offen''')
    a('s_endpgm')
```

```python
import sys, math, struct
from asmlib import *
KN = "parallel_sum__spectral_fnet__mixer_gmlp__prompt_kernel"
def f2u(x): return struct.unpack('<I', struct.pack('<f', x))[0]
def H(x): return hex(f2u(x))
Z2 = 0; HH = 0x2C0000; PQ = 0x580000; YY = 0x780000; ST = 0x881000; STAMP = 0x1000000
OOB = 0x40000000
L_STG = 32768; L_WO = 65536; L_RING = 81920; L_MISC = 155648; L_RED = 32768
NSLOT = 6
SX, SWIN, SWSP, SWOUT, SWS, SOUT, SDBG, SBSP = 8, 12, 16, 20, 24, 28, 32, 36
sR, sG, sW, sA, sB, sP0, sNP, sROT = 40, 41, 42, 43, 44, 45, 46, 47
sXO = 48; sZO = 48; sWO = 56; sSP = 64
sGC = 72; sONE = 74; sLO = 75; sHI = 76; sZST = 77; sHST = 80; sPQST = 83; sSTST = 84; sSTLD = 85
sVAL = 86; sM0W = 88; sM0S = 89; sM0O = 90; sCNT = 91; sMA = 92; sMC = 94; sT = 96
vL16 = 1; vXG = 2; vXW = 4; vXR = 6; vWG = 8; vWR = 11; vSG = 13; vSR = 17; vZS = 21; vHS = 22; vSTA = 23
vTMP = 24; ACC2 = 32; ACC1 = 56; WB = 80; XF = 128; XRAW = 192
LIMIT = 40000
STAGES = [[0,3,6,9,12,15,18,20],[1,4,7,10,13,16,19,21],[2,5,8,11,14,17]]
KORD = STAGES[0]+STAGES[1]+STAGES[2]
def srd(r): return S(r, 4)

def gen(cfg):
    a = Asm()
    stamps = cfg.get('stamps', False)
    vST = 31
    class St: n = 0
    def stamp(a, k):
        if not stamps: return
        b = a.in_bg; a.in_bg = True
        if k > 0: a(f'v_writelane_b32 v{vST}, s100, {k-1}')
        a('s_memtime s[100:101]' if stamps == 2 else 's_memrealtime s[100:101]')
        a.in_bg = b
    def retry(a, back, out):
        a(f's_add_u32 s{sCNT}, s{sCNT}, 1\n s_cmp_gt_u32 s{sCNT}, {LIMIT}\n s_cbranch_scc1 {out}\n s_branch {back}')
    a('s_cmp_ge_u32 s2, 256\n s_cbranch_scc1 L_end')
    for r, off in ((SX,0),(SWIN,48),(SWS,96),(SWSP,56),(SWOUT,72),(SDBG,88),(SBSP,64),(SOUT,80)):
        a(f's_load_dwordx2 {S(r,2)}, s[0:1], {off}')
    stamp(a, 0)
    a(f'''s_getpc_b64 s[4:5]
    s_and_b32 s4, s4, 0xffffff00
    s_lshr_b32 s3, s2, 3
    s_and_b32 s6, s3, 15
    s_lshl_b32 s6, s6, 12
    v_lshl_add_u32 v24, v0, 4, s6
    v_min_u32 v24, L_codeend-{KN}-16, v24
    global_load_dwordx4 v[124:127], v24, s[4:5]
    v_lshrrev_b32 v25, 6, v0
    v_and_b32 v0, 63, v0
    v_readfirstlane_b32 s{sW}, v25
    v_lshlrev_b32 v{vL16}, 4, v0''')
    if cfg.get('map', 'row') == 'row':
        a(f'''s_and_b32 s{sR}, s2, 7
        s_lshl_b32 s{sR}, s{sR}, 2
        s_and_b32 s6, s3, 3
        s_add_u32 s{sR}, s{sR}, s6
        s_lshr_b32 s{sG}, s2, 5
        s_lshl_b32 s6, s6, 1
        s_add_u32 s{sROT}, s{sG}, s6''')
    else:
        a(f'''s_and_b32 s{sR}, s2, 3
        s_lshl_b32 s{sR}, s{sR}, 3
        s_and_b32 s6, s3, 7
        s_add_u32 s{sR}, s{sR}, s6
        s_lshr_b32 s7, s3, 3
        s_and_b32 s{sG}, s2, 4
        s_add_u32 s{sG}, s{sG}, s7
        s_lshl_b32 s7, s7, 1
        s_add_u32 s{sROT}, s7, s6''')
    a(f'''s_lshr_b32 s{sA}, s{sW}, 1
    s_and_b32 s{sB}, s{sW}, 1
    s_mul_i32 s{sP0}, s{sG}, 3
    s_min_u32 s{sP0}, s{sP0}, 20
    s_cmp_ge_u32 s{sG}, 6
    s_cselect_b32 s{sNP}, 2, 3
    s_mov_b32 s{SX+2}, 2097152
    s_mov_b32 s{SX+3}, 0x00020000
    s_mov_b32 s{SWIN+2}, 1409024
    s_mov_b32 s{SWIN+3}, 0x00020000''')
    a(f'''v_lshrrev_b32 v24, 3, v0
    v_and_b32 v25, 7, v0
    s_lshl_b32 s3, s{sA}, 5
    s_lshl_b32 s6, s{sB}, 2
    s_add_u32 s3, s3, s6
    s_and_b32 s6, s{sG}, 1
    s_lshl_b32 s7, s6, 4
    s_add_u32 s3, s3, s7
    v_and_b32 v26, 4, v24
    v_add_u32 v26, v26, v24
    v_add_u32 v27, s3, v26
    v_lshlrev_b32 v27, 10, v27
    v_lshl_add_u32 v{vXG}, v25, 4, v27
    v_xor_b32 v{vXG+1}, 0x4000, v{vXG}
    s_lshl_b32 s3, s{sR}, 16
    s_lshl_b32 s7, s{sP0}, 6''')
    for i in range(8):
        a(f'''s_add_u32 s{sT}, s{sROT}, {i}
        s_and_b32 s{sT}, s{sT}, 7
        s_mul_i32 s{sWO+i}, s{sT}, 176128
        s_lshl_b32 s{sSP+i}, s{sT}, 7
        s_add_u32 s{sWO+i}, s{sWO+i}, s7
        s_add_u32 s{sXO+i}, s{sSP+i}, s3''')
    a(f's_mul_i32 s3, s{sW}, {16*2752}\n s_add_u32 s3, s3, 1376\n s_movk_i32 s7, 2752')
    for p in range(3):
        a(f'''v_add_u32 v28, {64*p}, v0
        v_mul_u32_u24 v29, 171, v28
        v_lshrrev_b32 v29, 11, v29
        v_mul_u32_u24 v30, 12, v29
        v_sub_u32 v28, v28, v30
        v_lshrrev_b32 v30, 2, v29
        v_and_b32 v30, 2, v30
        v_xor_b32 v28, v28, v30
        v_lshl_add_u32 v28, v28, 4, s3
        v_mad_u32_u24 v{vWG+p}, v29, s7, v28'''.replace('v28','v32').replace('v29','v33').replace('v30','v34'))
        if p: a(f'v_subrev_u32 v{vWG+p}, {1024*p}, v{vWG+p}')
    a(f'''s_mul_i32 s{sM0W}, s{sW}, 3072
    s_add_u32 s{sM0W}, s{sM0W}, {L_RING}
    s_waitcnt lgkmcnt(0)''')
    xt = {}
    for rs in range(2):
        for i in range(8):
            xt[rs, i] = a.one(f'buffer_load_dwordx4 {V(XRAW+rs*32+i*4,4)}, v{vXG+rs}, {srd(SX)}, s{sXO+i} offen')
    wt = {}
    def w_issue(a, k, p):
        if k == 8 : a(f'v_subrev_u32 v{vWG+p}, 1376, v{vWG+p}')
        wt[k] = a.dma((f's{sM0W}', (k % NSLOT)*12288), f'buffer_load_dwordx4 v{vWG+p}, {srd(SWIN)}, s{sWO+k%8} offen offset:{1024*p} lds')
    for k in range(2):
        for p in range(3): w_issue(a, k, p)
    for r, n in ((SWSP,8388608),(SWOUT,704512),(SWS,0x10000000),(SOUT,2097152),(SDBG,256),(SBSP,4096)):
        a(f's_mov_b32 s{r+2}, {n}\n s_mov_b32 s{r+3}, 0x00020000')
    a(f'''v_and_b32 v27, 15, v0
    v_lshrrev_b32 v32, 4, v0
    v_lshrrev_b32 v33, 1, v32
    v_and_b32 v34, 1, v32
    s_lshl_b32 s3, s{sA}, 11
    s_lshl_b32 s7, s{sB}, 8
    s_add_u32 s7, s7, s3
    v_lshl_add_u32 v35, v27, 4, s7
    v_lshl_add_u32 v35, v33, 10, v35
    v_lshl_add_u32 v{vZS}, v34, 9, v35
    s_lshl_b32 s7, s{sB}, 9
    s_add_u32 s7, s7, s3
    v_lshl_add_u32 v35, v27, 4, s7
    v_lshl_add_u32 v35, v34, 10, v35
    v_lshl_add_u32 v{vHS}, v33, 8, v35
    v_lshlrev_b32 v35, 4, v27
    v_lshl_add_u32 v{vSTA}, v32, 2, v35
    s_lshl_b32 s3, s{sR}, 12
    s_mul_i32 s7, s{sR}, 90112''')
    for j in range(3):
        a(f'''s_add_u32 s{sT}, s{sP0}, {j}
        s_lshl_b32 s{sT+1}, s{sT}, 17
        s_add_u32 s{sZST+j}, s{sT+1}, s3
        s_lshl_b32 s{sT+1}, s{sT}, 12
        s_add_u32 s{sT+1}, s{sT+1}, s7
        s_add_u32 s{sHST+j}, s{sT+1}, {HH}''')
    a(f'''s_cmp_eq_u32 s{sNP}, 2
    s_cselect_b32 s{sZST+2}, {OOB}, s{sZST+2}
    s_cselect_b32 s{sHST+2}, {OOB}, s{sHST+2}
    s_cselect_b32 s{sVAL+1}, 0, 1.0
    s_lshl_b32 s{sT}, s{sG}, 1
    s_add_u32 s{sT}, s{sT}, s{sB}
    s_cmp_eq_u32 s{sT}, 15
    s_cselect_b32 s{sVAL}, 0, 1.0
    s_lshl_b32 s{sT+1}, s{sT}, 17
    s_add_u32 s{sT+1}, s{sT+1}, s3
    s_lshl_b32 s{sT+2}, s{sA}, 11
    s_add_u32 s{sT+1}, s{sT+1}, s{sT+2}
    s_add_u32 s{sPQST}, s{sT+1}, {PQ}
    s_lshl_b32 s{sT+1}, s{sR}, 1
    s_add_u32 s{sT+1}, s{sT+1}, s{sA}
    s_lshl_b32 s{sT+1}, s{sT+1}, 12
    s_add_u32 s{sSTLD}, s{sT+1}, {ST}
    s_lshl_b32 s{sT+1}, s{sT}, 8
    s_add_u32 s{sSTST}, s{sSTLD}, s{sT+1}''')
    a(f'''v_mov_b32 v36, -1
    v_mov_b32 v37, -1
    v_mov_b32 v38, -1
    v_mov_b32 v39, -1
    s_sub_u32 s3, s{sG}, 6
    s_lshl_b32 s3, s3, 5
    s_add_u32 s3, s3, s{sR}
    s_lshl_b32 s3, s3, 2
    s_add_u32 s3, s3, s{sW}
    s_lshl_b32 s3, s3, 12
    s_add_u32 s3, s3, {YY+4096}
    s_cmp_eq_u32 s{sNP}, 2
    s_cselect_b32 s{sT+3}, s3, {OOB}''')
    sYST = sT+3
    for k in range(2, NSLOT):
        for p in range(3): w_issue(a, k, p)
    def clears(a):
        a(f'buffer_store_dword v36, v{vSTA}, {srd(SWS)}, s{sSTST} offen sc1')
        for j in range(3): a(f'buffer_store_dwordx4 v[36:39], v{vZS}, {srd(SWS)}, s{sZST+j} offen sc1')
        for j in range(2): a(f'buffer_store_dwordx4 v[36:39], v{vL16}, {srd(SWS)}, s{sPQST} offen offset:{1024*j} sc1')
        for j in range(3): a(f'buffer_store_dwordx4 v[36:39], v{vHS}, {srd(SWS)}, s{sHST+j} offen sc1')
        for j in range(4): a(f'buffer_store_dwordx4 v[36:39], v{vL16}, {srd(SWS)}, s{sYST} offen offset:{1024*j} sc1')
        a(f'''s_lshl_b32 s3, s{sW}, 10
        s_add_u32 s3, s3, {YY}
        s_lshl_b32 s7, s{sR}, 3
        s_add_u32 s7, s7, s{sG}
        s_cmp_eq_u32 s7, 6
        s_cselect_b32 s3, s3, {OOB}
        v_mov_b32 v40, 0
        v_mov_b32 v41, 0
        v_mov_b32 v42, 0
        v_mov_b32 v43, 0''')
        a.tok['clr'] = a.one(f'buffer_store_dwordx4 v[40:43], v{vL16}, {srd(SWS)}, s3 offen sc1')
    def touches(a):
        a(f'''s_lshl_b32 s3, s{sR}, 18
        s_lshl_b32 s7, s{sG}, 15
        s_add_u32 s3, s3, s7
        s_lshl_b32 s7, s{sW}, 13
        s_add_u32 s3, s3, s7
        v_lshlrev_b32 v44, 7, v0
        buffer_load_dword v29, v44, {srd(SWSP)}, s3 offen
        s_and_b32 s3, s{sR}, 3
        s_lshl_b32 s3, s3, 2
        s_add_u32 s3, s3, s{sW}
        s_mul_i32 s7, s3, {43*1024}
        s_lshl_b32 s6, s{sG}, 7
        s_add_u32 s7, s7, s6
        v_min_u32 v44, 42, v0
        v_lshlrev_b32 v44, 10, v44
        buffer_load_dword v30, v44, {srd(SWOUT)}, s7 offen''')
    if cfg.get('touch', True): touches(a)
    clears(a)
    a(f'''v_xor_b32 v33, v24, v25
    v_and_b32 v34, 3, v25
    v_lshl_add_u32 v33, v34, 4, v33
    v_lshrrev_b32 v34, 2, v25
    v_lshlrev_b32 v34, 12, v34
    v_lshl_add_u32 v33, v33, 4, v34
    s_and_b32 s3, s{sG}, 1
    s_lshl_b32 s3, s3, 7
    s_lshl_b32 s7, s{sW}, 10
    s_add_u32 s3, s3, s7
    v_add_u32 v{vXW}, s3, v33
    v_xor_b32 v{vXW+1}, 0x80, v{vXW}
    s_add_u32 s{sM0O}, s7, {L_WO}
    s_lshl_b32 s7, s7, 2
    s_add_u32 s{sM0S}, s7, {L_STG}
    v_xor_b32 v33, v27, v32
    v_lshl_add_u32 v33, v32, 4, v33
    s_lshl_b32 s3, s{sA}, 11
    v_lshl_add_u32 v{vXR}, v33, 4, s3
    v_xor_b32 v{vXR+1}, 64, v{vXR}
    v_bfe_u32 v33, v0, 2, 2
    v_lshl_add_u32 v33, v32, 3, v33
    v_mul_u32_u24 v33, 192, v33
    v_and_b32 v34, 1, v32
    v_xor_b32 v34, s{sB}, v34
    v_lshl_add_u32 v33, v34, 5, v33
    v_and_b32 v34, 3, v0
    v_lshl_add_u32 v33, v34, 3, v33
    v_add_u32 v{vWR}, {L_RING}, v33
    v_add_u32 v{vWR+1}, {L_RING+3*12288}, v33
    v_lshrrev_b32 v33, 1, v24
    v_xor_b32 v33, v33, v25
    v_lshlrev_b32 v33, 4, v33
    v_lshl_add_u32 v{vSG}, v26, 12, v33
    v_xor_b32 v33, 64, v{vSG}
    v_add_u32 v{vSG+1}, {16*4096-1024}, v33
    v_add_u32 v{vSG+2}, {4*4096-2048}, v{vSG}
    v_add_u32 v{vSG+3}, {20*4096-3072}, v33
    v_and_b32 v33, 31, v0
    v_bfe_u32 v34, v0, 1, 3
    v_lshrrev_b32 v35, 5, v0
    v_xor_b32 v34, v34, v35
    v_lshlrev_b32 v34, 4, v34
    v_lshl_add_u32 v33, v33, 7, v34
    v_add_u32 v{vSR}, s{sM0S}, v33
    v_xor_b32 v{vSR+1}, 32, v{vSR}
    v_xor_b32 v{vSR+2}, 64, v{vSR}
    v_xor_b32 v{vSR+3}, 0x60, v{vSR}
    s_lshl_b32 s3, s{sR}, 18
    s_lshl_b32 s7, s{sW}, 10
    s_add_u32 s3, s3, s7
    s_lshl_b32 s6, s{sP0}, 17
    s_lshl_b32 s7, s{sW}, 15
    s_add_u32 s6, s6, s7''')
    for i in range(8):
        a(f'''s_lshl_b32 s{sZO+i}, s{sSP+i}, 5
        s_add_u32 s{sZO+i}, s{sZO+i}, s6
        s_add_u32 s{sSP+i}, s{sSP+i}, s3''')
    c0 = -2.0*math.sqrt(2.0/math.pi)*math.log2(math.e)
    a(f'''s_mov_b32 s{sGC}, {H(c0*0.044715)}
    s_mov_b32 s{sGC+1}, {H(c0)}
    s_mov_b32 s{sONE}, 0x3f803f80
    s_mov_b32 s{sLO}, 0x00003f80
    s_mov_b32 s{sHI}, 0x3f800000
    s_mov_b32 s{sCNT}, 0
    s_mov_b32 s{sMA}, 0xaaaaaaaa
    s_mov_b32 s{sMA+1}, 0xaaaaaaaa
    s_mov_b32 s{sMC}, 0xcccccccc
    s_mov_b32 s{sMC+1}, 0xcccccccc''')
    a(f'''s_lshl_b32 s3, s{sT}, 4
    s_add_u32 s3, s3, 1
    v_add_u32 v33, s3, v27
    v_cvt_f32_u32 v33, v33
    v_mul_f32 v33, {H(1/512)}, v33''')
    for sg in range(4):
        a(f'''s_lshl_b32 s3, s{sA}, 1
        s_add_u32 s3, s3, s{sROT}
        s_add_u32 s3, s3, {sg//2}
        s_and_b32 s3, s3, 7
        s_lshl_b32 s3, s3, 6
        s_add_u32 s3, s3, {32*(sg%2)}
        v_lshl_add_u32 v34, v32, 3, s3
        v_cvt_f32_u32 v34, v34
        v_mul_f32 v34, v34, v33
        v_fract_f32 v48, v34''')
        for i in range(1, 8): a(f'v_add_f32 v{48+i}, v{47+i}, v33')
        for i in range(8): a(f'v_cos_f32 v{56+i}, v{48+i}')
        for i in range(8): a(f'v_sin_f32 v{64+i}, v{48+i}')
        for i in range(8): a(f'v_cvt_pk_bf16_f32 v{72+i}, v{56+2*i}, v{57+2*i}')
        for i in range(8): a(f'v_accvgpr_write_b32 a{224+sg*8+i}, v{72+i}')
    stamp(a, 1)
    a(f'''s_and_b32 s3, s{sG}, 1
    s_lshl_b32 s3, s3, 5
    s_lshl_b32 s7, s{sW}, 6
    s_add_u32 s3, s3, s7
    s_add_u32 s3, s3, {L_MISC}
    v_lshl_add_u32 v33, v24, 2, s3
    v_xor_b32 v34, 32, v33''')
    def red8(a, r):
        a(f'''v_add_f32_dpp v{r}, v{r}, v{r} quad_perm:[1,0,3,2] row_mask:0xf bank_mask:0xf
        v_add_f32_dpp v{r}, v{r}, v{r} quad_perm:[2,3,0,1] row_mask:0xf bank_mask:0xf
        v_add_f32_dpp v{r}, v{r}, v{r} row_half_mirror row_mask:0xf bank_mask:0xf''')
    for rs in range(2):
        a.cmt(f'LN rowset {rs}')
        X = XRAW + rs*32
        a('v_mov_b32 v35, 0\n v_mov_b32 v36, 0')
        for i in range(8):
            if i % 2 == 0: a.wait(vm=xt[rs, i+1])
            for k in range(4): a(f'v_dot2c_f32_bf16 v35, s{sONE}, v{X+4*i+k}')
        red8(a, 35)
        a(f'v_mul_f32 v35, {H(-1/512)}, v35')
        for i in range(9):
            if i < 8:
                for k in range(4):
                    t = 40 + (i % 2)*8 + 2*k
                    a(f'v_dot2_f32_bf16 v{t}, v{X+4*i+k}, s{sLO}, v35\n v_dot2_f32_bf16 v{t+1}, v{X+4*i+k}, s{sHI}, v35')
            if i > 0:
                j = i-1
                for k in range(4):
                    t = 40 + (j % 2)*8 + 2*k
                    a(f'v_cvt_pk_bf16_f32 v{X+4*j+k}, v{t}, v{t+1}')
                a(f'ds_write_b128 v{vXW+rs}, {V(X+4*j,4)} offset:{8192*j}')
        for k in range(32): a(f'v_dot2c_f32_bf16 v36, v{X+k}, v{X+k}')
        red8(a, 36)
        a(f'''v_mov_b32 v37, {H(1e-5)}
        v_fmac_f32 v37, {H(1/512)}, v36
        v_rsq_f32 v37, v37
        ds_write_b32 v{33+rs}, v37''')
    stamp(a, 2)
    vR1A, vR1B, vTW, vTR = vXG, vXG+1, vXW, vXW+1
    a(f'''s_lshl_b32 s3, s{sA}, 7
    s_add_u32 s3, s3, {L_MISC}
    v_lshl_add_u32 v{vR1A}, v32, 4, s3
    v_lshl_add_u32 v{vR1B}, v27, 2, s3''')
    SLOT = lambda k: (k+2) % 3
    bg = []
    GAP = cfg.get('gap', 60)
    def mk_dma(k, p):
        def f(a):
            if p == 0 and k >= 3: a.wait(lg=a.tok['sr', k-3])
            if k == 8: a(f'v_add_u32 v{vSG+p}, 0x20000, v{vSG+p}')
            a.tok['sd', k] = a.dma((f's{sM0S}', SLOT(k)*16384), f'buffer_load_dwordx4 v{vSG+p}, {srd(SWSP)}, s{sSP+k%8} offen offset:{1024*p} lds')
        return (f, GAP)
    def mk_rd(k):
        def f(a):
            a.wait(vm=a.tok['sd', k])
            for q in range(4):
                r = ((k % 8)*4+q)*8 + (k//8)*4
                a.tok['sr', k] = a.one(f'ds_read_b128 {A(r,4)}, v{vSR+q} offset:{SLOT(k)*16384}')
        return (f, 0)
    for k in range(16):
        for p in range(4):
            bg.append(mk_dma(k, p))
            if p == 1 and k >= 2: bg.append(mk_rd(k-2))
    bg.append(mk_rd(14)); bg.append(mk_rd(15))
    nsp = len(bg)
    vOG = vXR
    def wo_issue(a, k):
        a(f's_add_u32 s3, s{sT+2}, {KORD[k]*32768}')
        a.tok['wo', k] = a.dma((f's{sM0O}', ((k+4) % 22)*4096), f'buffer_load_dwordx4 v{vOG}, {srd(SWOUT)}, s3 offen lds')
    NEARLY = cfg.get('nearly', 0)
    a.bg = bg
    def w_reads(k):
        ops = []
        sl = k % NSLOT; ar = vWR + (sl >= 3); base = (sl % 3)*12288
        for sg in range(2):
            if k < 8:
                for mt in range(2):
                    s_ = 2*k+sg
                    ops.append(f'ds_read_b128 {V(XF+(s_*2+mt)*4,4)}, v{vXR+sg} offset:{s_*4096+mt*1024}')
            for j in range(3):
                for u in range(2):
                    ops.append(f'ds_read_b64_tr_b16 {V(WB+(k%2)*24+(sg*3+j)*4+2*u,2)}, v{ar} offset:{base+sg*6144+u*768+j*64}')
        return ops
    def gemm_iter(a, k, extra=()):
        a.cmt(f'gemm iter {k}')
        on = a.bg_on; a.bg_on = False
        a.wait(vm=wt.get(k+1), lg=a.tok['wr', k])
        a('s_barrier')
        a.bg_on = on
        fill = [(lambda a, t=t: a.tok.__setitem__(('wr', k+1), a.one(t))) for t in (w_reads(k+1) if k < 15 else [])]
        late = [(lambda a, p=p: w_issue(a, k+NSLOT, p)) for p in range(3)] if k+NSLOT < 16 else []
        late += list(extra)
        n = 0
        for sg in range(2):
            for j in range(3):
                for mt in range(2):
                    x = V(XF+(((2*k+sg) % 16)*2+mt)*4, 4); w = V(WB+(k%2)*24+(sg*3+j)*4, 4)
                    acc = V((ACC2 if k < 8 else ACC1)+(j*2+mt)*4, 4)
                    c = '0' if (k % 8 == 0 and sg == 0) else acc
                    a(f'v_mfma_f32_16x16x32_bf16 {acc}, {x}, {w}, {c}' if k < 8 else f'v_mfma_f32_16x16x32_bf16 {acc}, {w}, {x}, {c}')
                    n += 1
                    if fill:
                        for _ in range(2):
                            if fill: fill.pop(0)(a)
                    elif late: late.pop(0)(a)
        for f in late: f(a)
    a.wait(vm=wt[0], lg=a.lg_n)
    a('s_barrier')
    for t in w_reads(0): a.tok['wr', 0] = a.one(t)
    a(f'''s_lshl_b32 s3, s{sB}, 14
    v_add_u32 v{vTR}, s3, v{vL16}
    s_lshl_b32 s7, s{sA}, 13
    v_add_u32 v{vTW}, s7, v{vTR}''')
    def dbg_store(a):
        a(f'''s_lshl_b32 s3, s{sR}, 3
        s_add_u32 s3, s3, s{sG}
        s_cmp_eq_u32 s{sW}, 0
        s_cselect_b32 s3, s3, {OOB}
        v_mov_b32 v24, 1
        v_mov_b32 v25, 0
        buffer_store_byte v24, v25, {srd(SDBG)}, s3 offen sc1''')
    RV = 24
    for k in range(8):
        extra = []
        if k == 5:
            assert a.tok['clr'] <= wt[6]
            extra = [dbg_store]
        if k == 7:
            extra = [(lambda a, q=q: a(f'ds_write_b128 v{vTW}, {A(224+q*4,4)} offset:{q*1024}')) for q in range(8)]
            extra += [(lambda a, mt=mt: a.tok.__setitem__('r1', a.one(f'ds_read_b128 {V(ACC1+4*mt,4)}, v{vR1A} offset:{64*mt}'))) for mt in range(2)]
        gemm_iter(a, k, extra)
    stamp(a, 3)
    a.bg_on = True; a.bg_next = 0
    def gelu_tile(a, acc, tmp, rop):
        for p in range(4): a(f'v_pk_mul_f32 {V(acc+2*p,2)}, {V(acc+2*p,2)}, {rop(p)}')
        for p in range(4): a(f'v_pk_mul_f32 {V(tmp+2*p,2)}, {V(acc+2*p,2)}, {V(acc+2*p,2)}')
        for p in range(4): a(f'v_pk_fma_f32 {V(tmp+2*p,2)}, {V(tmp+2*p,2)}, {S(sGC,2)}, {S(sGC,2)} op_sel:[0,0,1] op_sel_hi:[1,0,1]')
        for p in range(4): a(f'v_pk_mul_f32 {V(tmp+2*p,2)}, {V(tmp+2*p,2)}, {V(acc+2*p,2)}')
        for p in range(8): a(f'v_exp_f32 v{tmp+p}, v{tmp+p}')
        for p in range(4): a(f'v_pk_add_f32 {V(tmp+2*p,2)}, {V(tmp+2*p,2)}, 1.0 op_sel_hi:[1,0]')
        for p in range(8): a(f'v_rcp_f32 v{tmp+p}, v{tmp+p}')
        for p in range(4): a(f'v_pk_mul_f32 {V(acc+2*p,2)}, {V(acc+2*p,2)}, {V(tmp+2*p,2)}')
    a.wait(lg=a.tok['r1'])
    TM = WB+24; SS = ACC1+8; QQ = ACC1+16
    for j in range(3):
        if j:
            for p in range(4): a(f'v_pk_mul_f32 {V(ACC1+2*p,2)}, {V(ACC1+2*p,2)}, {S(sVAL,2)} op_sel:[0,{j-1}] op_sel_hi:[1,{j-1}]')
        y = ACC2+8*j
        gelu_tile(a, y, TM, lambda p: V(ACC1+2*p, 2))
        for p in range(4):
            if j == 0: a(f'v_pk_mul_f32 {V(QQ+2*p,2)}, {V(y+2*p,2)}, {V(y+2*p,2)}')
            else: a(f'v_pk_fma_f32 {V(QQ+2*p,2)}, {V(y+2*p,2)}, {V(y+2*p,2)}, {V(QQ+2*p,2)}')
            if j == 1: a(f'v_pk_add_f32 {V(SS+2*p,2)}, {V(y+2*p,2)}, {V(ACC2+2*p,2)}')
            if j == 2: a(f'v_pk_add_f32 {V(SS+2*p,2)}, {V(y+2*p,2)}, {V(SS+2*p,2)}')
    for i in range(8): a(f'v_add_f32_dpp v{SS+i}, v{SS+i}, v{SS+i} row_ror:8 row_mask:0xf bank_mask:0x3')
    for i in range(8): a(f'v_add_f32_dpp v{SS+i}, v{QQ+i}, v{QQ+i} row_ror:8 row_mask:0xf bank_mask:0xc')
    for i in range(4): a(f'v_add_f32_dpp v{SS+i}, v{SS+i}, v{SS+i} row_half_mirror row_mask:0xf bank_mask:0x5')
    for i in range(4): a(f'v_add_f32_dpp v{SS+i}, v{SS+4+i}, v{SS+4+i} row_half_mirror row_mask:0xf bank_mask:0xa')
    for i in range(4): a(f'v_add_f32_dpp v{SS+i}, v{SS+i}, v{SS+i} quad_perm:[1,0,3,2] row_mask:0xf bank_mask:0xf')
    for i in range(4): a(f'v_add_f32_dpp v{SS+i}, v{SS+i}, v{SS+i} quad_perm:[2,3,0,1] row_mask:0xf bank_mask:0xf')
    a(f'''v_cndmask_b32 v{SS}, v{SS}, v{SS+1}, {S(sMA,2)}
    v_cndmask_b32 v{SS+2}, v{SS+2}, v{SS+3}, {S(sMA,2)}
    v_cndmask_b32 v24, v{SS}, v{SS+2}, {S(sMC,2)}
    buffer_store_dword v24, v{vSTA}, {srd(SWS)}, s{sSTST} offen sc1''')
    stamp(a, 4)
    vBS = 28
    def misc1(a):
        a(f'''v_lshrrev_b32 v24, 3, v0
        v_bfe_u32 v25, v0, 4, 1
        s_lshl_b32 s3, s{sB}, 1
        v_add_u32 v25, s3, v25
        v_lshlrev_b32 v25, 1, v25
        v_and_b32 v30, 7, v0
        v_xor_b32 v25, v25, v30
        v_lshlrev_b32 v25, 4, v25
        s_lshl_b32 s3, s{sW}, 13
        v_lshl_add_u32 v25, v24, 10, v25
        v_add_u32 v{vOG}, s3, v25
        s_lshl_b32 s{sT+2}, s{sG}, 7''')
    def misc2(a):
        a(f'''v_and_b32 v24, 12, v0
        v_and_b32 v25, 15, v0
        v_add_u32 v24, v24, v25
        v_lshlrev_b32 v{vXR+1}, 1, v24
        s_lshl_b32 s3, s{sR}, 7
        s_lshl_b32 s7, s{sA}, 6
        s_add_u32 s3, s3, s7
        buffer_load_short_d16_hi v{vBS}, v{vXR+1}, {srd(SBSP)}, s3 offen
        buffer_load_short_d16_hi v{vBS+1}, v{vXR+1}, {srd(SBSP)}, s3 offen offset:8''')
    def dbg_load(a):
        a(f'v_lshlrev_b32 v24, 2, v0')
        a.tok['dbg'] = a.one(f'buffer_load_dword v30, v24, {srd(SDBG)}, 0 offen sc1')
    for k in range(8, 16):
        extra = []
        if k == 10: extra = [misc1]
        if k == 11: extra = [misc2]
        if k == 13: extra = [dbg_load]
        if k == 15:
            extra = [(lambda a, mt=mt: a.tok.__setitem__('r1', a.one(f'ds_read_b32 v{26+mt}, v{vR1B} offset:{64*mt}'))) for mt in range(2)]
        gemm_iter(a, k, extra)
    stamp(a, 5)
    a.bg_on = False
    a.wait(vm=a.tok['dbg'])
    a.label('L_dbg_chk')
    a('v_cmp_ne_u32 vcc, 0x01010101, v30\n s_cbranch_vccnz L_dbg_retry')
    a.label('L_dbg_ok', keep_m0=True)
    SL = WB
    def st_loads(a):
        for j in range(4): a.tok['st'] = a.one(f'buffer_load_dwordx4 {V(SL+4*j,4)}, v{vL16}, {srd(SWS)}, s{sSTLD} offen offset:{1024*j} sc1')
    a.bg_on = True
    a.wait(lg=a.tok['r1'])
    STPOS = cfg.get('stpos', 1)
    for j in range(3):
        if j == STPOS: st_loads(a)
        if j: a(f'v_pk_mul_f32 v[26:27], v[26:27], {S(sVAL,2)} op_sel:[0,{j-1}] op_sel_hi:[1,{j-1}]')
        gelu_tile(a, ACC1+8*j, TM, lambda p: f'v[26:27] op_sel:[0,{p//2}] op_sel_hi:[1,{p//2}]')
    if STPOS == 3: st_loads(a)
    stamp(a, 6)
    a.bg_on = False
    a.wait(vm=a.tok['st'])
    a.label('L_st_chk')
    a(f'''v_pk_add_f32 {V(SL,2)}, {V(SL,2)}, {V(SL+4,2)}
    v_pk_add_f32 {V(SL+2,2)}, {V(SL+2,2)}, {V(SL+6,2)}
    v_pk_add_f32 {V(SL+8,2)}, {V(SL+8,2)}, {V(SL+12,2)}
    v_pk_add_f32 {V(SL+10,2)}, {V(SL+10,2)}, {V(SL+14,2)}
    v_pk_add_f32 {V(SL,2)}, {V(SL,2)}, {V(SL+8,2)}
    v_pk_add_f32 {V(SL+2,2)}, {V(SL+2,2)}, {V(SL+10,2)}
    v_permlane32_swap_b32 v{SL}, v{SL+2}
    v_permlane32_swap_b32 v{SL+1}, v{SL+3}
    v_pk_add_f32 {V(SL,2)}, {V(SL,2)}, {V(SL+2,2)}
    v_permlane16_swap_b32 v{SL}, v{SL+1}
    v_add_f32 v{SL}, v{SL}, v{SL+1}
    v_cmp_u_f32 vcc, v{SL}, v{SL}
    s_cbranch_vccnz L_st_retry''')
    a.label('L_st_ok')
    a.bg_on = True
    RS = SL+8; NB = SL+16
    a(f'''v_mul_f32 v{SL}, {H(1/688)}, v{SL}
    v_mul_f32 v{SL+2}, v{SL}, v{SL}
    v_sub_f32_dpp v{SL+1}, v{SL}, v{SL+2} row_ror:8 row_mask:0xf bank_mask:0xf
    v_max_f32 v{SL+1}, 0, v{SL+1}
    v_add_f32 v{SL+1}, {H(1e-5)}, v{SL+1}
    v_rsq_f32 v{SL+1}, v{SL+1}
    v_mul_f32_e64 v{SL+2}, -v{SL}, v{SL+1}''')
    for i in range(8): a(f'v_mov_b32_dpp v{RS+i}, v{SL+1} row_newbcast:{i} row_mask:0xf bank_mask:0xf')
    for i in range(8): a(f'v_mov_b32_dpp v{NB+i}, v{SL+2} row_newbcast:{i} row_mask:0xf bank_mask:0xf')
    PK = SL+24
    for j in range(3):
        y = ACC2+8*j
        for p in range(4): a(f'v_pk_fma_f32 {V(y+2*p,2)}, {V(y+2*p,2)}, {V(RS+2*p,2)}, {V(NB+2*p,2)}')
        for p in range(4): a(f'v_cvt_pk_bf16_f32 v{PK+4*j+p}, v{y+2*p}, v{y+2*p+1}')
        a(f'buffer_store_dwordx4 {V(PK+4*j,4)}, v{vZS}, {srd(SWS)}, s{sZST+j} offen sc1')
    stamp(a, 7)
    DL = lambda pq, mt: ACC2 + (pq*2+mt)*4
    DH = lambda pq, mt: (48 if pq == 0 else 116) + mt*4
    tr = {}
    def t_read(sg):
        for pq in range(2): tr[sg] = a.one(f'ds_read_b128 {V(WB+(sg%3)*8+pq*4,4)}, v{vTR} offset:{sg*2048+pq*1024}')
    t_read(0); t_read(1)
    for sg in range(8):
        a.wait(lg=tr[sg])
        n = 0
        for hf in range(2):
            for pq in range(2):
                for mt in range(2):
                    acc = V((DH if hf else DL)(pq, mt), 4)
                    a(f'v_mfma_f32_16x16x32_bf16 {acc}, {V(XF+((sg+8*hf)*2+mt)*4,4)}, {V(WB+(sg%3)*8+pq*4,4)}, {acc if sg else 0}')
                    n += 1
                    if n == 1 and sg+2 < 8: t_read(sg+2)
                    if n == 2 and sg == 6:
                        for mt2 in range(2): a.tok['r1'] = a.one(f'ds_read_b128 {V(104+4*mt2,4)}, v{vR1A} offset:{64*mt2}')
                    if n == 3 and sg == 7:
                        a(f'v_cndmask_b32 v24, -1.0, 1.0, {S(sMA,2)}')
    a.wait(lg=a.tok['r1'])
    for pq in range(2):
        for p in range(4): a(f'v_pk_fma_f32 {V(DL(pq,0)+2*p,2)}, {V(DH(pq,0)+2*p,2)}, v[24:25], {V(DL(pq,0)+2*p,2)} op_sel_hi:[1,0,1]')
        for p in range(4): a(f'v_pk_mul_f32 {V(DL(pq,0)+2*p,2)}, {V(DL(pq,0)+2*p,2)}, {V(104+2*p,2)}')
        for p in range(4): a(f'v_cvt_pk_bf16_f32 v{WB+4*pq+p}, v{DL(pq,0)+2*p}, v{DL(pq,0)+2*p+1}')
        a(f'buffer_store_dwordx4 {V(WB+4*pq,4)}, v{vL16}, {srd(SWS)}, s{sPQST} offen offset:{1024*pq} sc1')
    stamp(a, 8)
    vZ = (vL16, vXG, vXG+1); vRW = vXW; vRR = vXW+1; vPR = vXR+1
    a(f'''v_add_u32 v{vZ[1]}, 0x20000, v{vL16}
    v_add_u32 v{vZ[2]}, 0x40000, v{vL16}
    s_lshl_b32 s3, s{sW}, 13
    s_add_u32 s3, s3, {L_RED}
    v_add_u32 v{vRW}, s3, v{vL16}
    s_lshl_b32 s3, s{sW}, 11
    s_add_u32 s3, s3, {L_RED}
    v_lshrrev_b32 v24, 4, v0
    v_lshl_add_u32 v24, v24, 8, s3
    v_add_u32 v{vRR}, v24, v{vL16}
    v_lshrrev_b32 v24, 2, v0
    v_lshlrev_b32 v24, 11, v24
    v_bfe_u32 v25, v0, 1, 1
    v_lshl_add_u32 v{vPR}, v25, 8, v24
    s_add_u32 s{sT+1}, s{sP0}, s{sNP}
    s_sub_u32 s{sT+1}, s{sT+1}, 1
    s_lshl_b32 s{sT+1}, s{sT+1}, 17
    s_lshl_b32 s3, s{sW}, 15
    s_add_u32 s{sT+1}, s{sT+1}, s3''')
    a.bg_on = False
    a(f's_cmp_eq_u32 s{sNP}, 2\n s_cbranch_scc1 L_pathB')
    b = a.fork()
    slow = []
    from gen2 import tail
    env = dict(globals()); env.update(locals())
    tail(a, 3, env)
    b.label('L_pathB')
    tail(b, 2, env)
    r = Asm(); r.out = a.out
    r.label('L_dbg_retry')
    r(f'buffer_load_dword v30, v24, {srd(SDBG)}, 0 offen sc1\n s_waitcnt vmcnt(0)')
    retry(r, 'L_dbg_chk', 'L_dbg_ok')
    r.label('L_st_retry')
    r(f's_cmp_gt_u32 s{sCNT}, {LIMIT}\n s_cbranch_scc1 L_st_ok\n s_add_u32 s{sCNT}, s{sCNT}, 1')
    st_loads(r); r('s_waitcnt vmcnt(0)\n s_branch L_st_chk')
    for f in slow: f(r)
    r.label('L_end'); r('s_endpgm')
    r.raw('L_codeend:')
    hdr = open('parallel_sum__spectral_fnet__mixer_gmlp__prompt.s.ref').read().split('; @launch')[0] if cfg.get('hdr', True) else ''
    txt = hdr + f'''; @launch grid=(256,1,1) block=(256,1,1) lds=163840
.amdgcn_target "amdgcn-amd-amdhsa--gfx950"
.text
.globl {KN}
.p2align 8
.type {KN},@function
{KN}:
''' + '\n'.join(a.out) + f'''
.section .rodata,"a"
.p2align 6
.amdhsa_kernel {KN}
  .amdhsa_next_free_vgpr 512
  .amdhsa_next_free_sgpr 102
  .amdhsa_accum_offset 256
  .amdhsa_group_segment_fixed_size 0
  .amdhsa_kernarg_size 104
  .amdhsa_user_sgpr_count 2
  .amdhsa_user_sgpr_kernarg_segment_ptr 1
  .amdhsa_system_sgpr_workgroup_id_x 1
.end_amdhsa_kernel
'''
    return txt
if __name__ == '__main__':
    cfg = {}
    for kv in sys.argv[2:]:
        k, v = kv.split('='); cfg[k] = int(v) if v.lstrip('-').isdigit() else v
    open(sys.argv[1], 'w').write(gen(cfg))
```

```python
from asmlib import *
def tail(a, NP, env):
    globals().update({k: v for k, v in env.items() if not k.startswith('__') and k not in ('a', 'tail')})
    P = 'A' if NP == 3 else 'B'
    D = cfg.get('depth', 10); RING = 128
    if NP == 2:
        a.cmt('FFT constants -> LDS [0,30720)')
        a('s_barrier')
        a.bg_on = True
        a(f'''v_and_b32 v32, 31, v0
        v_cvt_f32_u32 v32, v32
        v_lshrrev_b32 v33, 5, v0
        s_lshl_b32 s3, s{sB}, 10
        v_add_u32 v36, s3, v{vL16}
        s_lshl_b32 s3, s{sW}, 12
        v_add_u32 v37, s3, v{vL16}
        s_lshl_b32 s3, s{sW}, 11
        v_add_u32 v38, s3, v{vL16}''')
        AR, CO, SI, PKD = 80, 88, 96, 104
        def args(kf, n0, steps):
            a(f'v_mul_f32 v34, {H(kf)}, v32\n {n0}\n v_cvt_f32_u32 v35, v35')
            for i, st in enumerate(steps):
                if st == 0: a(f'v_mul_f32 v{AR+i}, v35, v34')
                else: a(f'v_add_f32 v39, {H(float(st))}, v35\n v_mul_f32 v{AR+i}, v39, v34')
        args(1/32, f's_lshl_b32 s3, s{sB}, 4\n v_lshl_add_u32 v35, v33, 3, s3', range(8))
        for i in range(8): a(f'v_cos_f32 v{CO+i}, v{AR+i}')
        for i in range(8): a(f'v_sin_f32 v{SI+i}, v{AR+i}')
        for i in range(8): a(f'v_cvt_pk_bf16_f32 v{PKD+i}, v{CO+2*i}, v{CO+2*i+1}')
        for i in range(4): a(f'v_xor_b32 v{PKD+8+i}, 0x80008000, v{PKD+4+i}')
        for q in range(3): a(f'ds_write_b128 v36, {V(PKD+4*q,4)} offset:{2048*q}')
        args(1/2048, f's_lshl_b32 s3, s{sW}, 4\n v_lshl_add_u32 v35, v33, 2, s3', [0,1,2,3,8,9,10,11])
        for i in range(8): a(f'v_cos_f32 v{CO+i}, v{AR+i}')
        for i in range(8): a(f'v_sin_f32 v{SI+i}, v{AR+i}')
        for j in range(2):
            a(f'ds_write_b128 v37, {V(CO+4*j,4)} offset:{6144+j*2048}\n ds_write_b128 v37, {V(SI+4*j,4)} offset:{6144+j*2048+1024}')
        args(1/64, f's_lshl_b32 s3, s{sA}, 5\n s_add_u32 s3, s3, s{sB}\n v_lshl_add_u32 v35, v33, 2, s3', [0,2,8,10,16,18,24,26])
        for i in range(8): a(f'v_cos_f32 v{40+i}, v{AR+i}')
        for i in range(8): a(f'v_sin_f32_e64 v{48+i}, -v{AR+i}')
        for i in range(8): a(f'v_cvt_pk_bf16_f32 v{116+i}, v{40+2*i}, v{41+2*i}')
        for q in range(2): a(f'ds_write_b128 v38, {V(116+4*q,4)} offset:{22528+1024*q}')
        a.bg_on = False
    a.bg_flush()
    for k in range(NEARLY): wo_issue(a, k)
    vX3, vO3, vY3 = vWG, vWG+1, vWG+2; vOR = vSG; vPQG, vPQW = vWR, vWR+1; vPQR, vYS = vZS, vSTA
    sX3, sHB, sYB, sYS, sY13, sPQL = sWO, sWO+1, sWO+2, sWO+3, sWO+4, sWO+5
    a(f'''v_and_b32 v24, 12, v0
    v_and_b32 v25, 15, v0
    v_add_u32 v24, v24, v25
    s_lshl_b32 s3, s{sA}, 5
    s_lshl_b32 s7, s{sB}, 2
    s_add_u32 s3, s3, s7
    v_add_u32 v24, s3, v24
    v_lshrrev_b32 v25, 4, v0
    v_lshlrev_b32 v26, 10, v24
    v_lshl_add_u32 v{vX3}, v25, 3, v26
    v_and_b32 v27, 1, v25
    v_lshl_add_u32 v26, v27, 5, v26
    v_lshrrev_b32 v30, 1, v25
    v_lshl_add_u32 v{vO3}, v30, 4, v26
    s_lshl_b32 s{sX3}, s{sR}, 16
    s_add_u32 s{sX3}, s{sX3}, s{sT+2}
    s_mul_i32 s{sHB}, s{sR}, 90112
    s_lshl_b32 s3, s{sW}, 10
    s_add_u32 s{sHB}, s{sHB}, s3
    s_add_u32 s{sHB}, s{sHB}, {HH}
    s_lshl_b32 s3, s{sG}, 6
    s_sub_u32 s7, 500, s3
    s_cmp_ge_u32 s{sG}, 4
    s_cselect_b32 s3, s7, s3
    s_cselect_b32 s7, -1, 0
    s_cselect_b32 s{sYS}, 0xfffff000, 0x1000
    s_lshl_b32 s3, s3, 12
    s_add_u32 s{sYB}, s3, {YY}
    s_mul_i32 s{sY13}, s{sYS}, 13
    s_lshl_b32 s3, s{sR}, 6
    v_add_u32 v24, s3, v24
    v_xor_b32 v24, s7, v24
    v_subrev_u32 v24, s7, v24
    v_and_b32 v24, 0x7ff, v24
    v_xor_b32 v26, s7, v25
    v_and_b32 v26, 3, v26
    v_lshlrev_b32 v26, 14, v26
    v_lshrrev_b32 v30, 6, v24
    v_lshl_add_u32 v26, v30, 7, v26
    v_and_b32 v30, 31, v24
    v_lshl_add_u32 v26, v30, 2, v26
    v_bfe_u32 v30, v24, 5, 1
    v_lshl_add_u32 v{vY3}, v30, 1, v26
    v_bfe_u32 v24, v0, 2, 2
    v_lshl_add_u32 v26, v25, 3, v24
    v_lshlrev_b32 v26, 7, v26
    v_lshrrev_b32 v30, 1, v24
    v_lshl_add_u32 v30, v27, 1, v30
    v_lshl_add_u32 v26, v30, 5, v26
    v_and_b32 v30, 3, v0
    v_lshl_add_u32 v26, v30, 3, v26
    v_add_u32 v{vOR}, {L_WO+16384}, v26
    v_xor_b32 v{vOR+1}, 32, v{vOR}
    v_xor_b32 v{vOR+2}, 64, v{vOR}
    v_xor_b32 v{vOR+3}, 0x60, v{vOR}'''.replace('s_cselect_b32 s%d, 0xfffff000, 0x1000' % sYS, f's_xor_b32 s{sYS}, s7, 0x1000\n s_sub_u32 s{sYS}, s{sYS}, s7'))
    if NP == 2:
        a(f'''s_and_b32 s3, s{sR}, 3
        s_lshl_b32 s3, s3, 6
        v_xor_b32 v26, s{sW}, v30
        v_lshl_add_u32 v26, v26, 4, s3
        v_lshrrev_b32 v32, 2, v0
        v_lshl_add_u32 v{vPQG}, v32, 8, v26
        s_sub_u32 s3, s{sG}, 6
        s_lshl_b32 s3, s3, 3
        s_lshr_b32 s7, s{sR}, 2
        s_add_u32 s3, s3, s7
        s_lshl_b32 s3, s3, 17
        s_lshl_b32 s7, s{sW}, 12
        s_add_u32 s3, s3, s7
        s_add_u32 s{sPQL}, s3, {PQ}
        s_lshl_b32 s3, s{sW}, 10
        s_add_u32 s3, s3, {L_RED}
        v_add_u32 v{vPQW}, s3, v{vL16}
        v_lshrrev_b32 v32, 5, v0
        v_lshl_add_u32 v26, v32, 3, v24
        v_lshlrev_b32 v26, 10, v26
        v_lshrrev_b32 v33, 1, v30
        v_lshl_add_u32 v33, v27, 1, v33
        v_lshl_add_u32 v26, v33, 6, v26
        v_xor_b32 v33, s{sW}, v24
        v_lshl_add_u32 v26, v33, 4, v26
        v_and_b32 v33, 1, v30
        v_lshl_add_u32 v26, v33, 3, v26
        v_add_u32 v{vPQR}, {L_RED}, v26
        v_and_b32 v33, 31, v0
        v_lshlrev_b32 v33, 2, v33
        v_lshl_add_u32 v{vYS}, v32, 8, v33''')
    stamp(a, 9)
    a.label(f'L_pr{P}')
    a(f'buffer_load_dword v24, v{vPR}, {srd(SWS)}, s{sT+1} offen sc1')
    a.waitall(lg=False)
    a(f'''v_cmp_eq_u32 vcc, -1, v24
    s_cbranch_vccz L_prok{P}
    s_add_u32 s{sCNT}, s{sCNT}, 1
    s_cmp_gt_u32 s{sCNT}, {LIMIT}
    s_cbranch_scc0 L_pr{P}''')
    a.label(f'L_prok{P}')
    stamp(a, 10)
    G = 32*NP; zt = {}
    ACC = lambda r: 224 if (NP-1-r) % 2 == 0 else 192
    def zload(a, gi, reg):
        r, i = divmod(gi, 32)
        return a.one(f'buffer_load_dwordx4 {V(reg,4)}, v{vZ[r]}, {srd(SWS)}, s{sZO+i//4} offen offset:{(i%4)*1024} sc1')
    RG = lambda gi: RING + (gi % D)*4
    for gi in range(D-1): zt[gi] = zload(a, gi, RG(gi))
    a.wait(lg=a.lg_n)
    TP = 80; HP = 112
    def red_ops(r, pk):
        W = [(lambda a, q=q: a.tok.__setitem__('rw', a.one(f'ds_write_b128 v{vRW}, {V(ACC(r)+4*q,4)} offset:{1024*q}'))) for q in range(8)]
        def bar(a): a.wait(lg=a.tok['rw']); a('s_barrier')
        Rd = [(lambda a, q=q: a.tok.__setitem__(('rr', q), a.one(f'ds_read_b128 {V(TP+4*q,4)}, v{vRR} offset:{(q//2)*8192+(q%2)*256}'))) for q in range(8)]
        C = []
        def op(t): C.append(lambda a: a(t))
        def add8(d, x, y):
            if pk:
                for p in range(4): op(f'v_pk_add_f32 {V(d+2*p,2)}, {V(x+2*p,2)}, {V(y+2*p,2)}')
            else:
                for p in range(8): op(f'v_add_f32 v{d+p}, v{x+p}, v{y+p}')
        C.append(lambda a: a.wait(lg=a.tok['rr', 3])); add8(TP, TP, TP+8)
        if pk:
            for p in range(4): op(f'v_pk_add_f32 {V(TP+2*p,2)}, {V(TP+2*p,2)}, {V(vBS,2)} op_sel:[0,{p//2}] op_sel_hi:[1,{p//2}]')
        else:
            for p in range(8): op(f'v_add_f32 v{TP+p}, v{TP+p}, v{vBS+p//4}')
        C.append(lambda a: a.wait(lg=a.tok['rr', 7])); add8(TP+16, TP+16, TP+24); add8(TP, TP, TP+16)
        if pk:
            for p in range(4): op(f'v_pk_mul_f32 {V(TP+2*p,2)}, {V(TP+2*p,2)}, {V(ACC1+8*r+2*p,2)}')
        else:
            for p in range(8): op(f'v_mul_f32 v{TP+p}, v{TP+p}, v{ACC1+8*r+p}')
        for p in range(4): op(f'v_cvt_pk_bf16_f32 v{HP+p}, v{TP+2*p}, v{TP+2*p+1}')
        op(f'v_permlane16_swap_b32 v{HP}, v{HP+2}'); op(f'v_permlane16_swap_b32 v{HP+1}, v{HP+3}')
        op(f'buffer_store_dwordx4 {V(HP,4)}, v{vHS}, {srd(SWS)}, s{sHST+r} offen sc1')
        return W, bar, Rd, C
    PQR = [32, 36, 40, 44, 48, 52, 116, 120]
    def pq_load(a, i):
        a(f's_add_u32 s3, s{sPQL}, {i*16384}')
        a.tok['pq'] = a.one(f'buffer_load_dwordx4 {V(PQR[i],4)}, v{vPQG}, {srd(SWS)}, s3 offen sc1')
    for r in range(NP):
        a.cmt(f'P2 round {r}')
        sched = {}
        def at(g, f): sched.setdefault(g, []).append(f)
        if r > 0:
            W, bar, Rd, C = red_ops(r-1, False)
            for q, f in enumerate(W): at(4+2*q, f)
            at(24, bar)
            for q, f in enumerate(Rd): at(24+q, f)
            for q, f in enumerate(C): at(34+q//2, f)
        at(61, lambda a: (a.wait(lg=a.lg_n), a('s_barrier')))
        MX = 26 + r % 2
        for i in range(32):
            gi = r*32+i
            a.wait(vm=zt[gi])
            if i == 1: a(f'v_max_u32 v{MX}, v{RG(gi-1)}, v{RG(gi)}')
            elif i % 2: a(f'v_max3_u32 v{MX}, v{RG(gi-1)}, v{RG(gi)}, v{MX}')
            for tt in range(2):
                acc = V(ACC(r)+16*tt, 16)
                a(f'v_mfma_f32_32x32x16_bf16 {acc}, {V(RG(gi),4)}, {A(i*8+4*tt,4)}, {acc if i else 0}')
                if tt == 0:
                    nx = gi+D-1
                    if nx < G: zt[nx] = zload(a, nx, RG(nx))
                    elif NP == 2 and nx-G < 8: pq_load(a, nx-G)
                for f in sched.get(2*i+tt, []): f(a)
        a(f'v_cmp_eq_u32 vcc, -1, v{MX}\n s_cbranch_vccnz L_slow{P}{r}')
        a.label(f'L_ret{P}{r}')
        stamp(a, 11+r)
        def mk_slow(r=r, MX=MX):
            def f(s):
                s.label(f'L_slow{P}{r}')
                s(f's_cmp_gt_u32 s{sCNT}, {LIMIT}\n s_cbranch_scc1 L_ret{P}{r}\n s_add_u32 s{sCNT}, s{sCNT}, 1\n v_mov_b32 v{MX}, 0')
                for bb in range(4):
                    for q in range(8): zload(s, r*32+bb*8+q, TP+4*q)
                    s('s_waitcnt vmcnt(0)')
                    for q in range(4): s(f'v_max3_u32 v{MX}, v{TP+8*q}, v{TP+8*q+4}, v{MX}')
                    for q in range(8):
                        i = bb*8+q
                        for tt in range(2):
                            acc = V(ACC(r)+16*tt, 16)
                            s(f'v_mfma_f32_32x32x16_bf16 {acc}, {V(TP+4*q,4)}, {A(i*8+4*tt,4)}, {acc if i else 0}')
                s(f'v_cmp_eq_u32 vcc, -1, v{MX}\n s_cbranch_vccnz L_slow{P}{r}\n s_nop 7\n s_nop 7\n s_branch L_ret{P}{r}')
            return f
        slow.append(mk_slow())
    if NP == 2: stamp(a, 13)
    HF = 128; A3 = 32; XR = 48; YR = 56
    def hload(a, k):
        a(f's_add_u32 s3, s{sHB}, {KORD[k]*4096}')
        a.tok['h', k] = a.one(f'buffer_load_dwordx4 {V(HF+4*k,4)}, v{vL16}, {srd(SWS)}, s3 offen sc1')
    K0 = [0, 8, 16, 22]
    def st_issue(a, s, wo=True, h=True):
        for k in range(K0[s], K0[s+1]):
            if h: hload(a, k)
            if wo and k >= NEARLY: wo_issue(a, k)
    def xload(a):
        for m in range(4): a.tok['x'] = a.one(f'buffer_load_dwordx2 {V(XR+2*m,2)}, v{vX3}, {srd(SX)}, s{sX3} offen offset:{32*m}')
    W, bar, Rd, C = red_ops(NP-1, True)
    for f in W: f(a)
    if NP == 3: st_issue(a, 0)
    bar(a)
    for f in Rd: f(a)
    for f in C: f(a)
    stamp(a, 14)
    if NP == 3:
        xload(a); st_issue(a, 1); st_issue(a, 2, h=False)
    else:
        a.cmt('FFT')
        for s in range(3): st_issue(a, s, h=False)
        B1, B2, A1, TW, D1, A2 = 0, 24, 56, 192, 128, 80
        for q in range(6): a(f'ds_read_b128 {A(B1+4*q,4)}, v{vL16} offset:{1024*q}')
        for q in range(8): a(f'ds_read_b128 {A(B2+4*q,4)}, v{vL16} offset:{22528+1024*q}')
        a.wait(vm=a.tok['pq'])
        a.label('L_pq_chk')
        a(f'v_max_u32 v24, v{PQR[0]}, v{PQR[1]}')
        for q in range(1, 4): a(f'v_max3_u32 v24, v{PQR[2*q]}, v{PQR[2*q+1]}, v24')
        a('v_cmp_eq_u32 vcc, -1, v24\n s_cbranch_vccnz L_pq_retry')
        a.label('L_pq_ok')
        def pq_retry(s):
            s.label('L_pq_retry')
            s(f's_cmp_gt_u32 s{sCNT}, {LIMIT}\n s_cbranch_scc1 L_pq_ok\n s_add_u32 s{sCNT}, s{sCNT}, 1')
            for i in range(8): pq_load(s, i)
            s('s_waitcnt vmcnt(0)\n s_branch L_pq_chk')
        slow.append(pq_retry)
        a('s_barrier')
        for i in range(8): t = a.one(f'ds_write_b128 v{vPQW}, {V(PQR[i],4)} offset:{4096*i}')
        a.wait(lg=t)
        a('s_barrier')
        at1 = {}
        for tile in range(2):
            for ka in range(2):
                for pq in range(2):
                    for u in range(2):
                        at1[tile, ka] = a.one(f'ds_read_b64_tr_b16 {A(A1+((tile*2+ka)*2+pq)*4+2*u,2)}, v{vPQR} offset:{(16*ka+4*u)*1024+tile*512+pq*256}')
        twt = {}
        for tile in range(2):
            U = V(D1+32*tile, 16); Vv = V(D1+32*tile+16, 16)
            for ka in range(2):
                a.wait(lg=at1[tile, ka])
                Pf = A(A1+((tile*2+ka)*2)*4, 4); Qf = A(A1+((tile*2+ka)*2+1)*4, 4)
                cc, ss, ns = A(B1+4*ka, 4), A(B1+8+4*ka, 4), A(B1+16+4*ka, 4)
                for n, (acc, x, y) in enumerate(((U, Pf, cc), (Vv, Pf, ss), (U, Qf, ns), (Vv, Qf, cc))):
                    a(f'v_mfma_f32_32x32x16_bf16 {acc}, {x}, {y}, {acc if (ka or n > 1) else 0}')
                    q = (tile*2+ka)*4+n
                    twt[q] = a.one(f'ds_read_b128 {V(TW+4*q,4)}, v{vL16} offset:{6144+1024*q}')
        E, O = 32, 48
        for tile in range(2):
            a.wait(lg=twt[tile*8+7])
            U = D1+32*tile; Vv = U+16
            for j in range(4):
                tc = TW+((tile*4+j)*2)*4; ts = tc+4
                for p in range(2):
                    a(f'v_pk_mul_f32 {V(112+4*p,2)}, {V(Vv+4*j+2*p,2)}, {V(ts+2*p,2)}')
                    a(f'v_pk_mul_f32 {V(114+4*p,2)}, {V(Vv+4*j+2*p,2)}, {V(tc+2*p,2)}')
                for p in range(2):
                    a(f'v_pk_fma_f32 {V(Vv+4*j+2*p,2)}, {V(U+4*j+2*p,2)}, {V(ts+2*p,2)}, {V(114+4*p,2)}')
                    a(f'v_pk_fma_f32 {V(U+4*j+2*p,2)}, {V(U+4*j+2*p,2)}, {V(tc+2*p,2)}, {V(112+4*p,2)} neg_lo:[0,0,1] neg_hi:[0,0,1]')
                for pi in range(2):
                    for cp, X in enumerate((U, Vv)):
                        a(f'v_cvt_pk_bf16_f32 v{A2+((tile*2+pi)*2+cp)*4+j}, v{X+4*j+pi}, v{X+4*j+pi+2}')
            for cp in range(2):
                for pi in range(2):
                    acc = V(O if pi else E, 16); q = ((tile*2+pi)*2+cp)*4
                    a(f'v_mfma_f32_32x32x16_bf16 {acc}, {A(B2+q,4)}, {V(A2+q,4)}, {acc if (tile or cp) else 0}')
        for hf in range(2):
            for p in range(8):
                a(f'v_pk_add_f32 {V(D1+16*hf+2*p,2)}, {V(E+2*p,2)}, {V(O+2*p,2)}' + (' neg_lo:[0,1] neg_hi:[0,1]' if hf else ''))
            for p in range(8): a(f'v_cvt_pk_bf16_f32 v{64+8*hf+p}, v{D1+16*hf+2*p}, v{D1+16*hf+2*p+1}')
            for p in range(8): a(f'buffer_store_dword v{64+8*hf+p}, v{vYS}, {srd(SWS)}, s{sYST} offen offset:{(p//2)*512+(p%2)*128+hf*2048} sc1')
        xload(a); st_issue(a, 0, wo=False); st_issue(a, 1, wo=False)
    stamp(a, 15)
    def yloads(a):
        a(f's_mov_b32 s7, s{sYB}')
        for q in range(16):
            a.tok['y'] = a.one(f'buffer_load_short_d16_hi v{YR+q}, v{vY3}, {srd(SWS)}, s7 offen sc1')
            if q < 15: a(f's_add_u32 s7, s7, s{sY13 if q % 4 == 3 else sYS}')
    class Cur: base = 4
    def o_reads(k):
        pos = (k+4) % 22; ops = []
        if pos == 0: ops.append(lambda a: [a(f'v_subrev_u32 v{vOR+m}, 16384, v{vOR+m}') for m in range(4)])
        if pos == 20: ops.append(lambda a: [a(f'v_add_u32 v{vOR+m}, 65536, v{vOR+m}') for m in range(4)])
        base = 4 if k < 16 else (0 if pos < 4 else 16)
        AR = (0 if k < 8 else 128 if k < 16 else 0) + (k - (0 if k < 8 else 8 if k < 16 else 16))*16
        for m in range(4):
            for u in range(2):
                ops.append(lambda a, m=m, u=u: a.tok.__setitem__(('or', k), a.one(f'ds_read_b64_tr_b16 {A(AR+4*m+2*u,2)}, v{vOR+m} offset:{(pos-base)*4096+u*512}')))
        return ops
    def mf3(a, k, m):
        AR = (0 if k < 8 else 128 if k < 16 else 0) + (k - (0 if k < 8 else 8 if k < 16 else 16))*16
        a(f'v_mfma_f32_16x16x32_bf16 {V(A3+4*m,4)}, {A(AR+4*m,4)}, {V(HF+4*k,4)}, {V(A3+4*m,4)}')
    def hcheck(a, s, first_wait=True):
        ks = list(range(K0[s], K0[s+1]))
        a.wait(vm=a.tok['h', ks[-1]])
        a.label(f'L_h{P}{s}_chk')
        a(f'v_max_u32 v24, v{HF+4*ks[0]}, v{HF+4*ks[1]}')
        for q in range(1, len(ks)//2): a(f'v_max3_u32 v24, v{HF+4*ks[2*q]}, v{HF+4*ks[2*q+1]}, v24')
        a(f'v_cmp_eq_u32 vcc, -1, v24\n s_cbranch_vccnz L_h{P}{s}_retry')
        a.label(f'L_h{P}{s}_ok')
        def f(r):
            r.label(f'L_h{P}{s}_retry')
            r(f's_cmp_gt_u32 s{sCNT}, {LIMIT}\n s_cbranch_scc1 L_h{P}{s}_ok\n s_add_u32 s{sCNT}, s{sCNT}, 1')
            for k in ks: hload(r, k)
            r(f's_waitcnt vmcnt(0)\n s_branch L_h{P}{s}_chk')
        slow.append(f)
    def wo_bar(a, k):
        if k >= NEARLY and not a.tok.get(('wob', k)):
            a.wait(vm=a.tok['wo', k]); a('s_barrier')
            for kk in range(22):
                if ('wo', kk) in a.tok and a.tok['wo', kk] <= a.vm_done: a.tok['wob', kk] = True
    a.wait(vm=a.tok['x'])
    wo_bar(a, 7)
    for k in range(2):
        for f in o_reads(k): f(a)
    for m in range(4):
        for p in range(2):
            a(f'v_lshlrev_b32 v{A3+4*m+2*p}, 16, v{XR+2*m+p}\n v_and_b32 v{A3+4*m+2*p+1}, 0xffff0000, v{XR+2*m+p}')
    hcheck(a, 0)
    order2 = [18, 19, 20, 21, 16, 17]
    rdq = list(range(2, 16)) + order2
    for k in range(16):
        if k == 8: hcheck(a, 1)
        if k == cfg.get('h2pos', 12): st_issue(a, 2, wo=False); yloads(a)
        nk = rdq.pop(0)
        if nk == 8: wo_bar(a, 15)
        if nk == 18: wo_bar(a, 21)
        ops = o_reads(nk)
        a.wait(lg=a.tok['or', k])
        for m in range(4):
            mf3(a, k, m)
            for _ in range(2 if m else len(ops)-6): ops.pop(0)(a)
    for nk in rdq:
        for f in o_reads(nk): f(a)
    stamp(a, 16)
    a.wait(lg=a.lg_n)
    hcheck(a, 2)
    stamp(a, 17)
    for k in order2:
        for m in range(4): mf3(a, k, m)
    a.wait(vm=a.tok['y'])
    a.label(f'L_y{P}_chk')
    a(f'v_max_u32 v24, v{YR}, v{YR+1}')
    for q in range(1, 8): a(f'v_max3_u32 v24, v{YR+2*q}, v{YR+2*q+1}, v24')
    a(f'v_cmp_eq_u32 vcc, 0xffff0000, v24\n s_cbranch_vccnz L_y{P}_retry')
    a.label(f'L_y{P}_ok')
    def yr(r):
        r.label(f'L_y{P}_retry')
        r(f's_cmp_gt_u32 s{sCNT}, {LIMIT}\n s_cbranch_scc1 L_y{P}_ok\n s_add_u32 s{sCNT}, s{sCNT}, 1')
        yloads(r); r(f's_waitcnt vmcnt(0)\n s_branch L_y{P}_chk')
    slow.append(yr)
    for p in range(8): a(f'v_pk_add_f32 {V(A3+2*p,2)}, {V(A3+2*p,2)}, {V(YR+2*p,2)}')
    for p in range(8): a(f'v_cvt_pk_bf16_f32 v{72+p}, v{A3+2*p}, v{A3+2*p+1}')
    for io in range(2):
        a(f'v_permlane16_swap_b32 v{72+4*io}, v{74+4*io}\n v_permlane16_swap_b32 v{73+4*io}, v{75+4*io}')
        a(f'buffer_store_dwordx4 {V(72+4*io,4)}, v{vO3}, {srd(SOUT)}, s{sX3} offen offset:{64*io}')
    if stamps:
        stamp(a, 18)
        a.waitall(); stamp(a, 19)
        a(f'''s_waitcnt lgkmcnt(0)
        v_writelane_b32 v{vST}, s100, 19
        v_writelane_b32 v{vST}, s{sCNT}, 20
        s_lshl_b32 s3, s2, 2
        s_add_u32 s3, s3, s{sW}
        s_lshl_b32 s3, s3, 8
        s_add_u32 s3, s3, {STAMP}
        v_lshlrev_b32 v24, 2, v0
        buffer_store_dword v{vST}, v24, {srd(SWS)}, s3 offen''')
    if 'calib' in cfg:
        a(f'''v_readlane_b32 s4, v{vST}, 0
        v_readlane_b32 s5, v{vST}, {cfg['calib']}
        s_sub_u32 s5, s5, s4
        s_cmp_eq_u32 s2, 37
        s_cselect_b32 s5, s5, 0
        s_min_u32 s5, s5, 10000
        s_add_u32 s4, s4, s5
        s_add_u32 s4, s4, 6000''')
        a.label(f'L_cal{P}')
        a(f'''s_memrealtime s[6:7]
        s_waitcnt lgkmcnt(0)
        s_sub_u32 s6, s6, s4
        s_cmp_lt_i32 s6, 0
        s_cbranch_scc1 L_cal{P}''')
    a('s_endpgm')
```

```python
from asmlib import *
def tail(a, NP, env):
    globals().update({k: v for k, v in env.items() if not k.startswith('__') and k not in ('a', 'tail')})
    P = 'A' if NP == 3 else 'B'
    D = cfg.get('depth', 10); RING = 128
    if NP == 2:
        a.cmt('FFT constants -> LDS [0,30720)')
        a('s_barrier')
        a.bg_on = True
        a(f'''v_and_b32 v32, 31, v0
        v_cvt_f32_u32 v32, v32
        v_lshrrev_b32 v33, 5, v0
        s_lshl_b32 s3, s{sB}, 10
        v_add_u32 v36, s3, v{vL16}
        s_lshl_b32 s3, s{sW}, 12
        v_add_u32 v37, s3, v{vL16}
        s_lshl_b32 s3, s{sW}, 11
        v_add_u32 v38, s3, v{vL16}''')
        AR, CO, SI, PKD = 80, 88, 96, 104
        def args(kf, n0, steps):
            a(f'v_mul_f32 v34, {H(kf)}, v32\n {n0}\n v_cvt_f32_u32 v35, v35')
            for i, st in enumerate(steps):
                if st == 0: a(f'v_mul_f32 v{AR+i}, v35, v34')
                else: a(f'v_add_f32 v39, {H(float(st))}, v35\n v_mul_f32 v{AR+i}, v39, v34')
        args(1/32, f's_lshl_b32 s3, s{sB}, 4\n v_lshl_add_u32 v35, v33, 3, s3', range(8))
        for i in range(8): a(f'v_cos_f32 v{CO+i}, v{AR+i}')
        for i in range(8): a(f'v_sin_f32 v{SI+i}, v{AR+i}')
        for i in range(8): a(f'v_cvt_pk_bf16_f32 v{PKD+i}, v{CO+2*i}, v{CO+2*i+1}')
        for i in range(4): a(f'v_xor_b32 v{PKD+8+i}, 0x80008000, v{PKD+4+i}')
        for q in range(3): a(f'ds_write_b128 v36, {V(PKD+4*q,4)} offset:{2048*q}')
        args(1/2048, f's_lshl_b32 s3, s{sW}, 4\n v_lshl_add_u32 v35, v33, 2, s3', [0,1,2,3,8,9,10,11])
        for i in range(8): a(f'v_cos_f32 v{CO+i}, v{AR+i}')
        for i in range(8): a(f'v_sin_f32 v{SI+i}, v{AR+i}')
        for j in range(2):
            a(f'ds_write_b128 v37, {V(CO+4*j,4)} offset:{6144+j*2048}\n ds_write_b128 v37, {V(SI+4*j,4)} offset:{6144+j*2048+1024}')
        args(1/64, f's_lshl_b32 s3, s{sA}, 5\n s_add_u32 s3, s3, s{sB}\n v_lshl_add_u32 v35, v33, 2, s3', [0,2,8,10,16,18,24,26])
        for i in range(8): a(f'v_cos_f32 v{40+i}, v{AR+i}')
        for i in range(8): a(f'v_sin_f32_e64 v{48+i}, -v{AR+i}')
        for i in range(8): a(f'v_cvt_pk_bf16_f32 v{116+i}, v{40+2*i}, v{41+2*i}')
        for q in range(2): a(f'ds_write_b128 v38, {V(116+4*q,4)} offset:{22528+1024*q}')
        a.bg_on = False
    a.bg_flush()
    for k in range(NEARLY): wo_issue(a, k)
    vX3, vO3, vY3 = vWG, vWG+1, vWG+2; vOR = vSG; vPQG, vPQW = vWR, vWR+1; vPQR, vYS = vZS, vSTA
    sX3, sHB, sYB, sYS, sY13, sPQL = sWO, sWO+1, sWO+2, sWO+3, sWO+4, sWO+5
    a(f'''v_and_b32 v24, 12, v0
    v_and_b32 v25, 15, v0
    v_add_u32 v24, v24, v25
    s_lshl_b32 s3, s{sA}, 5
    s_lshl_b32 s7, s{sB}, 2
    s_add_u32 s3, s3, s7
    v_add_u32 v24, s3, v24
    v_lshrrev_b32 v25, 4, v0
    v_lshlrev_b32 v26, 10, v24
    v_lshl_add_u32 v{vX3}, v25, 3, v26
    v_and_b32 v27, 1, v25
    v_lshl_add_u32 v26, v27, 5, v26
    v_lshrrev_b32 v30, 1, v25
    v_lshl_add_u32 v{vO3}, v30, 4, v26
    s_lshl_b32 s{sX3}, s{sR}, 16
    s_add_u32 s{sX3}, s{sX3}, s{sT+2}
    s_mul_i32 s{sHB}, s{sR}, 90112
    s_lshl_b32 s3, s{sW}, 10
    s_add_u32 s{sHB}, s{sHB}, s3
    s_add_u32 s{sHB}, s{sHB}, {HH}
    s_lshl_b32 s3, s{sG}, 6
    s_sub_u32 s7, 500, s3
    s_cmp_ge_u32 s{sG}, 4
    s_cselect_b32 s3, s7, s3
    s_cselect_b32 s7, -1, 0
    s_cselect_b32 s{sYS}, 0xfffff000, 0x1000
    s_lshl_b32 s3, s3, 12
    s_add_u32 s{sYB}, s3, {YY}
    s_mul_i32 s{sY13}, s{sYS}, 13
    s_lshl_b32 s3, s{sR}, 6
    v_add_u32 v24, s3, v24
    v_xor_b32 v24, s7, v24
    v_subrev_u32 v24, s7, v24
    v_and_b32 v24, 0x7ff, v24
    v_xor_b32 v26, s7, v25
    v_and_b32 v26, 3, v26
    v_lshlrev_b32 v26, 14, v26
    v_lshrrev_b32 v30, 6, v24
    v_lshl_add_u32 v26, v30, 7, v26
    v_and_b32 v30, 31, v24
    v_lshl_add_u32 v26, v30, 2, v26
    v_bfe_u32 v30, v24, 5, 1
    v_lshl_add_u32 v{vY3}, v30, 1, v26
    v_bfe_u32 v24, v0, 2, 2
    v_lshl_add_u32 v26, v25, 3, v24
    v_lshlrev_b32 v26, 7, v26
    v_lshrrev_b32 v30, 1, v24
    v_lshl_add_u32 v30, v27, 1, v30
    v_lshl_add_u32 v26, v30, 5, v26
    v_and_b32 v30, 3, v0
    v_lshl_add_u32 v26, v30, 3, v26
    v_add_u32 v{vOR}, {L_WO+16384}, v26
    v_xor_b32 v{vOR+1}, 32, v{vOR}
    v_xor_b32 v{vOR+2}, 64, v{vOR}
    v_xor_b32 v{vOR+3}, 0x60, v{vOR}'''.replace('s_cselect_b32 s%d, 0xfffff000, 0x1000' % sYS, f's_xor_b32 s{sYS}, s7, 0x1000\n s_sub_u32 s{sYS}, s{sYS}, s7'))
    if NP == 2:
        a(f'''s_and_b32 s3, s{sR}, 3
        s_lshl_b32 s3, s3, 6
        v_xor_b32 v26, s{sW}, v30
        v_lshl_add_u32 v26, v26, 4, s3
        v_lshrrev_b32 v32, 2, v0
        v_lshl_add_u32 v{vPQG}, v32, 8, v26
        s_sub_u32 s3, s{sG}, 6
        s_lshl_b32 s3, s3, 3
        s_lshr_b32 s7, s{sR}, 2
        s_add_u32 s3, s3, s7
        s_lshl_b32 s3, s3, 17
        s_lshl_b32 s7, s{sW}, 12
        s_add_u32 s3, s3, s7
        s_add_u32 s{sPQL}, s3, {PQ}
        s_lshl_b32 s3, s{sW}, 10
        s_add_u32 s3, s3, {L_RED}
        v_add_u32 v{vPQW}, s3, v{vL16}
        v_lshrrev_b32 v32, 5, v0
        v_lshl_add_u32 v26, v32, 3, v24
        v_lshlrev_b32 v26, 10, v26
        v_lshrrev_b32 v33, 1, v30
        v_lshl_add_u32 v33, v27, 1, v33
        v_lshl_add_u32 v26, v33, 6, v26
        v_xor_b32 v33, s{sW}, v24
        v_lshl_add_u32 v26, v33, 4, v26
        v_and_b32 v33, 1, v30
        v_lshl_add_u32 v26, v33, 3, v26
        v_add_u32 v{vPQR}, {L_RED}, v26
        v_and_b32 v33, 31, v0
        v_lshlrev_b32 v33, 2, v33
        v_lshl_add_u32 v{vYS}, v32, 8, v33''')
    stamp(a, 9)
    a.label(f'L_pr{P}')
    a(f'buffer_load_dword v24, v{vPR}, {srd(SWS)}, s{sT+1} offen sc1')
    a.waitall(lg=False)
    a(f'''v_cmp_eq_u32 vcc, -1, v24
    s_cbranch_vccz L_prok{P}
    s_add_u32 s{sCNT}, s{sCNT}, 1
    s_cmp_gt_u32 s{sCNT}, {LIMIT}
    s_cbranch_scc0 L_pr{P}''')
    a.label(f'L_prok{P}')
    stamp(a, 10)
    G = 32*NP; zt = {}
    ACC = lambda r: 224 if (NP-1-r) % 2 == 0 else 192
    def zload(a, gi, reg):
        r, i = divmod(gi, 32)
        return a.one(f'buffer_load_dwordx4 {V(reg,4)}, v{vZ[r]}, {srd(SWS)}, s{sZO+i//4} offen offset:{(i%4)*1024} sc1')
    RG = lambda gi: RING + (gi % D)*4
    for gi in range(D-1): zt[gi] = zload(a, gi, RG(gi))
    a.wait(lg=a.lg_n)
    TP = 80; HP = 112
    def red_ops(r, pk):
        W = [(lambda a, q=q: a.tok.__setitem__('rw', a.one(f'ds_write_b128 v{vRW}, {V(ACC(r)+4*q,4)} offset:{1024*q}'))) for q in range(8)]
        def bar(a): a.wait(lg=a.tok['rw']); a('s_barrier')
        Rd = [(lambda a, q=q: a.tok.__setitem__(('rr', q), a.one(f'ds_read_b128 {V(TP+4*q,4)}, v{vRR} offset:{(q//2)*8192+(q%2)*256}'))) for q in range(8)]
        C = []
        def op(t): C.append(lambda a: a(t))
        def add8(d, x, y):
            if pk:
                for p in range(4): op(f'v_pk_add_f32 {V(d+2*p,2)}, {V(x+2*p,2)}, {V(y+2*p,2)}')
            else:
                for p in range(8): op(f'v_add_f32 v{d+p}, v{x+p}, v{y+p}')
        C.append(lambda a: a.wait(lg=a.tok['rr', 3])); add8(TP, TP, TP+8)
        if pk:
            for p in range(4): op(f'v_pk_add_f32 {V(TP+2*p,2)}, {V(TP+2*p,2)}, {V(vBS,2)} op_sel:[0,{p//2}] op_sel_hi:[1,{p//2}]')
        else:
            for p in range(8): op(f'v_add_f32 v{TP+p}, v{TP+p}, v{vBS+p//4}')
        C.append(lambda a: a.wait(lg=a.tok['rr', 7])); add8(TP+16, TP+16, TP+24); add8(TP, TP, TP+16)
        if pk:
            for p in range(4): op(f'v_pk_mul_f32 {V(TP+2*p,2)}, {V(TP+2*p,2)}, {V(ACC1+8*r+2*p,2)}')
        else:
            for p in range(8): op(f'v_mul_f32 v{TP+p}, v{TP+p}, v{ACC1+8*r+p}')
        for p in range(4): op(f'v_cvt_pk_bf16_f32 v{HP+p}, v{TP+2*p}, v{TP+2*p+1}')
        op(f'v_permlane16_swap_b32 v{HP}, v{HP+2}'); op(f'v_permlane16_swap_b32 v{HP+1}, v{HP+3}')
        op(f'buffer_store_dwordx4 {V(HP,4)}, v{vHS}, {srd(SWS)}, s{sHST+r} offen sc1')
        return W, bar, Rd, C
    PQR = [32, 36, 40, 44, 48, 52, 116, 120]
    def pq_load(a, i):
        a(f's_add_u32 s3, s{sPQL}, {i*16384}')
        a.tok['pq'] = a.one(f'buffer_load_dwordx4 {V(PQR[i],4)}, v{vPQG}, {srd(SWS)}, s3 offen sc1')
    for r in range(NP):
        a.cmt(f'P2 round {r}')
        sched = {}
        def at(g, f): sched.setdefault(g, []).append(f)
        if r > 0:
            W, bar, Rd, C = red_ops(r-1, False)
            for q, f in enumerate(W): at(4+2*q, f)
            at(24, bar)
            for q, f in enumerate(Rd): at(24+q, f)
            for q, f in enumerate(C): at(34+q//2, f)
        at(61, lambda a: (a.wait(lg=a.lg_n), a('s_barrier')))
        MX = 26 + r % 2
        for i in range(32):
            gi = r*32+i
            a.wait(vm=zt[gi])
            if i == 1: a(f'v_max_u32 v{MX}, v{RG(gi-1)}, v{RG(gi)}')
            elif i % 2: a(f'v_max3_u32 v{MX}, v{RG(gi-1)}, v{RG(gi)}, v{MX}')
            for tt in range(2):
                acc = V(ACC(r)+16*tt, 16)
                a(f'v_mfma_f32_32x32x16_bf16 {acc}, {V(RG(gi),4)}, {A(i*8+4*tt,4)}, {acc if i else 0}')
                if tt == 0:
                    nx = gi+D-1
                    if nx < G: zt[nx] = zload(a, nx, RG(nx))
                    elif NP == 2 and nx-G < 8: pq_load(a, nx-G)
                for f in sched.get(2*i+tt, []): f(a)
        a(f'v_cmp_eq_u32 vcc, -1, v{MX}\n s_cbranch_vccnz L_slow{P}{r}')
        a.label(f'L_ret{P}{r}')
        stamp(a, 11+r)
        def mk_slow(r=r, MX=MX):
            def f(s):
                s.label(f'L_slow{P}{r}')
                s(f's_cmp_gt_u32 s{sCNT}, {LIMIT}\n s_cbranch_scc1 L_ret{P}{r}\n s_add_u32 s{sCNT}, s{sCNT}, 1\n v_mov_b32 v{MX}, 0')
                for bb in range(4):
                    for q in range(8): zload(s, r*32+bb*8+q, TP+4*q)
                    s('s_waitcnt vmcnt(0)')
                    for q in range(4): s(f'v_max3_u32 v{MX}, v{TP+8*q}, v{TP+8*q+4}, v{MX}')
                    for q in range(8):
                        i = bb*8+q
                        for tt in range(2):
                            acc = V(ACC(r)+16*tt, 16)
                            s(f'v_mfma_f32_32x32x16_bf16 {acc}, {V(TP+4*q,4)}, {A(i*8+4*tt,4)}, {acc if i else 0}')
                s(f'v_cmp_eq_u32 vcc, -1, v{MX}\n s_cbranch_vccnz L_slow{P}{r}\n s_nop 7\n s_nop 7\n s_branch L_ret{P}{r}')
            return f
        slow.append(mk_slow())
    if NP == 2: stamp(a, 13)
    HF = 128; A3 = 32; XR = 48; YR = 56
    def hload(a, k):
        a(f's_add_u32 s3, s{sHB}, {KORD[k]*4096}')
        a.tok['h', k] = a.one(f'buffer_load_dwordx4 {V(HF+4*k,4)}, v{vL16}, {srd(SWS)}, s3 offen sc1')
    K0 = [0, 8, 16, 22]
    def st_issue(a, s, wo=True, h=True):
        for k in range(K0[s], K0[s+1]):
            if h: hload(a, k)
            if wo and k >= NEARLY: wo_issue(a, k)
    def xload(a):
        for m in range(4): a.tok['x'] = a.one(f'buffer_load_dwordx2 {V(XR+2*m,2)}, v{vX3}, {srd(SX)}, s{sX3} offen offset:{32*m}')
    W, bar, Rd, C = red_ops(NP-1, True)
    for f in W: f(a)
    if NP == 3: st_issue(a, 0)
    bar(a)
    for f in Rd: f(a)
    for f in C: f(a)
    stamp(a, 14)
    if NP == 3:
        xload(a); st_issue(a, 1); st_issue(a, 2, h=False)
    else:
        a.cmt('FFT')
        for s in range(3): st_issue(a, s, h=False)
        B1, B2, A1, TW, D1, A2 = 0, 24, 56, 192, 128, 80
        for q in range(6): a(f'ds_read_b128 {A(B1+4*q,4)}, v{vL16} offset:{1024*q}')
        for q in range(8): a(f'ds_read_b128 {A(B2+4*q,4)}, v{vL16} offset:{22528+1024*q}')
        a.wait(vm=a.tok['pq'])
        a.label('L_pq_chk')
        a(f'v_max_u32 v24, v{PQR[0]}, v{PQR[1]}')
        for q in range(1, 4): a(f'v_max3_u32 v24, v{PQR[2*q]}, v{PQR[2*q+1]}, v24')
        a('v_cmp_eq_u32 vcc, -1, v24\n s_cbranch_vccnz L_pq_retry')
        a.label('L_pq_ok')
        def pq_retry(s):
            s.label('L_pq_retry')
            s(f's_cmp_gt_u32 s{sCNT}, {LIMIT}\n s_cbranch_scc1 L_pq_ok\n s_add_u32 s{sCNT}, s{sCNT}, 1')
            for i in range(8): pq_load(s, i)
            s('s_waitcnt vmcnt(0)\n s_branch L_pq_chk')
        slow.append(pq_retry)
        a('s_barrier')
        for i in range(8): t = a.one(f'ds_write_b128 v{vPQW}, {V(PQR[i],4)} offset:{4096*i}')
        a.wait(lg=t)
        a('s_barrier')
        at1 = {}
        for tile in range(2):
            for ka in range(2):
                for pq in range(2):
                    for u in range(2):
                        at1[tile, ka] = a.one(f'ds_read_b64_tr_b16 {A(A1+((tile*2+ka)*2+pq)*4+2*u,2)}, v{vPQR} offset:{(16*ka+4*u)*1024+tile*512+pq*256}')
        twt = {}
        for tile in range(2):
            U = V(D1+32*tile, 16); Vv = V(D1+32*tile+16, 16)
            for ka in range(2):
                a.wait(lg=at1[tile, ka])
                Pf = A(A1+((tile*2+ka)*2)*4, 4); Qf = A(A1+((tile*2+ka)*2+1)*4, 4)
                cc, ss, ns = A(B1+4*ka, 4), A(B1+8+4*ka, 4), A(B1+16+4*ka, 4)
                for n, (acc, x, y) in enumerate(((U, Pf, cc), (Vv, Pf, ss), (U, Qf, ns), (Vv, Qf, cc))):
                    a(f'v_mfma_f32_32x32x16_bf16 {acc}, {x}, {y}, {acc if (ka or n > 1) else 0}')
                    q = (tile*2+ka)*4+n
                    twt[q] = a.one(f'ds_read_b128 {V(TW+4*q,4)}, v{vL16} offset:{6144+1024*q}')
        E, O = 32, 48
        for tile in range(2):
            a.wait(lg=twt[tile*8+7])
            U = D1+32*tile; Vv = U+16
            for j in range(4):
                tc = TW+((tile*4+j)*2)*4; ts = tc+4
                for p in range(2):
                    a(f'v_pk_mul_f32 {V(112+4*p,2)}, {V(Vv+4*j+2*p,2)}, {V(ts+2*p,2)}')
                    a(f'v_pk_mul_f32 {V(114+4*p,2)}, {V(Vv+4*j+2*p,2)}, {V(tc+2*p,2)}')
                for p in range(2):
                    a(f'v_pk_fma_f32 {V(Vv+4*j+2*p,2)}, {V(U+4*j+2*p,2)}, {V(ts+2*p,2)}, {V(114+4*p,2)}')
                    a(f'v_pk_fma_f32 {V(U+4*j+2*p,2)}, {V(U+4*j+2*p,2)}, {V(tc+2*p,2)}, {V(112+4*p,2)} neg_lo:[0,0,1] neg_hi:[0,0,1]')
                for pi in range(2):
                    for cp, X in enumerate((U, Vv)):
                        a(f'v_cvt_pk_bf16_f32 v{A2+((tile*2+pi)*2+cp)*4+j}, v{X+4*j+pi}, v{X+4*j+pi+2}')
            for cp in range(2):
                for pi in range(2):
                    acc = V(O if pi else E, 16); q = ((tile*2+pi)*2+cp)*4
                    a(f'v_mfma_f32_32x32x16_bf16 {acc}, {A(B2+q,4)}, {V(A2+q,4)}, {acc if (tile or cp) else 0}')
        for hf in range(2):
            for p in range(8):
                a(f'v_pk_add_f32 {V(D1+16*hf+2*p,2)}, {V(E+2*p,2)}, {V(O+2*p,2)}' + (' neg_lo:[0,1] neg_hi:[0,1]' if hf else ''))
            for p in range(8): a(f'v_cvt_pk_bf16_f32 v{64+8*hf+p}, v{D1+16*hf+2*p}, v{D1+16*hf+2*p+1}')
            for p in range(8): a(f'buffer_store_dword v{64+8*hf+p}, v{vYS}, {srd(SWS)}, s{sYST} offen offset:{(p//2)*512+(p%2)*128+hf*2048} sc1')
        xload(a); st_issue(a, 0, wo=False); st_issue(a, 1, wo=False)
    stamp(a, 15)
    def yloads(a):
        a(f's_mov_b32 s7, s{sYB}')
        for q in range(16):
            a.tok['y'] = a.one(f'buffer_load_short_d16_hi v{YR+q}, v{vY3}, {srd(SWS)}, s7 offen sc1')
            if q < 15: a(f's_add_u32 s7, s7, s{sY13 if q % 4 == 3 else sYS}')
    class Cur: base = 4
    def o_reads(k):
        pos = (k+4) % 22; ops = []
        if pos == 0: ops.append(lambda a: [a(f'v_subrev_u32 v{vOR+m}, 16384, v{vOR+m}') for m in range(4)])
        if pos == 20: ops.append(lambda a: [a(f'v_add_u32 v{vOR+m}, 65536, v{vOR+m}') for m in range(4)])
        base = 4 if k < 16 else (0 if pos < 4 else 16)
        AR = (0 if k < 8 else 128 if k < 16 else 0) + (k - (0 if k < 8 else 8 if k < 16 else 16))*16
        for m in range(4):
            for u in range(2):
                ops.append(lambda a, m=m, u=u: a.tok.__setitem__(('or', k), a.one(f'ds_read_b64_tr_b16 {A(AR+4*m+2*u,2)}, v{vOR+m} offset:{(pos-base)*4096+u*512}')))
        return ops
    def mf3(a, k, m):
        AR = (0 if k < 8 else 128 if k < 16 else 0) + (k - (0 if k < 8 else 8 if k < 16 else 16))*16
        a(f'v_mfma_f32_16x16x32_bf16 {V(A3+4*m,4)}, {A(AR+4*m,4)}, {V(HF+4*k,4)}, {V(A3+4*m,4)}')
    def hcheck(a, s, first_wait=True):
        ks = list(range(K0[s], K0[s+1]))
        a.wait(vm=a.tok['h', ks[-1]])
        a.label(f'L_h{P}{s}_chk')
        a(f'v_max_u32 v24, v{HF+4*ks[0]}, v{HF+4*ks[1]}')
        for q in range(1, len(ks)//2): a(f'v_max3_u32 v24, v{HF+4*ks[2*q]}, v{HF+4*ks[2*q+1]}, v24')
        a(f'v_cmp_eq_u32 vcc, -1, v24\n s_cbranch_vccnz L_h{P}{s}_retry')
        a.label(f'L_h{P}{s}_ok')
        def f(r):
            r.label(f'L_h{P}{s}_retry')
            r(f's_cmp_gt_u32 s{sCNT}, {LIMIT}\n s_cbranch_scc1 L_h{P}{s}_ok\n s_add_u32 s{sCNT}, s{sCNT}, 1')
            for k in ks: hload(r, k)
            r(f's_waitcnt vmcnt(0)\n s_branch L_h{P}{s}_chk')
        slow.append(f)
    def wo_bar(a, k):
        if k >= NEARLY and not a.tok.get(('wob', k)):
            a.wait(vm=a.tok['wo', k]); a('s_barrier')
            for kk in range(22):
                if ('wo', kk) in a.tok and a.tok['wo', kk] <= a.vm_done: a.tok['wob', kk] = True
    a.wait(vm=a.tok['x'])
    wo_bar(a, 7)
    for k in range(2):
        for f in o_reads(k): f(a)
    for m in range(4):
        for p in range(2):
            a(f'v_lshlrev_b32 v{A3+4*m+2*p}, 16, v{XR+2*m+p}\n v_and_b32 v{A3+4*m+2*p+1}, 0xffff0000, v{XR+2*m+p}')
    hcheck(a, 0)
    order2 = [18, 19, 20, 21, 16, 17]
    rdq = list(range(2, 16)) + order2
    for k in range(16):
        if k == 8: hcheck(a, 1)
        if k == cfg.get('h2pos', 12): st_issue(a, 2, wo=False); yloads(a)
        nk = rdq.pop(0)
        if nk == 8: wo_bar(a, 15)
        if nk == 18: wo_bar(a, 21)
        ops = o_reads(nk)
        a.wait(lg=a.tok['or', k])
        for m in range(4):
            mf3(a, k, m)
            for _ in range(2 if m else len(ops)-6): ops.pop(0)(a)
    for nk in rdq:
        for f in o_reads(nk): f(a)
    stamp(a, 16)
    a.wait(lg=a.lg_n)
    hcheck(a, 2)
    stamp(a, 17)
    for k in order2:
        for m in range(4): mf3(a, k, m)
    a.wait(vm=a.tok['y'])
    a.label(f'L_y{P}_chk')
    a(f'v_max_u32 v24, v{YR}, v{YR+1}')
    for q in range(1, 8): a(f'v_max3_u32 v24, v{YR+2*q}, v{YR+2*q+1}, v24')
    a(f'v_cmp_eq_u32 vcc, 0xffff0000, v24\n s_cbranch_vccnz L_y{P}_retry')
    a.label(f'L_y{P}_ok')
    def yr(r):
        r.label(f'L_y{P}_retry')
        r(f's_cmp_gt_u32 s{sCNT}, {LIMIT}\n s_cbranch_scc1 L_y{P}_ok\n s_add_u32 s{sCNT}, s{sCNT}, 1')
        yloads(r); r(f's_waitcnt vmcnt(0)\n s_branch L_y{P}_chk')
    slow.append(yr)
    for p in range(8): a(f'v_pk_add_f32 {V(A3+2*p,2)}, {V(A3+2*p,2)}, {V(YR+2*p,2)}')
    for p in range(8): a(f'v_cvt_pk_bf16_f32 v{72+p}, v{A3+2*p}, v{A3+2*p+1}')
    for io in range(2):
        a(f'v_permlane16_swap_b32 v{72+4*io}, v{74+4*io}\n v_permlane16_swap_b32 v{73+4*io}, v{75+4*io}')
        a(f'buffer_store_dwordx4 {V(72+4*io,4)}, v{vO3}, {srd(SOUT)}, s{sX3} offen offset:{64*io}')
    if stamps:
        stamp(a, 18)
        a.waitall(); stamp(a, 19)
        a(f'''s_waitcnt lgkmcnt(0)
        v_writelane_b32 v{vST}, s100, 19
        v_writelane_b32 v{vST}, s{sCNT}, 20
        s_lshl_b32 s3, s2, 2
        s_add_u32 s3, s3, s{sW}
        s_lshl_b32 s3, s3, 8
        s_add_u32 s3, s3, {STAMP}
        v_lshlrev_b32 v24, 2, v0
        buffer_store_dword v{vST}, v24, {srd(SWS)}, s3 offen''')
    if 'calib' in cfg:
        cw = cfg.get('calwg', -1)
        a(f'''v_readlane_b32 s4, v{vST}, {cfg['calib']}
        s_add_u32 s4, s4, 6000''')
        if cw >= 0: a(f's_cmp_eq_u32 s2, {cw}\n s_cbranch_scc0 L_end')
        a.label(f'L_cal{P}')
        a(f'''s_memrealtime s[6:7]
        s_waitcnt lgkmcnt(0)
        s_sub_u32 s6, s6, s4
        s_cmp_lt_i32 s6, 0
        s_cbranch_scc1 L_cal{P}''')
    a('s_endpgm')
```

```python
import sys, math, struct
from asmlib import *
KN = "parallel_sum__spectral_fnet__mixer_gmlp__prompt_kernel"
def f2u(x): return struct.unpack('<I', struct.pack('<f', x))[0]
def H(x): return hex(f2u(x))
Z2 = 0; HH = 0x2C0000; PQ = 0x580000; YY = 0x780000; ST = 0x881000; STAMP = 0x1000000
OOB = 0x40000000
L_STG = 32768; L_WO = 65536; L_RING = 81920; L_MISC = 155648; L_RED = 32768
NSLOT = 6
SX, SWIN, SWSP, SWOUT, SWS, SOUT, SDBG, SBSP = 8, 12, 16, 20, 24, 28, 32, 36
sR, sG, sW, sA, sB, sP0, sNP, sROT = 40, 41, 42, 43, 44, 45, 46, 47
sXO = 48; sZO = 48; sWO = 56; sSP = 64
sGC = 72; sONE = 74; sLO = 75; sHI = 76; sZST = 77; sHST = 80; sPQST = 83; sSTST = 84; sSTLD = 85
sVAL = 86; sM0W = 88; sM0S = 89; sM0O = 90; sCNT = 91; sMA = 92; sMC = 94; sT = 96
vL16 = 1; vXG = 2; vXW = 4; vXR = 6; vWG = 8; vWR = 11; vSG = 13; vSR = 17; vZS = 21; vHS = 22; vSTA = 23
vTMP = 24; ACC2 = 32; ACC1 = 56; WB = 80; XF = 128; XRAW = 192
LIMIT = 40000
STAGES = [[0,3,6,9,12,15,18,20],[1,4,7,10,13,16,19,21],[2,5,8,11,14,17]]
KORD = STAGES[0]+STAGES[1]+STAGES[2]
def srd(r): return S(r, 4)

def gen(cfg):
    a = Asm()
    stamps = cfg.get('stamps', False)
    vST = 31
    class St: n = 0
    SETS = {0: list(range(20)),
            1: [0,'ka','xi','w2','su','w6','cl','ad',1,'x0','x1',2,'g0','g2','g4','g6',3,4,18,19]}
    SET = SETS[cfg.get('set', 0)]
    def stamp(a, k):
        if not stamps or k not in SET: return
        k = SET.index(k)
        b = a.in_bg; a.in_bg = True
        if k > 0:
            if cfg.get('set', 0): a.raw('    s_waitcnt lgkmcnt(0)'); a.lg_done = a.lg_n
            a(f'v_writelane_b32 v{vST}, s100, {k-1}')
        a('s_memtime s[100:101]' if stamps == 2 else 's_memrealtime s[100:101]')
        a.in_bg = b
    def retry(a, back, out):
        a(f's_add_u32 s{sCNT}, s{sCNT}, 1\n s_cmp_gt_u32 s{sCNT}, {LIMIT}\n s_cbranch_scc1 {out}\n s_branch {back}')
    a('s_cmp_ge_u32 s2, 256\n s_cbranch_scc1 L_end')
    for r, off in ((SX,0),(SWIN,48),(SWS,96),(SWSP,56),(SWOUT,72),(SDBG,88),(SBSP,64),(SOUT,80)):
        a(f's_load_dwordx2 {S(r,2)}, s[0:1], {off}')
    stamp(a, 0)
    a(f'''s_getpc_b64 s[4:5]
    s_and_b32 s4, s4, 0xffffff00
    s_lshr_b32 s3, s2, 3
    s_and_b32 s6, s3, 15
    s_lshl_b32 s6, s6, 12
    v_lshl_add_u32 v24, v0, 4, s6
    v_min_u32 v24, L_codeend-{KN}-16, v24
    global_load_dwordx4 v[124:127], v24, s[4:5]
    v_lshrrev_b32 v25, 6, v0
    v_and_b32 v0, 63, v0
    v_readfirstlane_b32 s{sW}, v25
    v_lshlrev_b32 v{vL16}, 4, v0''')
    if cfg.get('map', 'row') == 'row':
        a(f'''s_and_b32 s{sR}, s2, 7
        s_lshl_b32 s{sR}, s{sR}, 2
        s_and_b32 s6, s3, 3
        s_add_u32 s{sR}, s{sR}, s6
        s_lshr_b32 s{sG}, s2, 5
        s_lshl_b32 s6, s6, 1
        s_add_u32 s{sROT}, s{sG}, s6''')
    else:
        a(f'''s_and_b32 s{sR}, s2, 3
        s_lshl_b32 s{sR}, s{sR}, 3
        s_and_b32 s6, s3, 7
        s_add_u32 s{sR}, s{sR}, s6
        s_lshr_b32 s7, s3, 3
        s_and_b32 s{sG}, s2, 4
        s_add_u32 s{sG}, s{sG}, s7
        s_lshl_b32 s7, s7, 1
        s_add_u32 s{sROT}, s7, s6''')
    a(f'''s_lshr_b32 s{sA}, s{sW}, 1
    s_and_b32 s{sB}, s{sW}, 1
    s_mul_i32 s{sP0}, s{sG}, 3
    s_min_u32 s{sP0}, s{sP0}, 20
    s_cmp_ge_u32 s{sG}, 6
    s_cselect_b32 s{sNP}, 2, 3
    s_mov_b32 s{SX+2}, 2097152
    s_mov_b32 s{SX+3}, 0x00020000
    s_mov_b32 s{SWIN+2}, 1409024
    s_mov_b32 s{SWIN+3}, 0x00020000''')
    a(f'''v_lshrrev_b32 v24, 3, v0
    v_and_b32 v25, 7, v0
    s_lshl_b32 s3, s{sA}, 5
    s_lshl_b32 s6, s{sB}, 2
    s_add_u32 s3, s3, s6
    s_and_b32 s6, s{sG}, 1
    s_lshl_b32 s7, s6, 4
    s_add_u32 s3, s3, s7
    v_and_b32 v26, 4, v24
    v_add_u32 v26, v26, v24
    v_add_u32 v27, s3, v26
    v_lshlrev_b32 v27, 10, v27
    v_lshl_add_u32 v{vXG}, v25, 4, v27
    v_xor_b32 v{vXG+1}, 0x4000, v{vXG}
    s_lshl_b32 s3, s{sR}, 16
    s_lshl_b32 s7, s{sP0}, 6''')
    for i in range(8):
        a(f'''s_add_u32 s{sT}, s{sROT}, {i}
        s_and_b32 s{sT}, s{sT}, 7
        s_mul_i32 s{sWO+i}, s{sT}, 176128
        s_lshl_b32 s{sSP+i}, s{sT}, 7
        s_add_u32 s{sWO+i}, s{sWO+i}, s7
        s_add_u32 s{sXO+i}, s{sSP+i}, s3''')
    a(f's_mul_i32 s3, s{sW}, {16*2752}\n s_add_u32 s3, s3, 1376\n s_movk_i32 s7, 2752')
    for p in range(3):
        a(f'''v_add_u32 v28, {64*p}, v0
        v_mul_u32_u24 v29, 171, v28
        v_lshrrev_b32 v29, 11, v29
        v_mul_u32_u24 v30, 12, v29
        v_sub_u32 v28, v28, v30
        v_lshrrev_b32 v30, 2, v29
        v_and_b32 v30, 2, v30
        v_xor_b32 v28, v28, v30
        v_lshl_add_u32 v28, v28, 4, s3
        v_mad_u32_u24 v{vWG+p}, v29, s7, v28'''.replace('v28','v32').replace('v29','v33').replace('v30','v34'))
        if p: a(f'v_subrev_u32 v{vWG+p}, {1024*p}, v{vWG+p}')
    a(f'''s_mul_i32 s{sM0W}, s{sW}, 3072
    s_add_u32 s{sM0W}, s{sM0W}, {L_RING}
    s_waitcnt lgkmcnt(0)''')
    stamp(a, 'ka')
    xt = {}
    for rs in range(2):
        for i in range(8):
            xt[rs, i] = a.one(f'buffer_load_dwordx4 {V(XRAW+rs*32+i*4,4)}, v{vXG+rs}, {srd(SX)}, s{sXO+i} offen')
    wt = {}
    stamp(a, 'xi')
    def w_issue(a, k, p):
        if k == 8 : a(f'v_subrev_u32 v{vWG+p}, 1376, v{vWG+p}')
        wt[k] = a.dma((f's{sM0W}', (k % NSLOT)*12288), f'buffer_load_dwordx4 v{vWG+p}, {srd(SWIN)}, s{sWO+k%8} offen offset:{1024*p} lds')
    for k in range(2):
        for p in range(3): w_issue(a, k, p)
    stamp(a, 'w2')
    if cfg.get('wsoff'): a(f's_add_u32 s{SWS}, s{SWS}, {cfg["wsoff"]*0x100000}\n s_addc_u32 s{SWS+1}, s{SWS+1}, 0')
    for r, n in ((SWSP,8388608),(SWOUT,704512),(SWS,0x10000000-cfg.get('wsoff',0)*0x100000),(SOUT,2097152),(SDBG,256),(SBSP,4096)):
        a(f's_mov_b32 s{r+2}, {n}\n s_mov_b32 s{r+3}, 0x00020000')
    a(f'''v_and_b32 v27, 15, v0
    v_lshrrev_b32 v32, 4, v0
    v_lshrrev_b32 v33, 1, v32
    v_and_b32 v34, 1, v32
    s_lshl_b32 s3, s{sA}, 11
    s_lshl_b32 s7, s{sB}, 8
    s_add_u32 s7, s7, s3
    v_lshl_add_u32 v35, v27, 4, s7
    v_lshl_add_u32 v35, v33, 10, v35
    v_lshl_add_u32 v{vZS}, v34, 9, v35
    s_lshl_b32 s7, s{sB}, 9
    s_add_u32 s7, s7, s3
    v_lshl_add_u32 v35, v27, 4, s7
    v_lshl_add_u32 v35, v34, 10, v35
    v_lshl_add_u32 v{vHS}, v33, 8, v35
    v_lshlrev_b32 v35, 4, v27
    v_lshl_add_u32 v{vSTA}, v32, 2, v35
    s_lshl_b32 s3, s{sR}, 12
    s_mul_i32 s7, s{sR}, 90112''')
    for j in range(3):
        a(f'''s_add_u32 s{sT}, s{sP0}, {j}
        s_lshl_b32 s{sT+1}, s{sT}, 17
        s_add_u32 s{sZST+j}, s{sT+1}, s3
        s_lshl_b32 s{sT+1}, s{sT}, 12
        s_add_u32 s{sT+1}, s{sT+1}, s7
        s_add_u32 s{sHST+j}, s{sT+1}, {HH}''')
    a(f'''s_cmp_eq_u32 s{sNP}, 2
    s_cselect_b32 s{sZST+2}, {OOB}, s{sZST+2}
    s_cselect_b32 s{sHST+2}, {OOB}, s{sHST+2}
    s_cselect_b32 s{sVAL+1}, 0, 1.0
    s_lshl_b32 s{sT}, s{sG}, 1
    s_add_u32 s{sT}, s{sT}, s{sB}
    s_cmp_eq_u32 s{sT}, 15
    s_cselect_b32 s{sVAL}, 0, 1.0
    s_lshl_b32 s{sT+1}, s{sT}, 17
    s_add_u32 s{sT+1}, s{sT+1}, s3
    s_lshl_b32 s{sT+2}, s{sA}, 11
    s_add_u32 s{sT+1}, s{sT+1}, s{sT+2}
    s_add_u32 s{sPQST}, s{sT+1}, {PQ}
    s_lshl_b32 s{sT+1}, s{sR}, 1
    s_add_u32 s{sT+1}, s{sT+1}, s{sA}
    s_lshl_b32 s{sT+1}, s{sT+1}, 12
    s_add_u32 s{sSTLD}, s{sT+1}, {ST}
    s_lshl_b32 s{sT+1}, s{sT}, 8
    s_add_u32 s{sSTST}, s{sSTLD}, s{sT+1}''')
    a(f'''v_mov_b32 v36, -1
    v_mov_b32 v37, -1
    v_mov_b32 v38, -1
    v_mov_b32 v39, -1
    s_sub_u32 s3, s{sG}, 6
    s_lshl_b32 s3, s3, 5
    s_add_u32 s3, s3, s{sR}
    s_lshl_b32 s3, s3, 2
    s_add_u32 s3, s3, s{sW}
    s_lshl_b32 s3, s3, 12
    s_add_u32 s3, s3, {YY+4096}
    s_cmp_eq_u32 s{sNP}, 2
    s_cselect_b32 s{sT+3}, s3, {OOB}''')
    sYST = sT+3
    stamp(a, 'su')
    for k in range(2, NSLOT):
        for p in range(3): w_issue(a, k, p)
    def clears(a):
        a(f'buffer_store_dword v36, v{vSTA}, {srd(SWS)}, s{sSTST} offen sc1')
        for j in range(3): a(f'buffer_store_dwordx4 v[36:39], v{vZS}, {srd(SWS)}, s{sZST+j} offen sc1')
        for j in range(2): a(f'buffer_store_dwordx4 v[36:39], v{vL16}, {srd(SWS)}, s{sPQST} offen offset:{1024*j} sc1')
        for j in range(3): a(f'buffer_store_dwordx4 v[36:39], v{vHS}, {srd(SWS)}, s{sHST+j} offen sc1')
        for j in range(4): a(f'buffer_store_dwordx4 v[36:39], v{vL16}, {srd(SWS)}, s{sYST} offen offset:{1024*j} sc1')
        a(f'''s_lshl_b32 s3, s{sW}, 10
        s_add_u32 s3, s3, {YY}
        s_lshl_b32 s7, s{sR}, 3
        s_add_u32 s7, s7, s{sG}
        s_cmp_eq_u32 s7, 6
        s_cselect_b32 s3, s3, {OOB}
        v_mov_b32 v40, 0
        v_mov_b32 v41, 0
        v_mov_b32 v42, 0
        v_mov_b32 v43, 0''')
        a.tok['clr'] = a.one(f'buffer_store_dwordx4 v[40:43], v{vL16}, {srd(SWS)}, s3 offen sc1')
    def touches(a):
        a(f'''s_lshl_b32 s3, s{sR}, 18
        s_lshl_b32 s7, s{sG}, 15
        s_add_u32 s3, s3, s7
        s_lshl_b32 s7, s{sW}, 13
        s_add_u32 s3, s3, s7
        v_lshlrev_b32 v44, 7, v0
        buffer_load_dword v29, v44, {srd(SWSP)}, s3 offen
        s_and_b32 s3, s{sR}, 3
        s_lshl_b32 s3, s3, 2
        s_add_u32 s3, s3, s{sW}
        s_mul_i32 s7, s3, {43*1024}
        s_lshl_b32 s6, s{sG}, 7
        s_add_u32 s7, s7, s6
        v_min_u32 v44, 42, v0
        v_lshlrev_b32 v44, 10, v44
        buffer_load_dword v30, v44, {srd(SWOUT)}, s7 offen''')
    stamp(a, 'w6')
    if cfg.get('touch', True): touches(a)
    clears(a)
    stamp(a, 'cl')
    a(f'''v_xor_b32 v33, v24, v25
    v_and_b32 v34, 3, v25
    v_lshl_add_u32 v33, v34, 4, v33
    v_lshrrev_b32 v34, 2, v25
    v_lshlrev_b32 v34, 12, v34
    v_lshl_add_u32 v33, v33, 4, v34
    s_and_b32 s3, s{sG}, 1
    s_lshl_b32 s3, s3, 7
    s_lshl_b32 s7, s{sW}, 10
    s_add_u32 s3, s3, s7
    v_add_u32 v{vXW}, s3, v33
    v_xor_b32 v{vXW+1}, 0x80, v{vXW}
    s_add_u32 s{sM0O}, s7, {L_WO}
    s_lshl_b32 s7, s7, 2
    s_add_u32 s{sM0S}, s7, {L_STG}
    v_xor_b32 v33, v27, v32
    v_lshl_add_u32 v33, v32, 4, v33
    s_lshl_b32 s3, s{sA}, 11
    v_lshl_add_u32 v{vXR}, v33, 4, s3
    v_xor_b32 v{vXR+1}, 64, v{vXR}
    v_bfe_u32 v33, v0, 2, 2
    v_lshl_add_u32 v33, v32, 3, v33
    v_mul_u32_u24 v33, 192, v33
    v_and_b32 v34, 1, v32
    v_xor_b32 v34, s{sB}, v34
    v_lshl_add_u32 v33, v34, 5, v33
    v_and_b32 v34, 3, v0
    v_lshl_add_u32 v33, v34, 3, v33
    v_add_u32 v{vWR}, {L_RING}, v33
    v_add_u32 v{vWR+1}, {L_RING+3*12288}, v33
    v_lshrrev_b32 v33, 1, v24
    v_xor_b32 v33, v33, v25
    v_lshlrev_b32 v33, 4, v33
    v_lshl_add_u32 v{vSG}, v26, 12, v33
    v_xor_b32 v33, 64, v{vSG}
    v_add_u32 v{vSG+1}, {16*4096-1024}, v33
    v_add_u32 v{vSG+2}, {4*4096-2048}, v{vSG}
    v_add_u32 v{vSG+3}, {20*4096-3072}, v33
    v_and_b32 v33, 31, v0
    v_bfe_u32 v34, v0, 1, 3
    v_lshrrev_b32 v35, 5, v0
    v_xor_b32 v34, v34, v35
    v_lshlrev_b32 v34, 4, v34
    v_lshl_add_u32 v33, v33, 7, v34
    v_add_u32 v{vSR}, s{sM0S}, v33
    v_xor_b32 v{vSR+1}, 32, v{vSR}
    v_xor_b32 v{vSR+2}, 64, v{vSR}
    v_xor_b32 v{vSR+3}, 0x60, v{vSR}
    s_lshl_b32 s3, s{sR}, 18
    s_lshl_b32 s7, s{sW}, 10
    s_add_u32 s3, s3, s7
    s_lshl_b32 s6, s{sP0}, 17
    s_lshl_b32 s7, s{sW}, 15
    s_add_u32 s6, s6, s7''')
    for i in range(8):
        a(f'''s_lshl_b32 s{sZO+i}, s{sSP+i}, 5
        s_add_u32 s{sZO+i}, s{sZO+i}, s6
        s_add_u32 s{sSP+i}, s{sSP+i}, s3''')
    c0 = -2.0*math.sqrt(2.0/math.pi)*math.log2(math.e)
    a(f'''s_mov_b32 s{sGC}, {H(c0*0.044715)}
    s_mov_b32 s{sGC+1}, {H(c0)}
    s_mov_b32 s{sONE}, 0x3f803f80
    s_mov_b32 s{sLO}, 0x00003f80
    s_mov_b32 s{sHI}, 0x3f800000
    s_mov_b32 s{sCNT}, 0
    s_mov_b32 s{sMA}, 0xaaaaaaaa
    s_mov_b32 s{sMA+1}, 0xaaaaaaaa
    s_mov_b32 s{sMC}, 0xcccccccc
    s_mov_b32 s{sMC+1}, 0xcccccccc''')
    stamp(a, 'ad')
    a(f'''s_lshl_b32 s3, s{sT}, 4
    s_add_u32 s3, s3, 1
    v_add_u32 v33, s3, v27
    v_cvt_f32_u32 v33, v33
    v_mul_f32 v33, {H(1/512)}, v33''')
    for sg in range(4):
        a(f'''s_lshl_b32 s3, s{sA}, 1
        s_add_u32 s3, s3, s{sROT}
        s_add_u32 s3, s3, {sg//2}
        s_and_b32 s3, s3, 7
        s_lshl_b32 s3, s3, 6
        s_add_u32 s3, s3, {32*(sg%2)}
        v_lshl_add_u32 v34, v32, 3, s3
        v_cvt_f32_u32 v34, v34
        v_mul_f32 v34, v34, v33
        v_fract_f32 v48, v34''')
        for i in range(1, 8): a(f'v_add_f32 v{48+i}, v{47+i}, v33')
        for i in range(8): a(f'v_cos_f32 v{56+i}, v{48+i}')
        for i in range(8): a(f'v_sin_f32 v{64+i}, v{48+i}')
        for i in range(8): a(f'v_cvt_pk_bf16_f32 v{72+i}, v{56+2*i}, v{57+2*i}')
        for i in range(8): a(f'v_accvgpr_write_b32 a{224+sg*8+i}, v{72+i}')
    stamp(a, 1)
    a(f'''s_and_b32 s3, s{sG}, 1
    s_lshl_b32 s3, s3, 5
    s_lshl_b32 s7, s{sW}, 6
    s_add_u32 s3, s3, s7
    s_add_u32 s3, s3, {L_MISC}
    v_lshl_add_u32 v33, v24, 2, s3
    v_xor_b32 v34, 32, v33''')
    def red8(a, r):
        a(f'''v_add_f32_dpp v{r}, v{r}, v{r} quad_perm:[1,0,3,2] row_mask:0xf bank_mask:0xf
        v_add_f32_dpp v{r}, v{r}, v{r} quad_perm:[2,3,0,1] row_mask:0xf bank_mask:0xf
        v_add_f32_dpp v{r}, v{r}, v{r} row_half_mirror row_mask:0xf bank_mask:0xf''')
    for rs in range(2):
        a.cmt(f'LN rowset {rs}')
        X = XRAW + rs*32
        a('v_mov_b32 v35, 0\n v_mov_b32 v36, 0')
        for i in range(8):
            if i % 2 == 0: a.wait(vm=xt[rs, i+1])
            for k in range(4): a(f'v_dot2c_f32_bf16 v35, s{sONE}, v{X+4*i+k}')
        stamp(a, f'x{rs}')
        red8(a, 35)
        a(f'v_mul_f32 v35, {H(-1/512)}, v35')
        for i in range(9):
            if i < 8:
                for k in range(4):
                    t = 40 + (i % 2)*8 + 2*k
                    a(f'v_dot2_f32_bf16 v{t}, v{X+4*i+k}, s{sLO}, v35\n v_dot2_f32_bf16 v{t+1}, v{X+4*i+k}, s{sHI}, v35')
            if i > 0:
                j = i-1
                for k in range(4):
                    t = 40 + (j % 2)*8 + 2*k
                    a(f'v_cvt_pk_bf16_f32 v{X+4*j+k}, v{t}, v{t+1}')
                a(f'ds_write_b128 v{vXW+rs}, {V(X+4*j,4)} offset:{8192*j}')
        for k in range(32): a(f'v_dot2c_f32_bf16 v36, v{X+k}, v{X+k}')
        red8(a, 36)
        a(f'''v_mov_b32 v37, {H(1e-5)}
        v_fmac_f32 v37, {H(1/512)}, v36
        v_rsq_f32 v37, v37
        ds_write_b32 v{33+rs}, v37''')
    stamp(a, 2)
    vR1A, vR1B, vTW, vTR = vXG, vXG+1, vXW, vXW+1
    a(f'''s_lshl_b32 s3, s{sA}, 7
    s_add_u32 s3, s3, {L_MISC}
    v_lshl_add_u32 v{vR1A}, v32, 4, s3
    v_lshl_add_u32 v{vR1B}, v27, 2, s3''')
    SLOT = lambda k: (k+2) % 3
    bg = []
    GAP = cfg.get('gap', 60)
    def mk_dma(k, p):
        def f(a):
            if p == 0 and k >= 3: a.wait(lg=a.tok['sr', k-3])
            if k == 8: a(f'v_add_u32 v{vSG+p}, 0x20000, v{vSG+p}')
            a.tok['sd', k] = a.dma((f's{sM0S}', SLOT(k)*16384), f'buffer_load_dwordx4 v{vSG+p}, {srd(SWSP)}, s{sSP+k%8} offen offset:{1024*p} lds')
        return (f, GAP)
    def mk_rd(k):
        def f(a):
            a.wait(vm=a.tok['sd', k])
            for q in range(4):
                r = ((k % 8)*4+q)*8 + (k//8)*4
                a.tok['sr', k] = a.one(f'ds_read_b128 {A(r,4)}, v{vSR+q} offset:{SLOT(k)*16384}')
        return (f, 0)
    for k in range(16):
        for p in range(4):
            bg.append(mk_dma(k, p))
            if p == 1 and k >= 2: bg.append(mk_rd(k-2))
    bg.append(mk_rd(14)); bg.append(mk_rd(15))
    nsp = len(bg)
    vOG = vXR
    def wo_issue(a, k):
        a(f's_add_u32 s3, s{sT+2}, {KORD[k]*32768}')
        a.tok['wo', k] = a.dma((f's{sM0O}', ((k+4) % 22)*4096), f'buffer_load_dwordx4 v{vOG}, {srd(SWOUT)}, s3 offen lds')
    NEARLY = cfg.get('nearly', 0)
    a.bg = bg
    def w_reads(k):
        ops = []
        sl = k % NSLOT; ar = vWR + (sl >= 3); base = (sl % 3)*12288
        for sg in range(2):
            if k < 8:
                for mt in range(2):
                    s_ = 2*k+sg
                    ops.append(f'ds_read_b128 {V(XF+(s_*2+mt)*4,4)}, v{vXR+sg} offset:{s_*4096+mt*1024}')
            for j in range(3):
                for u in range(2):
                    ops.append(f'ds_read_b64_tr_b16 {V(WB+(k%2)*24+(sg*3+j)*4+2*u,2)}, v{ar} offset:{base+sg*6144+u*768+j*64}')
        return ops
    def gemm_iter(a, k, extra=()):
        a.cmt(f'gemm iter {k}')
        on = a.bg_on; a.bg_on = False
        a.wait(vm=wt.get(k+1), lg=a.tok['wr', k])
        a('s_barrier')
        stamp(a, f'g{k}')
        a.bg_on = on
        fill = [(lambda a, t=t: a.tok.__setitem__(('wr', k+1), a.one(t))) for t in (w_reads(k+1) if k < 15 else [])]
        late = [(lambda a, p=p: w_issue(a, k+NSLOT, p)) for p in range(3)] if k+NSLOT < 16 else []
        late += list(extra)
        n = 0
        for sg in range(2):
            for j in range(3):
                for mt in range(2):
                    x = V(XF+(((2*k+sg) % 16)*2+mt)*4, 4); w = V(WB+(k%2)*24+(sg*3+j)*4, 4)
                    acc = V((ACC2 if k < 8 else ACC1)+(j*2+mt)*4, 4)
                    c = '0' if (k % 8 == 0 and sg == 0) else acc
                    a(f'v_mfma_f32_16x16x32_bf16 {acc}, {x}, {w}, {c}' if k < 8 else f'v_mfma_f32_16x16x32_bf16 {acc}, {w}, {x}, {c}')
                    n += 1
                    if fill:
                        for _ in range(2):
                            if fill: fill.pop(0)(a)
                    elif late: late.pop(0)(a)
        for f in late: f(a)
    a.wait(vm=wt[0], lg=a.lg_n)
    a('s_barrier')
    for t in w_reads(0): a.tok['wr', 0] = a.one(t)
    a(f'''s_lshl_b32 s3, s{sB}, 14
    v_add_u32 v{vTR}, s3, v{vL16}
    s_lshl_b32 s7, s{sA}, 13
    v_add_u32 v{vTW}, s7, v{vTR}''')
    def dbg_store(a):
        a(f'''s_lshl_b32 s3, s{sR}, 3
        s_add_u32 s3, s3, s{sG}
        s_cmp_eq_u32 s{sW}, 0
        s_cselect_b32 s3, s3, {OOB}
        v_mov_b32 v24, 1
        v_mov_b32 v25, 0
        buffer_store_byte v24, v25, {srd(SDBG)}, s3 offen sc1''')
    RV = 24
    for k in range(8):
        extra = []
        if k == 5:
            assert a.tok['clr'] <= wt[6]
            extra = [dbg_store]
        if k == 7:
            extra = [(lambda a, q=q: a(f'ds_write_b128 v{vTW}, {A(224+q*4,4)} offset:{q*1024}')) for q in range(8)]
            extra += [(lambda a, mt=mt: a.tok.__setitem__('r1', a.one(f'ds_read_b128 {V(ACC1+4*mt,4)}, v{vR1A} offset:{64*mt}'))) for mt in range(2)]
        gemm_iter(a, k, extra)
    stamp(a, 3)
    a.bg_on = True; a.bg_next = 0
    def gelu_tile(a, acc, tmp, rop):
        for p in range(4): a(f'v_pk_mul_f32 {V(acc+2*p,2)}, {V(acc+2*p,2)}, {rop(p)}')
        for p in range(4): a(f'v_pk_mul_f32 {V(tmp+2*p,2)}, {V(acc+2*p,2)}, {V(acc+2*p,2)}')
        for p in range(4): a(f'v_pk_fma_f32 {V(tmp+2*p,2)}, {V(tmp+2*p,2)}, {S(sGC,2)}, {S(sGC,2)} op_sel:[0,0,1] op_sel_hi:[1,0,1]')
        for p in range(4): a(f'v_pk_mul_f32 {V(tmp+2*p,2)}, {V(tmp+2*p,2)}, {V(acc+2*p,2)}')
        for p in range(8): a(f'v_exp_f32 v{tmp+p}, v{tmp+p}')
        for p in range(4): a(f'v_pk_add_f32 {V(tmp+2*p,2)}, {V(tmp+2*p,2)}, 1.0 op_sel_hi:[1,0]')
        for p in range(8): a(f'v_rcp_f32 v{tmp+p}, v{tmp+p}')
        for p in range(4): a(f'v_pk_mul_f32 {V(acc+2*p,2)}, {V(acc+2*p,2)}, {V(tmp+2*p,2)}')
    a.wait(lg=a.tok['r1'])
    TM = WB+24; SS = ACC1+8; QQ = ACC1+16
    for j in range(3):
        if j:
            for p in range(4): a(f'v_pk_mul_f32 {V(ACC1+2*p,2)}, {V(ACC1+2*p,2)}, {S(sVAL,2)} op_sel:[0,{j-1}] op_sel_hi:[1,{j-1}]')
        y = ACC2+8*j
        gelu_tile(a, y, TM, lambda p: V(ACC1+2*p, 2))
        for p in range(4):
            if j == 0: a(f'v_pk_mul_f32 {V(QQ+2*p,2)}, {V(y+2*p,2)}, {V(y+2*p,2)}')
            else: a(f'v_pk_fma_f32 {V(QQ+2*p,2)}, {V(y+2*p,2)}, {V(y+2*p,2)}, {V(QQ+2*p,2)}')
            if j == 1: a(f'v_pk_add_f32 {V(SS+2*p,2)}, {V(y+2*p,2)}, {V(ACC2+2*p,2)}')
            if j == 2: a(f'v_pk_add_f32 {V(SS+2*p,2)}, {V(y+2*p,2)}, {V(SS+2*p,2)}')
    for i in range(8): a(f'v_add_f32_dpp v{SS+i}, v{SS+i}, v{SS+i} row_ror:8 row_mask:0xf bank_mask:0x3')
    for i in range(8): a(f'v_add_f32_dpp v{SS+i}, v{QQ+i}, v{QQ+i} row_ror:8 row_mask:0xf bank_mask:0xc')
    for i in range(4): a(f'v_add_f32_dpp v{SS+i}, v{SS+i}, v{SS+i} row_half_mirror row_mask:0xf bank_mask:0x5')
    for i in range(4): a(f'v_add_f32_dpp v{SS+i}, v{SS+4+i}, v{SS+4+i} row_half_mirror row_mask:0xf bank_mask:0xa')
    for i in range(4): a(f'v_add_f32_dpp v{SS+i}, v{SS+i}, v{SS+i} quad_perm:[1,0,3,2] row_mask:0xf bank_mask:0xf')
    for i in range(4): a(f'v_add_f32_dpp v{SS+i}, v{SS+i}, v{SS+i} quad_perm:[2,3,0,1] row_mask:0xf bank_mask:0xf')
    a(f'''v_cndmask_b32 v{SS}, v{SS}, v{SS+1}, {S(sMA,2)}
    v_cndmask_b32 v{SS+2}, v{SS+2}, v{SS+3}, {S(sMA,2)}
    v_cndmask_b32 v24, v{SS}, v{SS+2}, {S(sMC,2)}
    buffer_store_dword v24, v{vSTA}, {srd(SWS)}, s{sSTST} offen sc1''')
    stamp(a, 4)
    vBS = 28
    def misc1(a):
        a(f'''v_lshrrev_b32 v24, 3, v0
        v_bfe_u32 v25, v0, 4, 1
        s_lshl_b32 s3, s{sB}, 1
        v_add_u32 v25, s3, v25
        v_lshlrev_b32 v25, 1, v25
        v_and_b32 v30, 7, v0
        v_xor_b32 v25, v25, v30
        v_lshlrev_b32 v25, 4, v25
        s_lshl_b32 s3, s{sW}, 13
        v_lshl_add_u32 v25, v24, 10, v25
        v_add_u32 v{vOG}, s3, v25
        s_lshl_b32 s{sT+2}, s{sG}, 7''')
    def misc2(a):
        a(f'''v_and_b32 v24, 12, v0
        v_and_b32 v25, 15, v0
        v_add_u32 v24, v24, v25
        v_lshlrev_b32 v{vXR+1}, 1, v24
        s_lshl_b32 s3, s{sR}, 7
        s_lshl_b32 s7, s{sA}, 6
        s_add_u32 s3, s3, s7
        buffer_load_short_d16_hi v{vBS}, v{vXR+1}, {srd(SBSP)}, s3 offen
        buffer_load_short_d16_hi v{vBS+1}, v{vXR+1}, {srd(SBSP)}, s3 offen offset:8''')
    def dbg_load(a):
        a(f'v_lshlrev_b32 v24, 2, v0')
        a.tok['dbg'] = a.one(f'buffer_load_dword v30, v24, {srd(SDBG)}, 0 offen sc1')
    for k in range(8, 16):
        extra = []
        if k == 10: extra = [misc1]
        if k == 11: extra = [misc2]
        if k == 13: extra = [dbg_load]
        if k == 15:
            extra = [(lambda a, mt=mt: a.tok.__setitem__('r1', a.one(f'ds_read_b32 v{26+mt}, v{vR1B} offset:{64*mt}'))) for mt in range(2)]
        gemm_iter(a, k, extra)
    stamp(a, 5)
    a.bg_on = False
    a.wait(vm=a.tok['dbg'])
    a.label('L_dbg_chk')
    a('v_cmp_ne_u32 vcc, 0x01010101, v30\n s_cbranch_vccnz L_dbg_retry')
    a.label('L_dbg_ok', keep_m0=True)
    SL = WB
    def st_loads(a):
        for j in range(4): a.tok['st'] = a.one(f'buffer_load_dwordx4 {V(SL+4*j,4)}, v{vL16}, {srd(SWS)}, s{sSTLD} offen offset:{1024*j} sc1')
    a.bg_on = True
    a.wait(lg=a.tok['r1'])
    STPOS = cfg.get('stpos', 1)
    for j in range(3):
        if j == STPOS: st_loads(a)
        if j: a(f'v_pk_mul_f32 v[26:27], v[26:27], {S(sVAL,2)} op_sel:[0,{j-1}] op_sel_hi:[1,{j-1}]')
        gelu_tile(a, ACC1+8*j, TM, lambda p: f'v[26:27] op_sel:[0,{p//2}] op_sel_hi:[1,{p//2}]')
    if STPOS == 3: st_loads(a)
    stamp(a, 6)
    a.bg_on = False
    a.wait(vm=a.tok['st'])
    a.label('L_st_chk')
    a(f'''v_pk_add_f32 {V(SL,2)}, {V(SL,2)}, {V(SL+4,2)}
    v_pk_add_f32 {V(SL+2,2)}, {V(SL+2,2)}, {V(SL+6,2)}
    v_pk_add_f32 {V(SL+8,2)}, {V(SL+8,2)}, {V(SL+12,2)}
    v_pk_add_f32 {V(SL+10,2)}, {V(SL+10,2)}, {V(SL+14,2)}
    v_pk_add_f32 {V(SL,2)}, {V(SL,2)}, {V(SL+8,2)}
    v_pk_add_f32 {V(SL+2,2)}, {V(SL+2,2)}, {V(SL+10,2)}
    v_permlane32_swap_b32 v{SL}, v{SL+2}
    v_permlane32_swap_b32 v{SL+1}, v{SL+3}
    v_pk_add_f32 {V(SL,2)}, {V(SL,2)}, {V(SL+2,2)}
    v_permlane16_swap_b32 v{SL}, v{SL+1}
    v_add_f32 v{SL}, v{SL}, v{SL+1}
    v_cmp_u_f32 vcc, v{SL}, v{SL}
    s_cbranch_vccnz L_st_retry''')
    a.label('L_st_ok')
    a.bg_on = True
    RS = SL+8; NB = SL+16
    a(f'''v_mul_f32 v{SL}, {H(1/688)}, v{SL}
    v_mul_f32 v{SL+2}, v{SL}, v{SL}
    v_sub_f32_dpp v{SL+1}, v{SL}, v{SL+2} row_ror:8 row_mask:0xf bank_mask:0xf
    v_max_f32 v{SL+1}, 0, v{SL+1}
    v_add_f32 v{SL+1}, {H(1e-5)}, v{SL+1}
    v_rsq_f32 v{SL+1}, v{SL+1}
    v_mul_f32_e64 v{SL+2}, -v{SL}, v{SL+1}''')
    for i in range(8): a(f'v_mov_b32_dpp v{RS+i}, v{SL+1} row_newbcast:{i} row_mask:0xf bank_mask:0xf')
    for i in range(8): a(f'v_mov_b32_dpp v{NB+i}, v{SL+2} row_newbcast:{i} row_mask:0xf bank_mask:0xf')
    PK = SL+24
    for j in range(3):
        y = ACC2+8*j
        for p in range(4): a(f'v_pk_fma_f32 {V(y+2*p,2)}, {V(y+2*p,2)}, {V(RS+2*p,2)}, {V(NB+2*p,2)}')
        for p in range(4): a(f'v_cvt_pk_bf16_f32 v{PK+4*j+p}, v{y+2*p}, v{y+2*p+1}')
        a(f'buffer_store_dwordx4 {V(PK+4*j,4)}, v{vZS}, {srd(SWS)}, s{sZST+j} offen sc1')
    stamp(a, 7)
    DL = lambda pq, mt: ACC2 + (pq*2+mt)*4
    DH = lambda pq, mt: (48 if pq == 0 else 116) + mt*4
    tr = {}
    def t_read(sg):
        for pq in range(2): tr[sg] = a.one(f'ds_read_b128 {V(WB+(sg%3)*8+pq*4,4)}, v{vTR} offset:{sg*2048+pq*1024}')
    t_read(0); t_read(1)
    for sg in range(8):
        a.wait(lg=tr[sg])
        n = 0
        for hf in range(2):
            for pq in range(2):
                for mt in range(2):
                    acc = V((DH if hf else DL)(pq, mt), 4)
                    a(f'v_mfma_f32_16x16x32_bf16 {acc}, {V(XF+((sg+8*hf)*2+mt)*4,4)}, {V(WB+(sg%3)*8+pq*4,4)}, {acc if sg else 0}')
                    n += 1
                    if n == 1 and sg+2 < 8: t_read(sg+2)
                    if n == 2 and sg == 6:
                        for mt2 in range(2): a.tok['r1'] = a.one(f'ds_read_b128 {V(104+4*mt2,4)}, v{vR1A} offset:{64*mt2}')
                    if n == 3 and sg == 7:
                        a(f'v_cndmask_b32 v24, -1.0, 1.0, {S(sMA,2)}')
    a.wait(lg=a.tok['r1'])
    for pq in range(2):
        for p in range(4): a(f'v_pk_fma_f32 {V(DL(pq,0)+2*p,2)}, {V(DH(pq,0)+2*p,2)}, v[24:25], {V(DL(pq,0)+2*p,2)} op_sel_hi:[1,0,1]')
        for p in range(4): a(f'v_pk_mul_f32 {V(DL(pq,0)+2*p,2)}, {V(DL(pq,0)+2*p,2)}, {V(104+2*p,2)}')
        for p in range(4): a(f'v_cvt_pk_bf16_f32 v{WB+4*pq+p}, v{DL(pq,0)+2*p}, v{DL(pq,0)+2*p+1}')
        a(f'buffer_store_dwordx4 {V(WB+4*pq,4)}, v{vL16}, {srd(SWS)}, s{sPQST} offen offset:{1024*pq} sc1')
    stamp(a, 8)
    vZ = (vL16, vXG, vXG+1); vRW = vXW; vRR = vXW+1; vPR = vXR+1
    a(f'''v_add_u32 v{vZ[1]}, 0x20000, v{vL16}
    v_add_u32 v{vZ[2]}, 0x40000, v{vL16}
    s_lshl_b32 s3, s{sW}, 13
    s_add_u32 s3, s3, {L_RED}
    v_add_u32 v{vRW}, s3, v{vL16}
    s_lshl_b32 s3, s{sW}, 11
    s_add_u32 s3, s3, {L_RED}
    v_lshrrev_b32 v24, 4, v0
    v_lshl_add_u32 v24, v24, 8, s3
    v_add_u32 v{vRR}, v24, v{vL16}
    v_lshrrev_b32 v24, 2, v0
    v_lshlrev_b32 v24, 11, v24
    v_bfe_u32 v25, v0, 1, 1
    v_lshl_add_u32 v{vPR}, v25, 8, v24
    s_add_u32 s{sT+1}, s{sP0}, s{sNP}
    s_sub_u32 s{sT+1}, s{sT+1}, 1
    s_lshl_b32 s{sT+1}, s{sT+1}, 17
    s_lshl_b32 s3, s{sW}, 15
    s_add_u32 s{sT+1}, s{sT+1}, s3''')
    a.bg_on = False
    a(f's_cmp_eq_u32 s{sNP}, 2\n s_cbranch_scc1 L_pathB')
    b = a.fork()
    slow = []
    from gen2 import tail
    env = dict(globals()); env.update(locals())
    tail(a, 3, env)
    b.label('L_pathB')
    tail(b, 2, env)
    r = Asm(); r.out = a.out
    r.label('L_dbg_retry')
    r(f'buffer_load_dword v30, v24, {srd(SDBG)}, 0 offen sc1\n s_waitcnt vmcnt(0)')
    retry(r, 'L_dbg_chk', 'L_dbg_ok')
    r.label('L_st_retry')
    r(f's_cmp_gt_u32 s{sCNT}, {LIMIT}\n s_cbranch_scc1 L_st_ok\n s_add_u32 s{sCNT}, s{sCNT}, 1')
    st_loads(r); r('s_waitcnt vmcnt(0)\n s_branch L_st_chk')
    for f in slow: f(r)
    r.label('L_end'); r('s_endpgm')
    r.raw('L_codeend:')
    hdr = open('parallel_sum__spectral_fnet__mixer_gmlp__prompt.s.ref').read().split('; @launch')[0] if cfg.get('hdr', True) else ''
    txt = hdr + f'''; @launch grid=(256,1,1) block=(256,1,1) lds=163840
.amdgcn_target "amdgcn-amd-amdhsa--gfx950"
.text
.globl {KN}
.p2align 8
.type {KN},@function
{KN}:
''' + '\n'.join(a.out) + f'''
.section .rodata,"a"
.p2align 6
.amdhsa_kernel {KN}
  .amdhsa_next_free_vgpr 512
  .amdhsa_next_free_sgpr 102
  .amdhsa_accum_offset 256
  .amdhsa_group_segment_fixed_size 0
  .amdhsa_kernarg_size 104
  .amdhsa_user_sgpr_count 2
  .amdhsa_user_sgpr_kernarg_segment_ptr 1
  .amdhsa_system_sgpr_workgroup_id_x 1
.end_amdhsa_kernel
'''
    return txt
if __name__ == '__main__':
    cfg = {}
    for kv in sys.argv[2:]:
        k, v = kv.split('='); cfg[k] = int(v) if v.lstrip('-').isdigit() else v
    open(sys.argv[1], 'w').write(gen(cfg))
```

```python
import sys, math, struct
from asmlib import *
KN = "parallel_sum__spectral_fnet__mixer_gmlp__prompt_kernel"
def f2u(x): return struct.unpack('<I', struct.pack('<f', x))[0]
def H(x): return hex(f2u(x))
Z2 = 0; HH = 0x2C0000; PQ = 0x580000; YY = 0x780000; ST = 0x881000; STAMP = 0x1000000
OOB = 0x40000000
L_STG = 32768; L_WO = 65536; L_RING = 81920; L_MISC = 155648; L_RED = 32768
NSLOT = 6
SX, SWIN, SWSP, SWOUT, SWS, SOUT, SDBG, SBSP = 8, 12, 16, 20, 24, 28, 32, 36
sR, sG, sW, sA, sB, sP0, sNP, sROT = 40, 41, 42, 43, 44, 45, 46, 47
sXO = 48; sZO = 48; sWO = 56; sSP = 64
sGC = 72; sONE = 74; sLO = 75; sHI = 76; sZST = 77; sHST = 80; sPQST = 83; sSTST = 84; sSTLD = 85
sVAL = 86; sM0W = 88; sM0S = 89; sM0O = 90; sCNT = 91; sMA = 92; sMC = 94; sT = 96
vL16 = 1; vXG = 2; vXW = 4; vXR = 6; vWG = 8; vWR = 11; vSG = 13; vSR = 17; vZS = 21; vHS = 22; vSTA = 23
vTMP = 24; ACC2 = 32; ACC1 = 56; WB = 80; XF = 128; XRAW = 192
LIMIT = 40000
STAGES = [[0,3,6,9,12,15,18,20],[1,4,7,10,13,16,19,21],[2,5,8,11,14,17]]
KORD = STAGES[0]+STAGES[1]+STAGES[2]
def srd(r): return S(r, 4)

def gen(cfg):
    a = Asm()
    stamps = cfg.get('stamps', False)
    vST = 31
    class St: n = 0
    SETS = {0: list(range(20)),
            1: [0,'ka','xi','w2','su','w6','cl','ad',1,'x0','x1',2,'g0','g2','g4','g6',3,4,18,19]}
    SET = SETS[cfg.get('set', 0)]
    def stamp(a, k):
        if not stamps or k not in SET: return
        k = SET.index(k)
        b = a.in_bg; a.in_bg = True
        if k > 0:
            if cfg.get('set', 0): a.raw('    s_waitcnt lgkmcnt(0)'); a.lg_done = a.lg_n
            a(f'v_writelane_b32 v{vST}, s100, {k-1}')
        a('s_memtime s[100:101]' if stamps == 2 else 's_memrealtime s[100:101]')
        a.in_bg = b
    def retry(a, back, out):
        a(f's_add_u32 s{sCNT}, s{sCNT}, 1\n s_cmp_gt_u32 s{sCNT}, {LIMIT}\n s_cbranch_scc1 {out}\n s_branch {back}')
    a('s_cmp_ge_u32 s2, 256\n s_cbranch_scc1 L_end')
    for r, off in ((SX,0),(SWIN,48),(SWS,96),(SWSP,56),(SWOUT,72),(SDBG,88),(SBSP,64),(SOUT,80)):
        a(f's_load_dwordx2 {S(r,2)}, s[0:1], {off}')
    stamp(a, 0)
    a(f'''s_getpc_b64 s[4:5]
    s_and_b32 s4, s4, 0xffffff00
    s_lshr_b32 s3, s2, 3
    s_and_b32 s6, s3, 15
    s_lshl_b32 s6, s6, 12
    v_lshl_add_u32 v24, v0, 4, s6
    v_min_u32 v24, L_codeend-{KN}-16, v24
    global_load_dwordx4 v[124:127], v24, s[4:5]
    v_lshrrev_b32 v25, 6, v0
    v_and_b32 v0, 63, v0
    v_readfirstlane_b32 s{sW}, v25
    v_lshlrev_b32 v{vL16}, 4, v0''')
    if cfg.get('map', 'row') == 'row':
        a(f'''s_and_b32 s{sR}, s2, 7
        s_lshl_b32 s{sR}, s{sR}, 2
        s_and_b32 s6, s3, 3
        s_add_u32 s{sR}, s{sR}, s6
        s_lshr_b32 s{sG}, s2, 5
        s_lshl_b32 s6, s6, 1
        s_add_u32 s{sROT}, s{sG}, s6''')
    else:
        a(f'''s_and_b32 s{sR}, s2, 3
        s_lshl_b32 s{sR}, s{sR}, 3
        s_and_b32 s6, s3, 7
        s_add_u32 s{sR}, s{sR}, s6
        s_lshr_b32 s7, s3, 3
        s_and_b32 s{sG}, s2, 4
        s_add_u32 s{sG}, s{sG}, s7
        s_lshl_b32 s7, s7, 1
        s_add_u32 s{sROT}, s7, s6''')
    a(f'''s_lshr_b32 s{sA}, s{sW}, 1
    s_and_b32 s{sB}, s{sW}, 1
    s_mul_i32 s{sP0}, s{sG}, 3
    s_min_u32 s{sP0}, s{sP0}, 20
    s_cmp_ge_u32 s{sG}, 6
    s_cselect_b32 s{sNP}, 2, 3
    s_mov_b32 s{SX+2}, 2097152
    s_mov_b32 s{SX+3}, 0x00020000
    s_mov_b32 s{SWIN+2}, 1409024
    s_mov_b32 s{SWIN+3}, 0x00020000''')
    a(f'''v_lshrrev_b32 v24, 3, v0
    v_and_b32 v25, 7, v0
    s_lshl_b32 s3, s{sA}, 5
    s_lshl_b32 s6, s{sB}, 2
    s_add_u32 s3, s3, s6
    s_and_b32 s6, s{sG}, 1
    s_lshl_b32 s7, s6, 4
    s_add_u32 s3, s3, s7
    v_and_b32 v26, 4, v24
    v_add_u32 v26, v26, v24
    v_add_u32 v27, s3, v26
    v_lshlrev_b32 v27, 10, v27
    v_lshl_add_u32 v{vXG}, v25, 4, v27
    v_xor_b32 v{vXG+1}, 0x4000, v{vXG}
    s_lshl_b32 s3, s{sR}, 16
    s_lshl_b32 s7, s{sP0}, 6''')
    for i in range(8):
        a(f'''s_add_u32 s{sT}, s{sROT}, {i}
        s_and_b32 s{sT}, s{sT}, 7
        s_mul_i32 s{sWO+i}, s{sT}, 176128
        s_lshl_b32 s{sSP+i}, s{sT}, 7
        s_add_u32 s{sWO+i}, s{sWO+i}, s7
        s_add_u32 s{sXO+i}, s{sSP+i}, s3''')
    a(f's_mul_i32 s3, s{sW}, {16*2752}\n s_add_u32 s3, s3, 1376\n s_movk_i32 s7, 2752')
    for p in range(3):
        a(f'''v_add_u32 v28, {64*p}, v0
        v_mul_u32_u24 v29, 171, v28
        v_lshrrev_b32 v29, 11, v29
        v_mul_u32_u24 v30, 12, v29
        v_sub_u32 v28, v28, v30
        v_lshrrev_b32 v30, 2, v29
        v_and_b32 v30, 2, v30
        v_xor_b32 v28, v28, v30
        v_lshl_add_u32 v28, v28, 4, s3
        v_mad_u32_u24 v{vWG+p}, v29, s7, v28'''.replace('v28','v32').replace('v29','v33').replace('v30','v34'))
        if p: a(f'v_subrev_u32 v{vWG+p}, {1024*p}, v{vWG+p}')
    a(f'''s_mul_i32 s{sM0W}, s{sW}, 3072
    s_add_u32 s{sM0W}, s{sM0W}, {L_RING}
    s_waitcnt lgkmcnt(0)''')
    stamp(a, 'ka')
    xt = {}
    for rs in range(2):
        for i in range(8):
            xt[rs, i] = a.one(f'buffer_load_dwordx4 {V(XRAW+rs*32+i*4,4)}, v{vXG+rs}, {srd(SX)}, s{sXO+i} offen')
    wt = {}
    stamp(a, 'xi')
    def w_issue(a, k, p):
        if k == 8 : a(f'v_subrev_u32 v{vWG+p}, 1376, v{vWG+p}')
        wt[k] = a.dma((f's{sM0W}', (k % NSLOT)*12288), f'buffer_load_dwordx4 v{vWG+p}, {srd(SWIN)}, s{sWO+k%8} offen offset:{1024*p} lds')
    for k in range(2):
        for p in range(3): w_issue(a, k, p)
    stamp(a, 'w2')
    if cfg.get('wsoff'): a(f's_add_u32 s{SWS}, s{SWS}, {cfg["wsoff"]*0x100000}\n s_addc_u32 s{SWS+1}, s{SWS+1}, 0')
    for r, n in ((SWSP,8388608),(SWOUT,704512),(SWS,0x10000000-cfg.get('wsoff',0)*0x100000),(SOUT,2097152),(SDBG,256),(SBSP,4096)):
        a(f's_mov_b32 s{r+2}, {n}\n s_mov_b32 s{r+3}, 0x00020000')
    a(f'''v_and_b32 v27, 15, v0
    v_lshrrev_b32 v32, 4, v0
    v_lshrrev_b32 v33, 1, v32
    v_and_b32 v34, 1, v32
    s_lshl_b32 s3, s{sA}, 11
    s_lshl_b32 s7, s{sB}, 8
    s_add_u32 s7, s7, s3
    v_lshl_add_u32 v35, v27, 4, s7
    v_lshl_add_u32 v35, v33, 10, v35
    v_lshl_add_u32 v{vZS}, v34, 9, v35
    s_lshl_b32 s7, s{sB}, 9
    s_add_u32 s7, s7, s3
    v_lshl_add_u32 v35, v27, 4, s7
    v_lshl_add_u32 v35, v34, 10, v35
    v_lshl_add_u32 v{vHS}, v33, 8, v35
    v_lshlrev_b32 v35, 4, v27
    v_lshl_add_u32 v{vSTA}, v32, 2, v35
    s_lshl_b32 s3, s{sR}, 12
    s_mul_i32 s7, s{sR}, 90112''')
    for j in range(3):
        a(f'''s_add_u32 s{sT}, s{sP0}, {j}
        s_lshl_b32 s{sT+1}, s{sT}, 17
        s_add_u32 s{sZST+j}, s{sT+1}, s3
        s_lshl_b32 s{sT+1}, s{sT}, 12
        s_add_u32 s{sT+1}, s{sT+1}, s7
        s_add_u32 s{sHST+j}, s{sT+1}, {HH}''')
    a(f'''s_cmp_eq_u32 s{sNP}, 2
    s_cselect_b32 s{sZST+2}, {OOB}, s{sZST+2}
    s_cselect_b32 s{sHST+2}, {OOB}, s{sHST+2}
    s_cselect_b32 s{sVAL+1}, 0, 1.0
    s_lshl_b32 s{sT}, s{sG}, 1
    s_add_u32 s{sT}, s{sT}, s{sB}
    s_cmp_eq_u32 s{sT}, 15
    s_cselect_b32 s{sVAL}, 0, 1.0
    s_lshl_b32 s{sT+1}, s{sT}, 17
    s_add_u32 s{sT+1}, s{sT+1}, s3
    s_lshl_b32 s{sT+2}, s{sA}, 11
    s_add_u32 s{sT+1}, s{sT+1}, s{sT+2}
    s_add_u32 s{sPQST}, s{sT+1}, {PQ}
    s_lshl_b32 s{sT+1}, s{sR}, 1
    s_add_u32 s{sT+1}, s{sT+1}, s{sA}
    s_lshl_b32 s{sT+1}, s{sT+1}, 12
    s_add_u32 s{sSTLD}, s{sT+1}, {ST}
    s_lshl_b32 s{sT+1}, s{sT}, 8
    s_add_u32 s{sSTST}, s{sSTLD}, s{sT+1}''')
    a(f'''v_mov_b32 v36, -1
    v_mov_b32 v37, -1
    v_mov_b32 v38, -1
    v_mov_b32 v39, -1
    s_sub_u32 s3, s{sG}, 6
    s_lshl_b32 s3, s3, 5
    s_add_u32 s3, s3, s{sR}
    s_lshl_b32 s3, s3, 2
    s_add_u32 s3, s3, s{sW}
    s_lshl_b32 s3, s3, 12
    s_add_u32 s3, s3, {YY+4096}
    s_cmp_eq_u32 s{sNP}, 2
    s_cselect_b32 s{sT+3}, s3, {OOB}''')
    sYST = sT+3
    stamp(a, 'su')
    for k in range(2, NSLOT):
        for p in range(3): w_issue(a, k, p)
    def clears(a):
        a(f'buffer_store_dword v36, v{vSTA}, {srd(SWS)}, s{sSTST} offen sc1')
        for j in range(3): a(f'buffer_store_dwordx4 v[36:39], v{vZS}, {srd(SWS)}, s{sZST+j} offen sc1')
        for j in range(2): a(f'buffer_store_dwordx4 v[36:39], v{vL16}, {srd(SWS)}, s{sPQST} offen offset:{1024*j} sc1')
        for j in range(3): a(f'buffer_store_dwordx4 v[36:39], v{vHS}, {srd(SWS)}, s{sHST+j} offen sc1')
        for j in range(4): a(f'buffer_store_dwordx4 v[36:39], v{vL16}, {srd(SWS)}, s{sYST} offen offset:{1024*j} sc1')
        a(f'''s_lshl_b32 s3, s{sW}, 10
        s_add_u32 s3, s3, {YY}
        s_lshl_b32 s7, s{sR}, 3
        s_add_u32 s7, s7, s{sG}
        s_cmp_eq_u32 s7, 6
        s_cselect_b32 s3, s3, {OOB}
        v_mov_b32 v40, 0
        v_mov_b32 v41, 0
        v_mov_b32 v42, 0
        v_mov_b32 v43, 0''')
        a.tok['clr'] = a.one(f'buffer_store_dwordx4 v[40:43], v{vL16}, {srd(SWS)}, s3 offen sc1')
    def touches(a):
        a(f'''s_lshl_b32 s3, s{sR}, 18
        s_lshl_b32 s7, s{sG}, 15
        s_add_u32 s3, s3, s7
        s_lshl_b32 s7, s{sW}, 13
        s_add_u32 s3, s3, s7
        v_lshlrev_b32 v44, 7, v0
        buffer_load_dword v29, v44, {srd(SWSP)}, s3 offen
        s_and_b32 s3, s{sR}, 3
        s_lshl_b32 s3, s3, 2
        s_add_u32 s3, s3, s{sW}
        s_mul_i32 s7, s3, {43*1024}
        s_lshl_b32 s6, s{sG}, 7
        s_add_u32 s7, s7, s6
        v_min_u32 v44, 42, v0
        v_lshlrev_b32 v44, 10, v44
        buffer_load_dword v30, v44, {srd(SWOUT)}, s7 offen''')
    stamp(a, 'w6')
    if cfg.get('touch', True): touches(a)
    if cfg.get('dummy'):
        a(f's_add_u32 s{SWS}, s{SWS}, 0x4000000\n s_addc_u32 s{SWS+1}, s{SWS+1}, 0')
        if cfg['dummy'] == 2:
            b = Asm(); clears(b)
            for ln in b.out: a(ln.replace(' sc1', ''))
        else: clears(a)
        a(f's_sub_u32 s{SWS}, s{SWS}, 0x4000000\n s_subb_u32 s{SWS+1}, s{SWS+1}, 0')
        if cfg.get('clw'): a.waitall(lg=False)
        stamp(a, 'cl')
        clears(a)
    else:
        clears(a)
        if cfg.get('clw'): a.waitall(lg=False)
        stamp(a, 'cl')
    a(f'''v_xor_b32 v33, v24, v25
    v_and_b32 v34, 3, v25
    v_lshl_add_u32 v33, v34, 4, v33
    v_lshrrev_b32 v34, 2, v25
    v_lshlrev_b32 v34, 12, v34
    v_lshl_add_u32 v33, v33, 4, v34
    s_and_b32 s3, s{sG}, 1
    s_lshl_b32 s3, s3, 7
    s_lshl_b32 s7, s{sW}, 10
    s_add_u32 s3, s3, s7
    v_add_u32 v{vXW}, s3, v33
    v_xor_b32 v{vXW+1}, 0x80, v{vXW}
    s_add_u32 s{sM0O}, s7, {L_WO}
    s_lshl_b32 s7, s7, 2
    s_add_u32 s{sM0S}, s7, {L_STG}
    v_xor_b32 v33, v27, v32
    v_lshl_add_u32 v33, v32, 4, v33
    s_lshl_b32 s3, s{sA}, 11
    v_lshl_add_u32 v{vXR}, v33, 4, s3
    v_xor_b32 v{vXR+1}, 64, v{vXR}
    v_bfe_u32 v33, v0, 2, 2
    v_lshl_add_u32 v33, v32, 3, v33
    v_mul_u32_u24 v33, 192, v33
    v_and_b32 v34, 1, v32
    v_xor_b32 v34, s{sB}, v34
    v_lshl_add_u32 v33, v34, 5, v33
    v_and_b32 v34, 3, v0
    v_lshl_add_u32 v33, v34, 3, v33
    v_add_u32 v{vWR}, {L_RING}, v33
    v_add_u32 v{vWR+1}, {L_RING+3*12288}, v33
    v_lshrrev_b32 v33, 1, v24
    v_xor_b32 v33, v33, v25
    v_lshlrev_b32 v33, 4, v33
    v_lshl_add_u32 v{vSG}, v26, 12, v33
    v_xor_b32 v33, 64, v{vSG}
    v_add_u32 v{vSG+1}, {16*4096-1024}, v33
    v_add_u32 v{vSG+2}, {4*4096-2048}, v{vSG}
    v_add_u32 v{vSG+3}, {20*4096-3072}, v33
    v_and_b32 v33, 31, v0
    v_bfe_u32 v34, v0, 1, 3
    v_lshrrev_b32 v35, 5, v0
    v_xor_b32 v34, v34, v35
    v_lshlrev_b32 v34, 4, v34
    v_lshl_add_u32 v33, v33, 7, v34
    v_add_u32 v{vSR}, s{sM0S}, v33
    v_xor_b32 v{vSR+1}, 32, v{vSR}
    v_xor_b32 v{vSR+2}, 64, v{vSR}
    v_xor_b32 v{vSR+3}, 0x60, v{vSR}
    s_lshl_b32 s3, s{sR}, 18
    s_lshl_b32 s7, s{sW}, 10
    s_add_u32 s3, s3, s7
    s_lshl_b32 s6, s{sP0}, 17
    s_lshl_b32 s7, s{sW}, 15
    s_add_u32 s6, s6, s7''')
    for i in range(8):
        a(f'''s_lshl_b32 s{sZO+i}, s{sSP+i}, 5
        s_add_u32 s{sZO+i}, s{sZO+i}, s6
        s_add_u32 s{sSP+i}, s{sSP+i}, s3''')
    c0 = -2.0*math.sqrt(2.0/math.pi)*math.log2(math.e)
    a(f'''s_mov_b32 s{sGC}, {H(c0*0.044715)}
    s_mov_b32 s{sGC+1}, {H(c0)}
    s_mov_b32 s{sONE}, 0x3f803f80
    s_mov_b32 s{sLO}, 0x00003f80
    s_mov_b32 s{sHI}, 0x3f800000
    s_mov_b32 s{sCNT}, 0
    s_mov_b32 s{sMA}, 0xaaaaaaaa
    s_mov_b32 s{sMA+1}, 0xaaaaaaaa
    s_mov_b32 s{sMC}, 0xcccccccc
    s_mov_b32 s{sMC+1}, 0xcccccccc''')
    stamp(a, 'ad')
    a(f'''s_lshl_b32 s3, s{sT}, 4
    s_add_u32 s3, s3, 1
    v_add_u32 v33, s3, v27
    v_cvt_f32_u32 v33, v33
    v_mul_f32 v33, {H(1/512)}, v33''')
    for sg in range(4):
        a(f'''s_lshl_b32 s3, s{sA}, 1
        s_add_u32 s3, s3, s{sROT}
        s_add_u32 s3, s3, {sg//2}
        s_and_b32 s3, s3, 7
        s_lshl_b32 s3, s3, 6
        s_add_u32 s3, s3, {32*(sg%2)}
        v_lshl_add_u32 v34, v32, 3, s3
        v_cvt_f32_u32 v34, v34
        v_mul_f32 v34, v34, v33
        v_fract_f32 v48, v34''')
        for i in range(1, 8): a(f'v_add_f32 v{48+i}, v{47+i}, v33')
        for i in range(8): a(f'v_cos_f32 v{56+i}, v{48+i}')
        for i in range(8): a(f'v_sin_f32 v{64+i}, v{48+i}')
        for i in range(8): a(f'v_cvt_pk_bf16_f32 v{72+i}, v{56+2*i}, v{57+2*i}')
        for i in range(8): a(f'v_accvgpr_write_b32 a{224+sg*8+i}, v{72+i}')
    stamp(a, 1)
    a(f'''s_and_b32 s3, s{sG}, 1
    s_lshl_b32 s3, s3, 5
    s_lshl_b32 s7, s{sW}, 6
    s_add_u32 s3, s3, s7
    s_add_u32 s3, s3, {L_MISC}
    v_lshl_add_u32 v33, v24, 2, s3
    v_xor_b32 v34, 32, v33''')
    def red8(a, r):
        a(f'''v_add_f32_dpp v{r}, v{r}, v{r} quad_perm:[1,0,3,2] row_mask:0xf bank_mask:0xf
        v_add_f32_dpp v{r}, v{r}, v{r} quad_perm:[2,3,0,1] row_mask:0xf bank_mask:0xf
        v_add_f32_dpp v{r}, v{r}, v{r} row_half_mirror row_mask:0xf bank_mask:0xf''')
    for rs in range(2):
        a.cmt(f'LN rowset {rs}')
        X = XRAW + rs*32
        a('v_mov_b32 v35, 0\n v_mov_b32 v36, 0')
        for i in range(8):
            if i % 2 == 0: a.wait(vm=xt[rs, i+1])
            for k in range(4): a(f'v_dot2c_f32_bf16 v35, s{sONE}, v{X+4*i+k}')
        stamp(a, f'x{rs}')
        red8(a, 35)
        a(f'v_mul_f32 v35, {H(-1/512)}, v35')
        for i in range(9):
            if i < 8:
                for k in range(4):
                    t = 40 + (i % 2)*8 + 2*k
                    a(f'v_dot2_f32_bf16 v{t}, v{X+4*i+k}, s{sLO}, v35\n v_dot2_f32_bf16 v{t+1}, v{X+4*i+k}, s{sHI}, v35')
            if i > 0:
                j = i-1
                for k in range(4):
                    t = 40 + (j % 2)*8 + 2*k
                    a(f'v_cvt_pk_bf16_f32 v{X+4*j+k}, v{t}, v{t+1}')
                a(f'ds_write_b128 v{vXW+rs}, {V(X+4*j,4)} offset:{8192*j}')
        for k in range(32): a(f'v_dot2c_f32_bf16 v36, v{X+k}, v{X+k}')
        red8(a, 36)
        a(f'''v_mov_b32 v37, {H(1e-5)}
        v_fmac_f32 v37, {H(1/512)}, v36
        v_rsq_f32 v37, v37
        ds_write_b32 v{33+rs}, v37''')
    stamp(a, 2)
    vR1A, vR1B, vTW, vTR = vXG, vXG+1, vXW, vXW+1
    a(f'''s_lshl_b32 s3, s{sA}, 7
    s_add_u32 s3, s3, {L_MISC}
    v_lshl_add_u32 v{vR1A}, v32, 4, s3
    v_lshl_add_u32 v{vR1B}, v27, 2, s3''')
    SLOT = lambda k: (k+2) % 3
    bg = []
    GAP = cfg.get('gap', 60)
    def mk_dma(k, p):
        def f(a):
            if p == 0 and k >= 3: a.wait(lg=a.tok['sr', k-3])
            if k == 8: a(f'v_add_u32 v{vSG+p}, 0x20000, v{vSG+p}')
            a.tok['sd', k] = a.dma((f's{sM0S}', SLOT(k)*16384), f'buffer_load_dwordx4 v{vSG+p}, {srd(SWSP)}, s{sSP+k%8} offen offset:{1024*p} lds')
        return (f, GAP)
    def mk_rd(k):
        def f(a):
            a.wait(vm=a.tok['sd', k])
            for q in range(4):
                r = ((k % 8)*4+q)*8 + (k//8)*4
                a.tok['sr', k] = a.one(f'ds_read_b128 {A(r,4)}, v{vSR+q} offset:{SLOT(k)*16384}')
        return (f, 0)
    for k in range(16):
        for p in range(4):
            bg.append(mk_dma(k, p))
            if p == 1 and k >= 2: bg.append(mk_rd(k-2))
    bg.append(mk_rd(14)); bg.append(mk_rd(15))
    nsp = len(bg)
    vOG = vXR
    def wo_issue(a, k):
        a(f's_add_u32 s3, s{sT+2}, {KORD[k]*32768}')
        a.tok['wo', k] = a.dma((f's{sM0O}', ((k+4) % 22)*4096), f'buffer_load_dwordx4 v{vOG}, {srd(SWOUT)}, s3 offen lds')
    NEARLY = cfg.get('nearly', 0)
    a.bg = bg
    def w_reads(k):
        ops = []
        sl = k % NSLOT; ar = vWR + (sl >= 3); base = (sl % 3)*12288
        for sg in range(2):
            if k < 8:
                for mt in range(2):
                    s_ = 2*k+sg
                    ops.append(f'ds_read_b128 {V(XF+(s_*2+mt)*4,4)}, v{vXR+sg} offset:{s_*4096+mt*1024}')
            for j in range(3):
                for u in range(2):
                    ops.append(f'ds_read_b64_tr_b16 {V(WB+(k%2)*24+(sg*3+j)*4+2*u,2)}, v{ar} offset:{base+sg*6144+u*768+j*64}')
        return ops
    def gemm_iter(a, k, extra=()):
        a.cmt(f'gemm iter {k}')
        on = a.bg_on; a.bg_on = False
        a.wait(vm=wt.get(k+1), lg=a.tok['wr', k])
        a('s_barrier')
        stamp(a, f'g{k}')
        a.bg_on = on
        fill = [(lambda a, t=t: a.tok.__setitem__(('wr', k+1), a.one(t))) for t in (w_reads(k+1) if k < 15 else [])]
        late = [(lambda a, p=p: w_issue(a, k+NSLOT, p)) for p in range(3)] if k+NSLOT < 16 else []
        late += list(extra)
        n = 0
        for sg in range(2):
            for j in range(3):
                for mt in range(2):
                    x = V(XF+(((2*k+sg) % 16)*2+mt)*4, 4); w = V(WB+(k%2)*24+(sg*3+j)*4, 4)
                    acc = V((ACC2 if k < 8 else ACC1)+(j*2+mt)*4, 4)
                    c = '0' if (k % 8 == 0 and sg == 0) else acc
                    a(f'v_mfma_f32_16x16x32_bf16 {acc}, {x}, {w}, {c}' if k < 8 else f'v_mfma_f32_16x16x32_bf16 {acc}, {w}, {x}, {c}')
                    n += 1
                    if fill:
                        for _ in range(2):
                            if fill: fill.pop(0)(a)
                    elif late: late.pop(0)(a)
        for f in late: f(a)
    a.wait(vm=wt[0], lg=a.lg_n)
    a('s_barrier')
    for t in w_reads(0): a.tok['wr', 0] = a.one(t)
    a(f'''s_lshl_b32 s3, s{sB}, 14
    v_add_u32 v{vTR}, s3, v{vL16}
    s_lshl_b32 s7, s{sA}, 13
    v_add_u32 v{vTW}, s7, v{vTR}''')
    def dbg_store(a):
        a(f'''s_lshl_b32 s3, s{sR}, 3
        s_add_u32 s3, s3, s{sG}
        s_cmp_eq_u32 s{sW}, 0
        s_cselect_b32 s3, s3, {OOB}
        v_mov_b32 v24, 1
        v_mov_b32 v25, 0
        buffer_store_byte v24, v25, {srd(SDBG)}, s3 offen sc1''')
    RV = 24
    for k in range(8):
        extra = []
        if k == 5:
            assert a.tok['clr'] <= wt[6]
            extra = [dbg_store]
        if k == 7:
            extra = [(lambda a, q=q: a(f'ds_write_b128 v{vTW}, {A(224+q*4,4)} offset:{q*1024}')) for q in range(8)]
            extra += [(lambda a, mt=mt: a.tok.__setitem__('r1', a.one(f'ds_read_b128 {V(ACC1+4*mt,4)}, v{vR1A} offset:{64*mt}'))) for mt in range(2)]
        gemm_iter(a, k, extra)
    stamp(a, 3)
    a.bg_on = True; a.bg_next = 0
    def gelu_tile(a, acc, tmp, rop):
        for p in range(4): a(f'v_pk_mul_f32 {V(acc+2*p,2)}, {V(acc+2*p,2)}, {rop(p)}')
        for p in range(4): a(f'v_pk_mul_f32 {V(tmp+2*p,2)}, {V(acc+2*p,2)}, {V(acc+2*p,2)}')
        for p in range(4): a(f'v_pk_fma_f32 {V(tmp+2*p,2)}, {V(tmp+2*p,2)}, {S(sGC,2)}, {S(sGC,2)} op_sel:[0,0,1] op_sel_hi:[1,0,1]')
        for p in range(4): a(f'v_pk_mul_f32 {V(tmp+2*p,2)}, {V(tmp+2*p,2)}, {V(acc+2*p,2)}')
        for p in range(8): a(f'v_exp_f32 v{tmp+p}, v{tmp+p}')
        for p in range(4): a(f'v_pk_add_f32 {V(tmp+2*p,2)}, {V(tmp+2*p,2)}, 1.0 op_sel_hi:[1,0]')
        for p in range(8): a(f'v_rcp_f32 v{tmp+p}, v{tmp+p}')
        for p in range(4): a(f'v_pk_mul_f32 {V(acc+2*p,2)}, {V(acc+2*p,2)}, {V(tmp+2*p,2)}')
    a.wait(lg=a.tok['r1'])
    TM = WB+24; SS = ACC1+8; QQ = ACC1+16
    for j in range(3):
        if j:
            for p in range(4): a(f'v_pk_mul_f32 {V(ACC1+2*p,2)}, {V(ACC1+2*p,2)}, {S(sVAL,2)} op_sel:[0,{j-1}] op_sel_hi:[1,{j-1}]')
        y = ACC2+8*j
        gelu_tile(a, y, TM, lambda p: V(ACC1+2*p, 2))
        for p in range(4):
            if j == 0: a(f'v_pk_mul_f32 {V(QQ+2*p,2)}, {V(y+2*p,2)}, {V(y+2*p,2)}')
            else: a(f'v_pk_fma_f32 {V(QQ+2*p,2)}, {V(y+2*p,2)}, {V(y+2*p,2)}, {V(QQ+2*p,2)}')
            if j == 1: a(f'v_pk_add_f32 {V(SS+2*p,2)}, {V(y+2*p,2)}, {V(ACC2+2*p,2)}')
            if j == 2: a(f'v_pk_add_f32 {V(SS+2*p,2)}, {V(y+2*p,2)}, {V(SS+2*p,2)}')
    for i in range(8): a(f'v_add_f32_dpp v{SS+i}, v{SS+i}, v{SS+i} row_ror:8 row_mask:0xf bank_mask:0x3')
    for i in range(8): a(f'v_add_f32_dpp v{SS+i}, v{QQ+i}, v{QQ+i} row_ror:8 row_mask:0xf bank_mask:0xc')
    for i in range(4): a(f'v_add_f32_dpp v{SS+i}, v{SS+i}, v{SS+i} row_half_mirror row_mask:0xf bank_mask:0x5')
    for i in range(4): a(f'v_add_f32_dpp v{SS+i}, v{SS+4+i}, v{SS+4+i} row_half_mirror row_mask:0xf bank_mask:0xa')
    for i in range(4): a(f'v_add_f32_dpp v{SS+i}, v{SS+i}, v{SS+i} quad_perm:[1,0,3,2] row_mask:0xf bank_mask:0xf')
    for i in range(4): a(f'v_add_f32_dpp v{SS+i}, v{SS+i}, v{SS+i} quad_perm:[2,3,0,1] row_mask:0xf bank_mask:0xf')
    a(f'''v_cndmask_b32 v{SS}, v{SS}, v{SS+1}, {S(sMA,2)}
    v_cndmask_b32 v{SS+2}, v{SS+2}, v{SS+3}, {S(sMA,2)}
    v_cndmask_b32 v24, v{SS}, v{SS+2}, {S(sMC,2)}
    buffer_store_dword v24, v{vSTA}, {srd(SWS)}, s{sSTST} offen sc1''')
    stamp(a, 4)
    vBS = 28
    def misc1(a):
        a(f'''v_lshrrev_b32 v24, 3, v0
        v_bfe_u32 v25, v0, 4, 1
        s_lshl_b32 s3, s{sB}, 1
        v_add_u32 v25, s3, v25
        v_lshlrev_b32 v25, 1, v25
        v_and_b32 v30, 7, v0
        v_xor_b32 v25, v25, v30
        v_lshlrev_b32 v25, 4, v25
        s_lshl_b32 s3, s{sW}, 13
        v_lshl_add_u32 v25, v24, 10, v25
        v_add_u32 v{vOG}, s3, v25
        s_lshl_b32 s{sT+2}, s{sG}, 7''')
    def misc2(a):
        a(f'''v_and_b32 v24, 12, v0
        v_and_b32 v25, 15, v0
        v_add_u32 v24, v24, v25
        v_lshlrev_b32 v{vXR+1}, 1, v24
        s_lshl_b32 s3, s{sR}, 7
        s_lshl_b32 s7, s{sA}, 6
        s_add_u32 s3, s3, s7
        buffer_load_short_d16_hi v{vBS}, v{vXR+1}, {srd(SBSP)}, s3 offen
        buffer_load_short_d16_hi v{vBS+1}, v{vXR+1}, {srd(SBSP)}, s3 offen offset:8''')
    def dbg_load(a):
        a(f'v_lshlrev_b32 v24, 2, v0')
        a.tok['dbg'] = a.one(f'buffer_load_dword v30, v24, {srd(SDBG)}, 0 offen sc1')
    for k in range(8, 16):
        extra = []
        if k == 10: extra = [misc1]
        if k == 11: extra = [misc2]
        if k == 13: extra = [dbg_load]
        if k == 15:
            extra = [(lambda a, mt=mt: a.tok.__setitem__('r1', a.one(f'ds_read_b32 v{26+mt}, v{vR1B} offset:{64*mt}'))) for mt in range(2)]
        gemm_iter(a, k, extra)
    stamp(a, 5)
    a.bg_on = False
    a.wait(vm=a.tok['dbg'])
    a.label('L_dbg_chk')
    a('v_cmp_ne_u32 vcc, 0x01010101, v30\n s_cbranch_vccnz L_dbg_retry')
    a.label('L_dbg_ok', keep_m0=True)
    SL = WB
    def st_loads(a):
        for j in range(4): a.tok['st'] = a.one(f'buffer_load_dwordx4 {V(SL+4*j,4)}, v{vL16}, {srd(SWS)}, s{sSTLD} offen offset:{1024*j} sc1')
    a.bg_on = True
    a.wait(lg=a.tok['r1'])
    STPOS = cfg.get('stpos', 1)
    for j in range(3):
        if j == STPOS: st_loads(a)
        if j: a(f'v_pk_mul_f32 v[26:27], v[26:27], {S(sVAL,2)} op_sel:[0,{j-1}] op_sel_hi:[1,{j-1}]')
        gelu_tile(a, ACC1+8*j, TM, lambda p: f'v[26:27] op_sel:[0,{p//2}] op_sel_hi:[1,{p//2}]')
    if STPOS == 3: st_loads(a)
    stamp(a, 6)
    a.bg_on = False
    a.wait(vm=a.tok['st'])
    a.label('L_st_chk')
    a(f'''v_pk_add_f32 {V(SL,2)}, {V(SL,2)}, {V(SL+4,2)}
    v_pk_add_f32 {V(SL+2,2)}, {V(SL+2,2)}, {V(SL+6,2)}
    v_pk_add_f32 {V(SL+8,2)}, {V(SL+8,2)}, {V(SL+12,2)}
    v_pk_add_f32 {V(SL+10,2)}, {V(SL+10,2)}, {V(SL+14,2)}
    v_pk_add_f32 {V(SL,2)}, {V(SL,2)}, {V(SL+8,2)}
    v_pk_add_f32 {V(SL+2,2)}, {V(SL+2,2)}, {V(SL+10,2)}
    v_permlane32_swap_b32 v{SL}, v{SL+2}
    v_permlane32_swap_b32 v{SL+1}, v{SL+3}
    v_pk_add_f32 {V(SL,2)}, {V(SL,2)}, {V(SL+2,2)}
    v_permlane16_swap_b32 v{SL}, v{SL+1}
    v_add_f32 v{SL}, v{SL}, v{SL+1}
    v_cmp_u_f32 vcc, v{SL}, v{SL}
    s_cbranch_vccnz L_st_retry''')
    a.label('L_st_ok')
    a.bg_on = True
    RS = SL+8; NB = SL+16
    a(f'''v_mul_f32 v{SL}, {H(1/688)}, v{SL}
    v_mul_f32 v{SL+2}, v{SL}, v{SL}
    v_sub_f32_dpp v{SL+1}, v{SL}, v{SL+2} row_ror:8 row_mask:0xf bank_mask:0xf
    v_max_f32 v{SL+1}, 0, v{SL+1}
    v_add_f32 v{SL+1}, {H(1e-5)}, v{SL+1}
    v_rsq_f32 v{SL+1}, v{SL+1}
    v_mul_f32_e64 v{SL+2}, -v{SL}, v{SL+1}''')
    for i in range(8): a(f'v_mov_b32_dpp v{RS+i}, v{SL+1} row_newbcast:{i} row_mask:0xf bank_mask:0xf')
    for i in range(8): a(f'v_mov_b32_dpp v{NB+i}, v{SL+2} row_newbcast:{i} row_mask:0xf bank_mask:0xf')
    PK = SL+24
    for j in range(3):
        y = ACC2+8*j
        for p in range(4): a(f'v_pk_fma_f32 {V(y+2*p,2)}, {V(y+2*p,2)}, {V(RS+2*p,2)}, {V(NB+2*p,2)}')
        for p in range(4): a(f'v_cvt_pk_bf16_f32 v{PK+4*j+p}, v{y+2*p}, v{y+2*p+1}')
        a(f'buffer_store_dwordx4 {V(PK+4*j,4)}, v{vZS}, {srd(SWS)}, s{sZST+j} offen sc1')
    stamp(a, 7)
    DL = lambda pq, mt: ACC2 + (pq*2+mt)*4
    DH = lambda pq, mt: (48 if pq == 0 else 116) + mt*4
    tr = {}
    def t_read(sg):
        for pq in range(2): tr[sg] = a.one(f'ds_read_b128 {V(WB+(sg%3)*8+pq*4,4)}, v{vTR} offset:{sg*2048+pq*1024}')
    t_read(0); t_read(1)
    for sg in range(8):
        a.wait(lg=tr[sg])
        n = 0
        for hf in range(2):
            for pq in range(2):
                for mt in range(2):
                    acc = V((DH if hf else DL)(pq, mt), 4)
                    a(f'v_mfma_f32_16x16x32_bf16 {acc}, {V(XF+((sg+8*hf)*2+mt)*4,4)}, {V(WB+(sg%3)*8+pq*4,4)}, {acc if sg else 0}')
                    n += 1
                    if n == 1 and sg+2 < 8: t_read(sg+2)
                    if n == 2 and sg == 6:
                        for mt2 in range(2): a.tok['r1'] = a.one(f'ds_read_b128 {V(104+4*mt2,4)}, v{vR1A} offset:{64*mt2}')
                    if n == 3 and sg == 7:
                        a(f'v_cndmask_b32 v24, -1.0, 1.0, {S(sMA,2)}')
    a.wait(lg=a.tok['r1'])
    for pq in range(2):
        for p in range(4): a(f'v_pk_fma_f32 {V(DL(pq,0)+2*p,2)}, {V(DH(pq,0)+2*p,2)}, v[24:25], {V(DL(pq,0)+2*p,2)} op_sel_hi:[1,0,1]')
        for p in range(4): a(f'v_pk_mul_f32 {V(DL(pq,0)+2*p,2)}, {V(DL(pq,0)+2*p,2)}, {V(104+2*p,2)}')
        for p in range(4): a(f'v_cvt_pk_bf16_f32 v{WB+4*pq+p}, v{DL(pq,0)+2*p}, v{DL(pq,0)+2*p+1}')
        a(f'buffer_store_dwordx4 {V(WB+4*pq,4)}, v{vL16}, {srd(SWS)}, s{sPQST} offen offset:{1024*pq} sc1')
    stamp(a, 8)
    vZ = (vL16, vXG, vXG+1); vRW = vXW; vRR = vXW+1; vPR = vXR+1
    a(f'''v_add_u32 v{vZ[1]}, 0x20000, v{vL16}
    v_add_u32 v{vZ[2]}, 0x40000, v{vL16}
    s_lshl_b32 s3, s{sW}, 13
    s_add_u32 s3, s3, {L_RED}
    v_add_u32 v{vRW}, s3, v{vL16}
    s_lshl_b32 s3, s{sW}, 11
    s_add_u32 s3, s3, {L_RED}
    v_lshrrev_b32 v24, 4, v0
    v_lshl_add_u32 v24, v24, 8, s3
    v_add_u32 v{vRR}, v24, v{vL16}
    v_lshrrev_b32 v24, 2, v0
    v_lshlrev_b32 v24, 11, v24
    v_bfe_u32 v25, v0, 1, 1
    v_lshl_add_u32 v{vPR}, v25, 8, v24
    s_add_u32 s{sT+1}, s{sP0}, s{sNP}
    s_sub_u32 s{sT+1}, s{sT+1}, 1
    s_lshl_b32 s{sT+1}, s{sT+1}, 17
    s_lshl_b32 s3, s{sW}, 15
    s_add_u32 s{sT+1}, s{sT+1}, s3''')
    a.bg_on = False
    a(f's_cmp_eq_u32 s{sNP}, 2\n s_cbranch_scc1 L_pathB')
    b = a.fork()
    slow = []
    from gen2 import tail
    env = dict(globals()); env.update(locals())
    tail(a, 3, env)
    b.label('L_pathB')
    tail(b, 2, env)
    r = Asm(); r.out = a.out
    r.label('L_dbg_retry')
    r(f'buffer_load_dword v30, v24, {srd(SDBG)}, 0 offen sc1\n s_waitcnt vmcnt(0)')
    retry(r, 'L_dbg_chk', 'L_dbg_ok')
    r.label('L_st_retry')
    r(f's_cmp_gt_u32 s{sCNT}, {LIMIT}\n s_cbranch_scc1 L_st_ok\n s_add_u32 s{sCNT}, s{sCNT}, 1')
    st_loads(r); r('s_waitcnt vmcnt(0)\n s_branch L_st_chk')
    for f in slow: f(r)
    r.label('L_end'); r('s_endpgm')
    r.raw('L_codeend:')
    hdr = open('parallel_sum__spectral_fnet__mixer_gmlp__prompt.s.ref').read().split('; @launch')[0] if cfg.get('hdr', True) else ''
    txt = hdr + f'''; @launch grid=(256,1,1) block=(256,1,1) lds=163840
.amdgcn_target "amdgcn-amd-amdhsa--gfx950"
.text
.globl {KN}
.p2align 8
.type {KN},@function
{KN}:
''' + '\n'.join(a.out) + f'''
.section .rodata,"a"
.p2align 6
.amdhsa_kernel {KN}
  .amdhsa_next_free_vgpr 512
  .amdhsa_next_free_sgpr 102
  .amdhsa_accum_offset 256
  .amdhsa_group_segment_fixed_size 0
  .amdhsa_kernarg_size 104
  .amdhsa_user_sgpr_count 2
  .amdhsa_user_sgpr_kernarg_segment_ptr 1
  .amdhsa_system_sgpr_workgroup_id_x 1
.end_amdhsa_kernel
'''
    return txt
if __name__ == '__main__':
    cfg = {}
    for kv in sys.argv[2:]:
        k, v = kv.split('='); cfg[k] = int(v) if v.lstrip('-').isdigit() else v
    open(sys.argv[1], 'w').write(gen(cfg))
```

```python
KN = "parallel_sum__spectral_fnet__mixer_gmlp__prompt_kernel"
def header(grid, block, lds):
    return f"""; @launch grid=({grid},1,1) block=({block},1,1) lds={lds}
.amdgcn_target "amdgcn-amd-amdhsa--gfx950"
.text
.globl {KN}
.p2align 8
.type {KN},@function
{KN}:
"""
def footer(vgpr=256, accum=256, sgpr=102):
    return f"""
s_endpgm
.section .rodata,"a"
.p2align 6
.amdhsa_kernel {KN}
  .amdhsa_next_free_vgpr {vgpr}
  .amdhsa_next_free_sgpr {sgpr}
  .amdhsa_accum_offset {accum}
  .amdhsa_group_segment_fixed_size 0
  .amdhsa_kernarg_size 104
  .amdhsa_user_sgpr_count 2
  .amdhsa_user_sgpr_kernarg_segment_ptr 1
  .amdhsa_system_sgpr_workgroup_id_x 1
.end_amdhsa_kernel
"""
if __name__ == '__main__':
    s = header(256, 256, 0)
    NCH = 12
    s += """
    s_memtime s[40:41]
    s_memrealtime s[90:91]
    s_load_dwordx2 s[4:5], s[0:1], 96
    s_waitcnt lgkmcnt(0)
    s_mov_b32 s8, s4
    s_mov_b32 s9, s5
    s_mov_b32 s10, 0x10000000
    s_mov_b32 s11, 0x00020000
    s_mov_b32 s20, 0
    v_mov_b32 v1, 0
    v_mov_b32 v2, 0
    v_mov_b32 v3, 0
L_loop:
"""
    for c in range(NCH):
        s += f"    s_memtime s[{42+2*c}:{43+2*c}]\n"
        for i in range(512):
            s += "    v_add3_u32 v1, v2, v3, v1\n"
    s += f"    s_memtime s[{42+2*NCH}:{43+2*NCH}]\n"
    s += "    s_waitcnt lgkmcnt(0)\n"
    s += """
    v_lshrrev_b32 v4, 6, v0
    s_lshl_b32 s21, s2, 2
    v_add_u32 v4, s21, v4
    v_lshlrev_b32 v4, 1, v4
    v_add_u32 v4, s20, v4
    v_lshlrev_b32 v4, 7, v4
"""
    for c in range(NCH+2):
        s += f"    v_mov_b32 v5, s{40+2*c}\n    buffer_store_dword v5, v4, s[8:11], 0 offen offset:{4*c}\n"
    s += f"    v_mov_b32 v5, s90\n    buffer_store_dword v5, v4, s[8:11], 0 offen offset:{4*(NCH+2)}\n"
    s += """
    s_add_u32 s20, s20, 1
    s_cmp_lt_u32 s20, 2
    s_cbranch_scc1 L_loop
    s_waitcnt vmcnt(0)
"""
    s += footer()
    open('mb1.s','w').write(s)
```

```python
from gen_mb1 import header, footer
s = header(64, 256, 65536)
s += """
    s_load_dwordx2 s[8:9], s[0:1], 96
    s_load_dwordx2 s[12:13], s[0:1], 0
    s_mov_b32 s10, 0x10000000
    s_mov_b32 s11, 0x00020000
    s_mov_b32 s14, 2097152
    s_mov_b32 s15, 0x00020000
    v_lshrrev_b32 v5, 6, v0
    v_lshlrev_b32 v1, 4, v0
    v_readfirstlane_b32 s33, v5
    v_and_b32 v6, 63, v0
    v_lshlrev_b32 v7, 3, v6
    v_lshlrev_b32 v6, 4, v6
    s_lshl_b32 s34, s33, 12
    s_mov_b32 m0, s34
    s_lshl_b32 s35, s2, 2
    s_add_u32 s35, s35, s33
    s_lshl_b32 s35, s35, 8
    s_lshl_b32 s36, s35, 6
    s_add_u32 s36, s36, 0x400000
    s_mov_b32 s30, 0
    s_waitcnt lgkmcnt(0)
L_loop:
"""
VAL = lambda n: ["v_fma_f32 v%d, v2, v3, v4" % (20+i%16) for i in range(n)]
M16 = lambda n: ["v_mfma_f32_16x16x32_bf16 v[%d:%d], v[8:11], v[12:15], v[%d:%d]" % (64+4*(i%4),67+4*(i%4),64+4*(i%4),67+4*(i%4)) for i in range(n)]
M32 = lambda n: ["v_mfma_f32_32x32x16_bf16 v[%d:%d], v[8:11], v[12:15], v[%d:%d]" % (64+16*(i%2),79+16*(i%2),64+16*(i%2),79+16*(i%2)) for i in range(n)]
cnt = [0]
def DMA():
    cnt[0] += 1; return ["s_add_u32 s20, s20, 4096", "buffer_load_dwordx4 v1, s[12:15], s20 offen lds"]
def LD():
    cnt[0] += 1; return ["s_add_u32 s20, s20, 4096", "buffer_load_dwordx4 v[%d:%d], v1, s[12:15], s20 offen" % (128+4*(cnt[0]%16), 131+4*(cnt[0]%16))]
def ST(): return ["buffer_store_dwordx4 v[8:11], v6, s[8:11], s36 offen sc1"]
def NO(): return ["s_add_u32 s20, s20, 4096"]
B = ["s_barrier"]
W8 = ["s_waitcnt vmcnt(8)"]
def RD(n, nb=0):
    o = []
    for i in range(n):
        if nb and i % 8 < 2: o.append("ds_read_b128 v[%d:%d], v6 offset:%d" % (232+4*(i%4), 235+4*(i%4), 32768+1024*i))
        else: o.append("ds_read_b64_tr_b16 v[%d:%d], v7 offset:%d" % (200+2*(i%16), 201+2*(i%16), 32768+512*i))
    return o
def mix(ms, rs, per):
    o = []
    for m in ms:
        o.append(m)
        for _ in range(per):
            if rs: o.append(rs.pop(0))
    return o
tests = []
L0 = ["s_waitcnt lgkmcnt(0)"]
def it(X, n, nb, xpos, barpos=0, per=2, bar=True, rd0=0):
    rs = RD(n, nb); o = []
    for i, m in enumerate(M16(12)):
        if i == 0: o += L0
        if i == barpos: o += W8 + (B if bar else [])
        o.append(m)
        if i in xpos: o += X()
        elif i >= rd0:
            for _ in range(per):
                if rs: o.append(rs.pop(0))
    return o + rs
for nm, X in (('no', NO), ('dma', DMA)):
    for n, nb in ((16, 1), (12, 0)):
        tests += [
         (f'late{n}+{nm}', lambda X=X, n=n, nb=nb: it(X, n, nb, (8,9,10))),
         (f'even{n}+{nm}', lambda X=X, n=n, nb=nb: it(X, n, nb, (0,4,8))),
         (f'even2_{n}+{nm}', lambda X=X, n=n, nb=nb: it(X, n, nb, (3,7,11))),
         (f'nobar_late{n}+{nm}', lambda X=X, n=n, nb=nb: it(X, n, nb, (8,9,10), bar=False)),
         (f'nobar_even{n}+{nm}', lambda X=X, n=n, nb=nb: it(X, n, nb, (3,7,11), bar=False)),
         (f'bar1_even2_{n}+{nm}', lambda X=X, n=n, nb=nb: it(X, n, nb, (4,8,11), barpos=1, rd0=1)),
         (f'per3_even2_{n}+{nm}', lambda X=X, n=n, nb=nb: it(X, n, nb, (3,7,11), per=3)),
         (f'per1_{n}+{nm}', lambda X=X, n=n, nb=nb: it(X, 9, nb, (3,7,11), per=1)),
         (f'nord_{n}+{nm}', lambda X=X, n=n, nb=nb: it(X, 0, nb, (3,7,11), per=1)),
        ]
for k, (n, f) in enumerate(tests):
    s += "    s_waitcnt vmcnt(0)\n    s_mov_b32 s20, 0\n    s_mov_b32 s31, 0\n    s_barrier\n    s_memtime s[40:41]\n    s_waitcnt lgkmcnt(0)\n"
    s += f"L_t{k}:\n"
    for r in range(4): s += ''.join('    '+x+'\n' for x in f())
    s += f"    s_add_u32 s31, s31, 1\n    s_cmp_lt_u32 s31, 8\n    s_cbranch_scc1 L_t{k}\n"
    s += f"    s_waitcnt lgkmcnt(0)\n    s_memtime s[42:43]\n    s_waitcnt lgkmcnt(0)\n    s_sub_u32 s42, s42, s40\n    v_mov_b32 v16, s42\n    v_mov_b32 v17, 0\n    buffer_store_dword v16, v17, s[8:11], s35 offen offset:{4*k}\n"
s += "    s_add_u32 s30, s30, 1\n    s_cmp_lt_u32 s30, 2\n    s_cbranch_scc1 L_loop\n    s_waitcnt vmcnt(0)\n"
s += footer(vgpr=512)
open('mb9.s', 'w').write(s)
open('mb9_names.txt', 'w').write(' '.join(n for n, f in tests))
```

```python
import re, copy
TRANS = ('v_exp_f32','v_log_f32','v_rcp_f32','v_rsq_f32','v_sqrt_f32','v_sin_f32','v_cos_f32')
RX = re.compile(r'(?<![A-Za-z_0-9])([vas])(?:(\d+)|\[(\d+):(\d+)\])(?![A-Za-z_0-9])')
def regs(tok):
    out = set()
    for m in RX.finditer(tok):
        k = m.group(1)
        if m.group(2) is not None: out.add((k, int(m.group(2))))
        else:
            for i in range(int(m.group(3)), int(m.group(4))+1): out.add((k, i))
    if re.search(r'\bvcc\b', tok): out.add(('s', 'vcc'))
    if re.search(r'\bm0\b', tok): out.add(('s', 'm0'))
    return out
class Ins:
    def __init__(s, text):
        s.text = text
        p = text.split(None, 1); op = p[0]; rest = p[1] if len(p) > 1 else ''
        s.op = op
        ops = [o.strip() for o in re.split(r',(?![^\[]*\])', rest)] if rest else []
        if ops:
            last = ops[-1].split(None, 1); ops[-1] = last[0]; s.mods = last[1] if len(last) > 1 else ''
        else: s.mods = ''
        s.states = 1; s.dst = set(); s.src = set(); s.C = set(); s.AB = set(); s.data = set()
        s.mfma = op.startswith('v_mfma'); s.valu = op.startswith('v_') and not s.mfma
        s.vmem = op.startswith('buffer_') or op.startswith('global_'); s.ds = op.startswith('ds_')
        s.salu = op.startswith('s_')
        base = op.replace('_e32','').replace('_e64','').replace('_dpp','')
        s.base = base
        s.trans = base in TRANS; s.dot = base.startswith('v_dot'); s.dpp = op.endswith('_dpp')
        s.perm = base.startswith('v_permlane'); s.rdl = base in ('v_readfirstlane_b32','v_readlane_b32')
        s.dma = s.vmem and re.search(r'\blds\b', s.mods) is not None
        s.passes = 8 if '32x32x16' in op else 4
        if op == 's_nop': s.states = int(ops[0])+1
        R = [regs(o) for o in ops]
        U = lambda L: set().union(*L) if L else set()
        if s.mfma:
            s.dst = R[0]; s.AB = R[1] | R[2]; s.C = R[3]; s.src = s.AB | s.C
        elif s.valu:
            s.dst = R[0]; s.src = U(R[1:])
            if s.perm: s.dst = R[0] | R[1]; s.src = s.dst
            if s.dpp or base in ('v_dot2c_f32_bf16','v_fmac_f32','v_writelane_b32'): s.src = s.src | R[0]
            if base == 'v_dot2c_f32_bf16': s.C = R[0]; s.AB = U(R[1:])
            if base == 'v_dot2_f32_bf16': s.C = R[3]; s.AB = R[1] | R[2]
        elif s.vmem:
            if 'store' in op:
                s.src = U(R); s.data = R[1] if op.startswith('global') else R[0]
            elif s.dma: s.src = U(R) | {('s','m0')}
            else: s.dst = R[0]; s.src = U(R[1:])
        elif s.ds:
            if 'write' in op: s.src = U(R)
            else: s.dst = R[0]; s.src = U(R[1:])
        elif s.salu:
            if op.startswith(('s_cmp','s_cbranch','s_branch','s_waitcnt','s_barrier','s_nop','s_endpgm','s_setprio','s_sleep')): s.src = U(R)
            else: s.dst = R[0]; s.src = U(R[1:])
        s.wide = s.vmem and 'store' in op and ('x4' in op or 'x3' in op)
def vec(S): return {r for r in S if r[0] in 'va'}
def sca(S): return {r for r in S if r[0] == 's'}
def need(P, I):
    n = 0
    if P.valu:
        d = vec(P.dst)
        if I.mfma and d & I.src: n = max(n, 2)
        if (I.dpp or I.perm) and d & I.src: n = max(n, 2)
        if I.rdl and d & I.src: n = max(n, 1)
        if P.trans and (I.valu or I.ds or I.vmem) and d & I.src: n = max(n, 1)
        if P.dot and d & (I.src | I.dst):
            if not (I.base == P.base and not (d & I.AB)): n = max(n, 3)
        sd = sca(P.dst)
        if sd & I.src:
            if I.vmem: n = max(n, 5)
            elif I.valu: n = max(n, 4 if I.base in ('v_readlane_b32','v_writelane_b32') else 2)
            elif I.salu and not I.op.startswith('s_cbranch'): n = max(n, 1)
    if P.mfma:
        big = 12 if P.passes == 8 else 8
        if I.mfma:
            if P.dst & I.AB: n = max(n, big)
            if P.dst & I.C and not (P.dst == I.C and P.passes == I.passes): n = max(n, big-2)
            if P.dst & I.dst and not P.dst == I.dst: n = max(n, big)
        elif P.dst & (I.src | I.dst): n = max(n, big)
        if I.valu and P.C & I.dst: n = max(n, 7 if P.passes == 8 else 3)
    if P.salu and ('s','m0') in P.dst and I.dma: n = max(n, 1)
    if P.wide and P.data & I.dst: n = max(n, 2 if (I.valu or I.mfma) else 1)
    return n
class Asm:
    def __init__(s):
        s.out = []; s.hist = []; s.vm_n = 0; s.vm_done = 0; s.lg_n = 0; s.lg_done = 0
        s.m0 = None; s.t = 0; s.mf_free = 0; s.bg = []; s.bg_i = 0; s.bg_on = False; s.bg_next = 0; s.in_bg = False
        s.tok = {}; s.nops = 0
    def fork(s):
        o = Asm(); o.out = s.out
        for k in ('vm_n','vm_done','lg_n','lg_done','m0','t','mf_free','bg','bg_i','bg_on','bg_next'): setattr(o, k, getattr(s, k))
        o.hist = list(s.hist); o.tok = dict(s.tok); return o
    def raw(s, text): s.out.append(text)
    def cmt(s, text): s.out.append(f'    ; ---- {text} (t~{s.t})')
    def label(s, name, keep_m0=True):
        s.out.append(name + ':')
        if not keep_m0: s.m0 = None
    def __call__(s, text):
        for ln in text.strip().split('\n'):
            ln = ln.split(';')[0].strip()
            if ln: s.one(ln)
    def one(s, text):
        I = Ins(text)
        d = 0; pad = 0
        for P in reversed(s.hist):
            pad = max(pad, need(P, I) - d)
            d += P.states
            if d >= 12: break
        while pad > 0:
            k = min(pad, 8); s.emit(Ins(f's_nop {k-1}')); pad -= k; s.nops += k
        s.emit(I)
        tok = None
        if I.vmem: s.vm_n += 1; tok = s.vm_n
        elif I.ds: s.lg_n += 1; tok = s.lg_n
        if s.bg_on and not s.in_bg and s.t >= s.bg_next and s.bg_i < len(s.bg) and not (I.salu and ('s','m0') in I.dst):
            s.bg_step()
        return tok
    def emit(s, I):
        s.out.append('    ' + I.text); s.hist.append(I); s.hist = s.hist[-14:]
        if I.salu and ('s','m0') in I.dst: s.m0 = None
        if I.mfma:
            s.t = max(s.t, s.mf_free); s.mf_free = s.t + 4*I.passes; s.t += 8
        elif I.trans or I.perm: s.t += 8
        else: s.t += 4*I.states
    def bg_step(s):
        if s.bg_i >= len(s.bg): return
        s.in_bg = True
        f, gap = s.bg[s.bg_i]; s.bg_i += 1
        f(s); s.bg_next = s.t + gap
        s.in_bg = False
    def bg_flush(s, upto=None):
        while s.bg_i < (len(s.bg) if upto is None else upto): s.bg_step()
    def wait(s, vm=None, lg=None):
        p = []
        if vm is not None and vm > s.vm_done:
            n = min(s.vm_n - vm, 63); p.append(f'vmcnt({n})'); s.vm_done = s.vm_n - n
        if lg is not None and lg > s.lg_done:
            n = min(s.lg_n - lg, 15); p.append(f'lgkmcnt({n})'); s.lg_done = s.lg_n - n
        if p:
            b = s.in_bg; s.in_bg = True; s.one('s_waitcnt ' + ' '.join(p)); s.in_bg = b
    def waitall(s, vm=True, lg=True):
        p = []
        if vm: p.append('vmcnt(0)'); s.vm_done = s.vm_n
        if lg: p.append('lgkmcnt(0)'); s.lg_done = s.lg_n
        b = s.in_bg; s.in_bg = True; s.one('s_waitcnt ' + ' '.join(p)); s.in_bg = b
    def dma(s, m0, text, pre=None):
        b = s.in_bg; s.in_bg = True
        if s.m0 != m0:
            s.one(f's_add_u32 m0, {m0[0]}, {m0[1]}' if m0[1] else f's_mov_b32 m0, {m0[0]}')
            s.m0 = m0
        if pre: pre(s)
        s.in_bg = b
        return s.one(text)
def V(i, n=1): return f'v{i}' if n == 1 else f'v[{i}:{i+n-1}]'
def A(i, n=1): return f'a{i}' if n == 1 else f'a[{i}:{i+n-1}]'
def S(i, n=1): return f's{i}' if n == 1 else f's[{i}:{i+n-1}]'
```

```python
from asmlib import *
def tail(a, NP, env):
    globals().update({k: v for k, v in env.items() if not k.startswith('__') and k not in ('a', 'tail')})
    P = 'A' if NP == 3 else 'B'
    zt = dict(env['zt'])
    FL = []
    def F(text):
        for l in text.strip().split('\n'):
            l = l.strip()
            if l.startswith(('s_cselect', 'v_cndmask')): FL[-1] += '\n' + l
            else: FL.append(l)
    F(f'''v_add_u32 v{vZ[1]}, 0x20000, v{vL16}
    v_add_u32 v{vZ[2]}, 0x40000, v{vL16}
    s_lshl_b32 s3, s{sW}, 13
    s_add_u32 s3, s3, {L_RED}
    v_add_u32 v{vRW}, s3, v{vL16}
    s_lshl_b32 s3, s{sW}, 11
    s_add_u32 s3, s3, {L_RED}
    v_lshrrev_b32 v40, 4, v0
    v_lshl_add_u32 v40, v40, 8, s3
    v_add_u32 v{vRR}, v40, v{vL16}''')
    if NP == 2:
        F(f'''v_and_b32 v32, 31, v0
        v_cvt_f32_u32 v32, v32
        v_lshrrev_b32 v33, 5, v0
        s_lshl_b32 s3, s{sB}, 10
        v_add_u32 v36, s3, v{vL16}
        s_lshl_b32 s3, s{sW}, 12
        v_add_u32 v37, s3, v{vL16}
        s_lshl_b32 s3, s{sW}, 11
        v_add_u32 v38, s3, v{vL16}''')
        AR, CO, SI, PKD = 80, 88, 96, 104
        def args(kf, n0, steps):
            F(f'v_mul_f32 v34, {H(kf)}, v32\n {n0}\n v_cvt_f32_u32 v35, v35')
            for i, st in enumerate(steps):
                if st == 0: F(f'v_mul_f32 v{AR+i}, v35, v34')
                else: F(f'v_add_f32 v39, {H(float(st))}, v35\n v_mul_f32 v{AR+i}, v39, v34')
        args(1/32, f's_lshl_b32 s3, s{sB}, 4\n v_lshl_add_u32 v35, v33, 3, s3', range(8))
        for i in range(8): F(f'v_cos_f32 v{CO+i}, v{AR+i}')
        for i in range(8): F(f'v_sin_f32 v{SI+i}, v{AR+i}')
        for i in range(8): F(f'v_cvt_pk_bf16_f32 v{PKD+i}, v{CO+2*i}, v{CO+2*i+1}')
        for i in range(4): F(f'v_xor_b32 v{PKD+8+i}, 0x80008000, v{PKD+4+i}')
        for q in range(3): F(f'ds_write_b128 v36, {V(PKD+4*q,4)} offset:{2048*q}')
        args(1/2048, f's_lshl_b32 s3, s{sW}, 4\n v_lshl_add_u32 v35, v33, 2, s3', [0,1,2,3,8,9,10,11])
        for i in range(8): F(f'v_cos_f32 v{CO+i}, v{AR+i}')
        for i in range(8): F(f'v_sin_f32 v{SI+i}, v{AR+i}')
        for j in range(2):
            F(f'ds_write_b128 v37, {V(CO+4*j,4)} offset:{6144+j*2048}\n ds_write_b128 v37, {V(SI+4*j,4)} offset:{6144+j*2048+1024}')
        args(1/64, f's_lshl_b32 s3, s{sA}, 5\n s_add_u32 s3, s3, s{sB}\n v_lshl_add_u32 v35, v33, 2, s3', [0,2,8,10,16,18,24,26])
        for i in range(8): F(f'v_cos_f32 v{40+i}, v{AR+i}')
        for i in range(8): F(f'v_sin_f32_e64 v{48+i}, -v{AR+i}')
        for i in range(8): F(f'v_cvt_pk_bf16_f32 v{116+i}, v{40+2*i}, v{41+2*i}')
        for q in range(2): F(f'ds_write_b128 v38, {V(116+4*q,4)} offset:{22528+1024*q}')
    FL0 = FL; FL = []
    vX3, vO3, vY3 = vWG, vWG+1, vWG+2; vOR = vSG; vPQG, vPQW = vWR, vWR+1; vPQR, vYS = vZS, vSTA
    sX3, sHB, sYB, sYS, sY13, sPQL = sWO, sWO+1, sWO+2, sWO+3, sWO+4, sWO+5
    F(f'''v_and_b32 v40, 12, v0
    v_and_b32 v41, 15, v0
    v_add_u32 v40, v40, v41
    s_lshl_b32 s3, s{sA}, 5
    s_lshl_b32 s7, s{sB}, 2
    s_add_u32 s3, s3, s7
    v_add_u32 v40, s3, v40
    v_lshrrev_b32 v41, 4, v0
    v_lshlrev_b32 v42, 10, v40
    v_lshl_add_u32 v{vX3}, v41, 3, v42
    v_and_b32 v43, 1, v41
    v_lshl_add_u32 v42, v43, 5, v42
    v_lshrrev_b32 v44, 1, v41
    v_lshl_add_u32 v{vO3}, v44, 4, v42
    s_lshl_b32 s{sX3}, s{sR}, 16
    s_add_u32 s{sX3}, s{sX3}, s{sT+2}
    s_mul_i32 s{sHB}, s{sR}, 90112
    s_lshl_b32 s3, s{sW}, 10
    s_add_u32 s{sHB}, s{sHB}, s3
    s_add_u32 s{sHB}, s{sHB}, {HH}
    s_lshl_b32 s3, s{sG}, 6
    s_sub_u32 s7, 500, s3
    s_cmp_ge_u32 s{sG}, 4
    s_cselect_b32 s3, s7, s3
    s_cselect_b32 s7, -1, 0
    s_cselect_b32 s{sYS}, 0xfffff000, 0x1000
    s_lshl_b32 s3, s3, 12
    s_add_u32 s{sYB}, s3, {YY}
    s_mul_i32 s{sY13}, s{sYS}, 13
    s_lshl_b32 s3, s{sR}, 6
    v_add_u32 v40, s3, v40
    v_xor_b32 v40, s7, v40
    v_subrev_u32 v40, s7, v40
    v_and_b32 v40, 0x7ff, v40
    v_xor_b32 v42, s7, v41
    v_and_b32 v42, 3, v42
    v_lshlrev_b32 v42, 14, v42
    v_lshrrev_b32 v44, 6, v40
    v_lshl_add_u32 v42, v44, 7, v42
    v_and_b32 v44, 31, v40
    v_lshl_add_u32 v42, v44, 2, v42
    v_bfe_u32 v44, v40, 5, 1
    v_lshl_add_u32 v{vY3}, v44, 1, v42
    v_bfe_u32 v40, v0, 2, 2
    v_lshl_add_u32 v42, v41, 3, v40
    v_lshlrev_b32 v42, 7, v42
    v_lshrrev_b32 v44, 1, v40
    v_lshl_add_u32 v44, v43, 1, v44
    v_lshl_add_u32 v42, v44, 5, v42
    v_and_b32 v44, 3, v0
    v_lshl_add_u32 v42, v44, 3, v42
    v_add_u32 v{vOR}, {L_WO+40960}, v42
    v_xor_b32 v{vOR+1}, 32, v{vOR}
    v_xor_b32 v{vOR+2}, 64, v{vOR}
    v_xor_b32 v{vOR+3}, 0x60, v{vOR}'''.replace('s_cselect_b32 s%d, 0xfffff000, 0x1000' % sYS, f's_xor_b32 s{sYS}, s7, 0x1000\n s_sub_u32 s{sYS}, s{sYS}, s7'))
    if NP == 2:
        F(f'''s_and_b32 s3, s{sR}, 3
        s_lshl_b32 s3, s3, 6
        v_xor_b32 v42, s{sW}, v44
        v_lshl_add_u32 v42, v42, 4, s3
        v_lshrrev_b32 v32, 2, v0
        v_lshl_add_u32 v{vPQG}, v32, 8, v42
        s_sub_u32 s3, s{sG}, 6
        s_lshl_b32 s3, s3, 3
        s_lshr_b32 s7, s{sR}, 2
        s_add_u32 s3, s3, s7
        s_lshl_b32 s3, s3, 17
        s_lshl_b32 s7, s{sW}, 12
        s_add_u32 s3, s3, s7
        s_add_u32 s{sPQL}, s3, {PQ}
        s_lshl_b32 s3, s{sW}, 10
        s_add_u32 s3, s3, {L_RED}
        v_add_u32 v{vPQW}, s3, v{vL16}
        v_lshrrev_b32 v32, 5, v0
        v_lshl_add_u32 v42, v32, 3, v40
        v_lshlrev_b32 v42, 10, v42
        v_lshrrev_b32 v33, 1, v44
        v_lshl_add_u32 v33, v43, 1, v33
        v_lshl_add_u32 v42, v33, 6, v42
        v_xor_b32 v33, s{sW}, v40
        v_lshl_add_u32 v42, v33, 4, v42
        v_and_b32 v33, 1, v44
        v_lshl_add_u32 v42, v33, 3, v42
        v_add_u32 v{vPQR}, {L_RED}, v42
        v_and_b32 v33, 31, v0
        v_lshlrev_b32 v33, 2, v33
        v_lshl_add_u32 v{vYS}, v32, 8, v33
        s_sub_u32 s3, s{sG}, 6
        s_lshl_b32 s3, s3, 5
        s_add_u32 s3, s3, s{sR}
        s_lshl_b32 s3, s3, 2
        s_add_u32 s3, s3, s{sW}
        s_lshl_b32 s3, s3, 12
        s_add_u32 s{sYST}, s3, {YY+4096}''')
        vY0 = vY3
    else:
        vY0 = vWR
        F(f'''s_cmp_eq_u32 s{sG}, 0
        s_cselect_b32 s3, 16, 0
        v_mov_b32 v{vY0}, {OOB}
        v_cmp_le_u32 vcc, s3, v0
        v_cndmask_b32 v{vY0}, v{vY0}, v{vY3}, vcc''')
    FL1 = FL
    if NP == 3: FL0 += FL1; FL1 = []
    G = 32*NP
    ACC = lambda r: 224 if (NP-1-r) % 2 == 0 else 192
    a.wait(lg=a.lg_n)
    if NP == 2: a('s_barrier')
    TP = 80; HP = 112
    def red_ops(r, pk):
        W = [(lambda a, q=q: a.tok.__setitem__('rw', a.one(f'ds_write_b128 v{vRW}, {V(ACC(r)+4*q,4)} offset:{1024*q}'))) for q in range(8)]
        def bar(a): a.wait(lg=a.tok['rw']); a('s_barrier')
        Rd = [(lambda a, q=q: a.tok.__setitem__(('rr', q), a.one(f'ds_read_b128 {V(TP+4*q,4)}, v{vRR} offset:{(q//2)*8192+(q%2)*256}'))) for q in range(8)]
        C = []
        def op(t): C.append(lambda a: a(t))
        def add8(d, x, y):
            if pk:
                for p in range(4): op(f'v_pk_add_f32 {V(d+2*p,2)}, {V(x+2*p,2)}, {V(y+2*p,2)}')
            else:
                for p in range(8): op(f'v_add_f32 v{d+p}, v{x+p}, v{y+p}')
        C.append(lambda a: a.wait(lg=a.tok['rr', 3])); add8(TP, TP, TP+8)
        if pk:
            for p in range(4): op(f'v_pk_add_f32 {V(TP+2*p,2)}, {V(TP+2*p,2)}, {V(vBS,2)} op_sel:[0,{p//2}] op_sel_hi:[1,{p//2}]')
        else:
            for p in range(8): op(f'v_add_f32 v{TP+p}, v{TP+p}, v{vBS+p//4}')
        C.append(lambda a: a.wait(lg=a.tok['rr', 7])); add8(TP+16, TP+16, TP+24); add8(TP, TP, TP+16)
        if pk:
            for p in range(4): op(f'v_pk_mul_f32 {V(TP+2*p,2)}, {V(TP+2*p,2)}, {V(ACC1+8*r+2*p,2)}')
        else:
            for p in range(8): op(f'v_mul_f32 v{TP+p}, v{TP+p}, v{ACC1+8*r+p}')
        for p in range(4): op(f'v_cvt_pk_bf16_f32 v{HP+p}, v{TP+2*p}, v{TP+2*p+1}')
        op(f'v_permlane16_swap_b32 v{HP}, v{HP+2}'); op(f'v_permlane16_swap_b32 v{HP+1}, v{HP+3}')
        op(f'buffer_store_dwordx4 {V(HP,4)}, v{vHS}, {srd(SWS)}, s{sHST+r} offen sc1')
        return W, bar, Rd, C
    PQR = [32, 36, 40, 44, 48, 52, 116, 120]
    def pq_load(a, i):
        a(f's_add_u32 s5, s{sPQL}, {i*16384}')
        a.tok['pq'] = a.one(f'buffer_load_dwordx4 {V(PQR[i],4)}, v{vPQG}, {srd(SWS)}, s5 offen sc1')
    wol = list(range(NEARLY, 22))
    for r in range(NP):
        a.cmt(f'P2 round {r}')
        sched = {}
        def at(g, f): sched.setdefault(g, []).append(f)
        if r > 0:
            W, bar, Rd, C = red_ops(r-1, False)
            for q, f in enumerate(W): at(4+2*q, f)
            at(24, bar)
            for q, f in enumerate(Rd): at(24+q, f)
            for q, f in enumerate(C): at(34+q//2, f)
        if r: at(61, lambda a: (a.wait(lg=a.lg_n), a('s_barrier')))
        else:
            def sig2(a):
                assert a.vm_done >= a.tok['pqs']
                a('s_barrier'); dbg_store(a, 3)
            at(2*D, sig2)
        fl = FL0 if r == 0 else FL1 if r == 1 else []
        ng = 62 if r == 0 else 2*(32-D+1)-2
        for q, t in enumerate(fl): at(q*ng//len(fl), lambda a, t=t: a(t))
        if r == NP-1:
            def d2l(a):
                a('v_lshlrev_b32 v25, 2, v0')
                a.tok['dbg'] = a.one(f'buffer_load_dword v30, v25, {srd(SDBG)}, 0 offen sc1')
            def d2c(a):
                a.wait(vm=a.tok['dbg'])
                a.label(f'L_d2{P}_chk')
                a(f'v_and_b32 v30, 0x02020202, v30\n v_cmp_ne_u32 vcc, 0x02020202, v30\n s_cbranch_vccnz L_d2{P}_retry')
                a.label(f'L_d2{P}_ok')
            def d2r(s):
                s.label(f'L_d2{P}_retry')
                s(f'buffer_load_dword v30, v25, {srd(SDBG)}, 0 offen sc1\n s_waitcnt vmcnt(0)')
                retry(s, f'L_d2{P}_chk', f'L_d2{P}_ok')
            slow.append(d2r)
            at(1, d2l); at(2*D+1, d2c)
            assert 2*D+1 < 2*(32-D+1)
        MX = 26 + r % 2
        for i in range(32):
            gi = r*32+i
            a.wait(vm=zt[gi])
            if i == 1: a(f'v_max_u32 v{MX}, v{RG(gi-1)}, v{RG(gi)}')
            elif i % 2: a(f'v_max3_u32 v{MX}, v{RG(gi-1)}, v{RG(gi)}, v{MX}')
            for tt in range(2):
                acc = V(ACC(r)+16*tt, 16)
                a(f'v_mfma_f32_32x32x16_bf16 {acc}, {V(RG(gi),4)}, {A(i*8+4*tt,4)}, {acc if i else 0}')
                if tt == 0:
                    nx = gi+D-1
                    if nx < G: zt[nx] = zload(a, nx, RG(nx))
                    elif NP == 2 and nx-G < 8: pq_load(a, nx-G)
                    elif NP == 3 and wol: wo_issue(a, wol.pop(0))
                for f in sched.get(2*i+tt, []): f(a)
        a(f'v_cmp_eq_u32 vcc, -1, v{MX}\n s_cbranch_vccnz L_slow{P}{r}')
        a.label(f'L_ret{P}{r}')
        stamp(a, 11+r)
        def mk_slow(r=r, MX=MX):
            def f(s):
                s.label(f'L_slow{P}{r}')
                s(f's_cmp_gt_u32 s{sCNT}, {LIMIT}\n s_cbranch_scc1 L_ret{P}{r}\n s_add_u32 s{sCNT}, s{sCNT}, 1\n v_mov_b32 v{MX}, 0')
                for bb in range(4):
                    for q in range(8): zload(s, r*32+bb*8+q, TP+4*q)
                    s('s_waitcnt vmcnt(0)')
                    for q in range(4): s(f'v_max3_u32 v{MX}, v{TP+8*q}, v{TP+8*q+4}, v{MX}')
                    for q in range(8):
                        i = bb*8+q
                        for tt in range(2):
                            acc = V(ACC(r)+16*tt, 16)
                            s(f'v_mfma_f32_32x32x16_bf16 {acc}, {V(TP+4*q,4)}, {A(i*8+4*tt,4)}, {acc if i else 0}')
                s(f'v_cmp_eq_u32 vcc, -1, v{MX}\n s_cbranch_vccnz L_slow{P}{r}\n s_nop 7\n s_nop 7\n s_branch L_ret{P}{r}')
            return f
        slow.append(mk_slow())
    if NP == 2: stamp(a, 13)
    HF = 128; A3 = 32; XR = 48; YR = 56
    def hload(a, k):
        a(f's_add_u32 s3, s{sHB}, {KORD[k]*4096}')
        a.tok['h', k] = a.one(f'buffer_load_dwordx4 {V(HF+4*k,4)}, v{vL16}, {srd(SWS)}, s3 offen sc1')
    K0 = [0, 8, 16, 22]
    HL = lambda s: [(lambda a, k=k: hload(a, k)) for k in range(K0[s], K0[s+1])]
    XL = [(lambda a, m=m: a.tok.__setitem__('x', a.one(f'buffer_load_dwordx2 {V(XR+2*m,2)}, v{vX3}, {srd(SX)}, s{sX3} offen offset:{32*m}'))) for m in range(4)]
    W, bar, Rd, C = red_ops(NP-1, True)
    L = [(lambda a, k=k: wo_issue(a, k)) for k in wol] + (HL(0) if NP == 3 else [])
    n1 = cfg.get('tl1', 4); n2 = cfg.get('tl2', 3)
    for q, f in enumerate(W):
        f(a)
        if q >= 8-n1 and L: L.pop(0)(a)
    bar(a)
    for f in Rd: f(a)
    for q in range(n2):
        if L: L.pop(0)(a)
    bgset(a, L, cfg.get('tgap', 48), 20)
    for f in C[:-1]: f(a)
    a.bg_on = False; L = a.bg[a.bg_i:]
    C[-1](a)
    stamp(a, 14)
    if NP == 3:
        for f in L: run(a, f)
        pend = HL(1) + XL
    else:
        a.cmt('FFT')
        for f in L: run(a, f)
        B1, B2, A1, TW, D1, A2 = 0, 24, 56, 192, 128, 80
        for q in range(6): a(f'ds_read_b128 {A(B1+4*q,4)}, v{vL16} offset:{1024*q}')
        for q in range(8): a(f'ds_read_b128 {A(B2+4*q,4)}, v{vL16} offset:{22528+1024*q}')
        a.wait(vm=a.tok['pq'])
        a('s_barrier')
        for i in range(8): t = a.one(f'ds_write_b128 v{vPQW}, {V(PQR[i],4)} offset:{4096*i}')
        a.wait(lg=t)
        a('s_barrier')
        at1 = {}
        for tile in range(2):
            for ka in range(2):
                for pq in range(2):
                    for u in range(2):
                        at1[tile, ka] = a.one(f'ds_read_b64_tr_b16 {A(A1+((tile*2+ka)*2+pq)*4+2*u,2)}, v{vPQR} offset:{(16*ka+4*u)*1024+tile*512+pq*256}')
        twt = {}
        for tile in range(2):
            U = V(D1+32*tile, 16); Vv = V(D1+32*tile+16, 16)
            for ka in range(2):
                a.wait(lg=at1[tile, ka])
                Pf = A(A1+((tile*2+ka)*2)*4, 4); Qf = A(A1+((tile*2+ka)*2+1)*4, 4)
                cc, ss, ns = A(B1+4*ka, 4), A(B1+8+4*ka, 4), A(B1+16+4*ka, 4)
                for n, (acc, x, y) in enumerate(((U, Pf, cc), (Vv, Pf, ss), (U, Qf, ns), (Vv, Qf, cc))):
                    a(f'v_mfma_f32_32x32x16_bf16 {acc}, {x}, {y}, {acc if (ka or n > 1) else 0}')
                    q = (tile*2+ka)*4+n
                    twt[q] = a.one(f'ds_read_b128 {V(TW+4*q,4)}, v{vL16} offset:{6144+1024*q}')
        E, O = 32, 48
        for tile in range(2):
            a.wait(lg=twt[tile*8+7])
            U = D1+32*tile; Vv = U+16
            for j in range(4):
                tc = TW+((tile*4+j)*2)*4; ts = tc+4
                for p in range(2):
                    a(f'v_pk_mul_f32 {V(112+4*p,2)}, {V(Vv+4*j+2*p,2)}, {V(ts+2*p,2)}')
                    a(f'v_pk_mul_f32 {V(114+4*p,2)}, {V(Vv+4*j+2*p,2)}, {V(tc+2*p,2)}')
                for p in range(2):
                    a(f'v_pk_fma_f32 {V(Vv+4*j+2*p,2)}, {V(U+4*j+2*p,2)}, {V(ts+2*p,2)}, {V(114+4*p,2)}')
                    a(f'v_pk_fma_f32 {V(U+4*j+2*p,2)}, {V(U+4*j+2*p,2)}, {V(tc+2*p,2)}, {V(112+4*p,2)} neg_lo:[0,0,1] neg_hi:[0,0,1]')
                for pi in range(2):
                    for cp, X in enumerate((U, Vv)):
                        a(f'v_cvt_pk_bf16_f32 v{A2+((tile*2+pi)*2+cp)*4+j}, v{X+4*j+pi}, v{X+4*j+pi+2}')
            for cp in range(2):
                for pi in range(2):
                    acc = V(O if pi else E, 16); q = ((tile*2+pi)*2+cp)*4
                    a(f'v_mfma_f32_32x32x16_bf16 {acc}, {A(B2+q,4)}, {V(A2+q,4)}, {acc if (tile or cp) else 0}')
        for hf in range(2):
            for p in range(8):
                a(f'v_pk_add_f32 {V(D1+16*hf+2*p,2)}, {V(E+2*p,2)}, {V(O+2*p,2)}' + (' neg_lo:[0,1] neg_hi:[0,1]' if hf else ''))
            for p in range(8): a(f'v_cvt_pk_bf16_f32 v{64+8*hf+p}, v{D1+16*hf+2*p}, v{D1+16*hf+2*p+1}')
            for p in range(8): a(f'buffer_store_dword v{64+8*hf+p}, v{vYS}, {srd(SWS)}, s{sYST} offen offset:{(p//2)*512+(p%2)*128+hf*2048} sc1')
        for f in HL(0): f(a)
        pend = HL(1) + XL
    stamp(a, 15)
    def yloads(a):
        a(f's_mov_b32 s7, s{sYB}')
        for q in range(16):
            a.tok['y'] = a.one(f'buffer_load_short_d16_hi v{YR+q}, v{vY3 if q else vY0}, {srd(SWS)}, s7 offen sc1')
            if q < 15: a(f's_add_u32 s7, s7, s{sY13 if q % 4 == 3 else sYS}')
    def o_reads(k):
        pos = (k+10) % 22; ops = []
        if pos == 0: ops.append(lambda a: [a(f'v_subrev_u32 v{vOR+m}, 40960, v{vOR+m}') for m in range(4)])
        base = 10 if k < 12 else 0
        AR = (0 if k < 8 else 128 if k < 16 else 0) + (k - (0 if k < 8 else 8 if k < 16 else 16))*16
        for m in range(4):
            for u in range(2):
                ops.append(lambda a, m=m, u=u: a.tok.__setitem__(('or', k), a.one(f'ds_read_b64_tr_b16 {A(AR+4*m+2*u,2)}, v{vOR+m} offset:{(pos-base)*4096+u*512}')))
        return ops
    def mf3(a, k, m):
        AR = (0 if k < 8 else 128 if k < 16 else 0) + (k - (0 if k < 8 else 8 if k < 16 else 16))*16
        a(f'v_mfma_f32_16x16x32_bf16 {V(A3+4*m,4)}, {A(AR+4*m,4)}, {V(HF+4*k,4)}, {V(A3+4*m,4) if k else 0}')
    def hcheck(a, s, first_wait=True):
        ks = list(range(K0[s], K0[s+1]))
        a.wait(vm=a.tok['h', ks[-1]])
        a.label(f'L_h{P}{s}_chk')
        a(f'v_max_u32 v24, v{HF+4*ks[0]}, v{HF+4*ks[1]}')
        for q in range(1, len(ks)//2): a(f'v_max3_u32 v24, v{HF+4*ks[2*q]}, v{HF+4*ks[2*q+1]}, v24')
        a(f'v_cmp_eq_u32 vcc, -1, v24\n s_cbranch_vccnz L_h{P}{s}_retry')
        a.label(f'L_h{P}{s}_ok')
        def f(r):
            r.label(f'L_h{P}{s}_retry')
            r(f's_cmp_gt_u32 s{sCNT}, {LIMIT}\n s_cbranch_scc1 L_h{P}{s}_ok\n s_add_u32 s{sCNT}, s{sCNT}, 1')
            for k in ks: hload(r, k)
            r(f's_waitcnt vmcnt(0)\n s_branch L_h{P}{s}_chk')
        slow.append(f)
    def wo_bar(a, k):
        if k >= NEARLY and not a.tok.get(('wob', k)):
            a.wait(vm=a.tok['wo', k]); a('s_barrier')
            for kk in range(22):
                if ('wo', kk) in a.tok and a.tok['wo', kk] <= a.vm_done: a.tok['wob', kk] = True
    wo_bar(a, 1)
    for k in range(2):
        for f in o_reads(k): f(a)
    hcheck(a, 0)
    XU = 80
    rdq = list(range(2, 22))
    for k in range(16):
        if k == 8:
            while pend: pend.pop(0)(a)
            hcheck(a, 1)
        if k == cfg.get('h2pos', 12):
            for f in HL(2): f(a)
            yloads(a)
        nk = rdq.pop(0)
        if nk >= NEARLY: wo_bar(a, 21)
        ops = o_reads(nk)
        a.wait(lg=a.tok['or', k])
        for m in range(4):
            mf3(a, k, m)
            if m % 2 and pend: pend.pop(0)(a)
            for _ in range(2 if m else len(ops)-6): ops.pop(0)(a)
    for nk in rdq:
        for f in o_reads(nk): f(a)
    a.wait(vm=a.tok['x'])
    for m in range(4):
        for p in range(2):
            a(f'v_lshlrev_b32 v{XU+4*m+2*p}, 16, v{XR+2*m+p}\n v_and_b32 v{XU+4*m+2*p+1}, 0xffff0000, v{XR+2*m+p}')
    for p in range(8): a(f'v_pk_add_f32 {V(A3+2*p,2)}, {V(A3+2*p,2)}, {V(XU+2*p,2)}')
    stamp(a, 16)
    a.wait(lg=a.lg_n)
    hcheck(a, 2)
    stamp(a, 17)
    for k in range(16, 22):
        for m in range(4): mf3(a, k, m)
    a.wait(vm=a.tok['y'])
    a.label(f'L_y{P}_chk')
    a(f'v_max_u32 v24, v{YR}, v{YR+1}')
    for q in range(1, 8): a(f'v_max3_u32 v24, v{YR+2*q}, v{YR+2*q+1}, v24')
    a(f'v_cmp_eq_u32 vcc, 0xffff0000, v24\n s_cbranch_vccnz L_y{P}_retry')
    a.label(f'L_y{P}_ok')
    def yr(r):
        r.label(f'L_y{P}_retry')
        r(f's_cmp_gt_u32 s{sCNT}, {LIMIT}\n s_cbranch_scc1 L_y{P}_ok\n s_add_u32 s{sCNT}, s{sCNT}, 1')
        yloads(r); r(f's_waitcnt vmcnt(0)\n s_branch L_y{P}_chk')
    slow.append(yr)
    for p in range(8): a(f'v_pk_add_f32 {V(A3+2*p,2)}, {V(A3+2*p,2)}, {V(YR+2*p,2)}')
    for p in range(8): a(f'v_cvt_pk_bf16_f32 v{72+p}, v{A3+2*p}, v{A3+2*p+1}')
    for io in range(2):
        a(f'v_permlane16_swap_b32 v{72+4*io}, v{74+4*io}\n v_permlane16_swap_b32 v{73+4*io}, v{75+4*io}')
        a(f'buffer_store_dwordx4 {V(72+4*io,4)}, v{vO3}, {srd(SOUT)}, s{sX3} offen offset:{64*io}')
    if stamps:
        stamp(a, 18)
        a.waitall(); stamp(a, 19)
        a(f'''s_waitcnt lgkmcnt(0)
        v_writelane_b32 v{vST}, s100, 19
        v_writelane_b32 v{vST}, s{sCNT}, 20
        s_lshl_b32 s3, s2, 2
        s_add_u32 s3, s3, s{sW}
        s_lshl_b32 s3, s3, 8
        s_add_u32 s3, s3, {STAMP}
        v_lshlrev_b32 v24, 2, v0
        buffer_store_dword v{vST}, v24, {srd(SWS)}, s3 offen''')
    if 'calib' in cfg:
        cw = cfg.get('calwg', -1)
        a(f'''v_readlane_b32 s4, v{vST}, {cfg['calib']}
        s_add_u32 s4, s4, 6000''')
        if cw >= 0: a(f's_cmp_eq_u32 s2, {cw}\n s_cbranch_scc0 L_end')
        a.label(f'L_cal{P}')
        a(f'''s_memrealtime s[6:7]
        s_waitcnt lgkmcnt(0)
        s_sub_u32 s6, s6, s4
        s_cmp_lt_i32 s6, 0
        s_cbranch_scc1 L_cal{P}''')
    a('s_endpgm')
```

```python
import sys, math, struct
from asmlib import *
KN = "parallel_sum__spectral_fnet__mixer_gmlp__prompt_kernel"
def f2u(x): return struct.unpack('<I', struct.pack('<f', x))[0]
def H(x): return hex(f2u(x))
Z2 = 0; HH = 0x2C0000; PQ = 0x580000; YY = 0x780000; ST = 0x881000; STAMP = 0x1000000
OOB = 0x40000000
L_STG = 16384; L_WO = 73728; L_RING = 65536; L_MISC = 0; L_RED = 32768
NSLOT = 8
SX, SWIN, SWSP, SWOUT, SWS, SOUT, SDBG, SBSP = 8, 12, 16, 20, 24, 28, 32, 36
sR, sG, sW, sA, sB, sP0, sNP, sROT = 40, 41, 42, 43, 44, 45, 46, 47
sXO = 48; sZO = 48; sWO = 56; sSP = 64
sGC = 72; sONE = 74; sLO = 75; sHI = 76; sZST = 77; sHST = 80; sPQST = 83; sSTST = 84; sSTLD = 85
sVAL = 86; sM0W = 88; sM0S = 89; sM0O = 90; sCNT = 91; sMA = 92; sMC = 94; sT = 96
vL16 = 1; vXG = 2; vXW = 4; vXR = 6; vWG = 8; vWR = 11; vSG = 13; vSR = 17; vZS = 21; vHS = 22; vSTA = 23
vTMP = 24; ACC2 = 32; ACC1 = 56; WB = 80; XF = 128; XRAW = 192
LIMIT = 40000
STAGES = [[0,3,6,9,12,15,18,20],[1,4,7,10,13,16,19,21],[2,5,8,11,14,17]]
KORD = STAGES[0]+STAGES[1]+STAGES[2]
def srd(r): return S(r, 4)

def gen(cfg):
    a = Asm()
    stamps = cfg.get('stamps', False)
    vST = 31
    class St: n = 0
    SETS = {0: list(range(20)),
            1: [0,'xi','ad',1,'x0','x1',2,'g0','g2','g4','g6',3,4,'g10','g12','g14',5,6,18,19]}
    SET = SETS[cfg.get('set', 0)]
    def stamp(a, k):
        if not stamps or k not in SET: return
        k = SET.index(k)
        b = a.in_bg; a.in_bg = True
        if k > 0:
            if cfg.get('set', 0): a.raw('    s_waitcnt lgkmcnt(0)'); a.lg_done = a.lg_n
            a(f'v_writelane_b32 v{vST}, s100, {k-1}')
        a('s_memtime s[100:101]' if stamps == 2 else 's_memrealtime s[100:101]')
        a.in_bg = b
    def retry(a, back, out):
        a(f's_add_u32 s{sCNT}, s{sCNT}, 1\n s_cmp_gt_u32 s{sCNT}, {LIMIT}\n s_cbranch_scc1 {out}\n s_branch {back}')
    a('s_cmp_ge_u32 s2, 256\n s_cbranch_scc1 L_end')
    for r, off in ((SX,0),(SWIN,48),(SWS,96),(SWSP,56),(SWOUT,72),(SDBG,88),(SBSP,64),(SOUT,80)):
        a(f's_load_dwordx2 {S(r,2)}, s[0:1], {off}')
    stamp(a, 0)
    def code_pf(a):
        a(f"""s_getpc_b64 s[4:5]
        s_lshl_b32 s6, s2, 9
        s_and_b32 s6, s6, 0xf000
        v_lshl_add_u32 v27, v0, 4, s6
        v_min_u32 v27, L_codeend-{KN}-1024, v27
        global_load_dwordx4 v[124:127], v27, s[4:5]""")
    if cfg.get('pf0', 1): code_pf(a)
    a(f"""v_lshrrev_b32 v25, 6, v0
    s_lshr_b32 s3, s2, 3
    v_readfirstlane_b32 s{sW}, v25""")
    if cfg.get('map', '2d') == 'row':
        a(f"""s_and_b32 s{sR}, s2, 7
        s_lshl_b32 s{sR}, s{sR}, 2
        s_and_b32 s6, s3, 3
        s_add_u32 s{sR}, s{sR}, s6
        s_lshr_b32 s{sG}, s2, 5
        s_lshl_b32 s6, s6, 1
        s_add_u32 s{sROT}, s{sG}, s6""")
    else:
        a(f"""s_and_b32 s{sR}, s2, 3
        s_lshl_b32 s{sR}, s{sR}, 3
        s_and_b32 s6, s3, 7
        s_add_u32 s{sR}, s{sR}, s6
        s_lshr_b32 s7, s3, 3
        s_and_b32 s{sG}, s2, 4
        s_add_u32 s{sG}, s{sG}, s7
        s_lshl_b32 s7, s7, 1
        s_add_u32 s{sROT}, s7, s6""")
    a(f"""s_lshr_b32 s{sA}, s{sW}, 1
    s_and_b32 s{sB}, s{sW}, 1
    s_mov_b32 s{SX+2}, 2097152
    s_mov_b32 s{SX+3}, 0x00020000
    v_bfe_u32 v24, v0, 3, 3
    v_and_b32 v25, 7, v0
    s_lshl_b32 s5, s{sR}, 1
    s_add_u32 s5, s5, s{sA}
    s_lshl_b32 s5, s5, 1
    s_and_b32 s6, s{sG}, 1
    s_add_u32 s5, s5, s6
    s_lshl_b32 s5, s5, 2
    s_add_u32 s5, s5, s{sB}
    s_lshl_b32 s5, s5, 12
    v_and_b32 v26, 4, v24
    v_add_u32 v26, v26, v24
    v_lshl_add_u32 v27, v26, 10, s5
    v_lshl_add_u32 v{vXG}, v25, 4, v27
    v_xor_b32 v{vXG+1}, 0x4000, v{vXG}
    s_lshl_b32 s7, s{sROT}, 7
    s_movk_i32 s6, 0x380""")
    for i in range(8):
        a(f's_and_b32 s{sSP+i}, s7, s6')
        if i < 7: a(f's_addk_i32 s7, 128')
    a('s_waitcnt lgkmcnt(0)')
    stamp(a, 'ka')
    xt = {}
    def x_issue(a, n):
        rs, i = divmod(n, 8)
        xt[rs, i] = a.one(f'buffer_load_dwordx4 {V(XRAW+rs*32+i*4,4)}, v{vXG+rs}, {srd(SX)}, s{sSP+i} offen')
    NX0 = cfg.get('nx0', 10)
    for n in range(NX0): x_issue(a, n)
    if not cfg.get('pf0', 1): code_pf(a)
    a(f"""v_and_b32 v0, 63, v0
    v_lshlrev_b32 v{vL16}, 4, v0""")
    if cfg.get('xw'): a.wait(vm=xt[0, cfg['xw']-1])
    stamp(a, 'xi')
    a(f"""s_mul_i32 s{sP0}, s{sG}, 3
    s_min_u32 s{sP0}, s{sP0}, 20
    s_cmp_ge_u32 s{sG}, 6
    s_cselect_b32 s{sNP}, 2, 3""")
    for i in range(8): a(f's_mul_i32 s{sWO+i}, s{sSP+i}, 1376')
    a(f"""s_mul_i32 s3, s{sW}, {16*2752}
    s_lshl_b32 s7, s{sP0}, 6
    s_add_u32 s3, s3, s7
    s_add_u32 s3, s3, 1376
    s_movk_i32 s7, 2752""")
    for p in range(3):
        a(f"""v_add_u32 v32, {64*p}, v0
        v_mul_u32_u24 v33, 171, v32
        v_lshrrev_b32 v33, 11, v33
        v_mul_u32_u24 v34, 12, v33
        v_sub_u32 v32, v32, v34
        v_lshrrev_b32 v34, 2, v33
        v_and_b32 v34, 2, v34
        v_xor_b32 v32, v32, v34
        v_lshl_add_u32 v32, v32, 4, s3
        v_mad_u32_u24 v{vWG+p}, v33, s7, v32""")
        if p < 2: a(f's_sub_u32 s3, s3, 1024')
    a(f"""s_mul_i32 s{sM0W}, s{sW}, 3072
    s_add_u32 s{sM0W}, s{sM0W}, {L_RING}""")
    wt = {}
    def w_issue(a, k, p):
        if k == 8 : a(f'v_subrev_u32 v{vWG+p}, 1376, v{vWG+p}')
        wt[k] = a.dma((f's{sM0W}', (k % NSLOT)*12288), f'buffer_load_dwordx4 v{vWG+p}, {srd(SWIN)}, s{sWO+k%8} offen offset:{1024*p} lds')
    for r, n in ((SWIN,1409024),(SWSP,8388608),(SWOUT,704512),(SWS,0x10000000),(SOUT,2097152),(SDBG,256),(SBSP,4096)):
        a(f's_mov_b32 s{r+2}, {n}\n s_mov_b32 s{r+3}, 0x00020000')
    a(f"""v_and_b32 v27, 15, v0
    v_lshrrev_b32 v32, 4, v0
    v_lshrrev_b32 v33, 1, v32
    v_and_b32 v34, 1, v32
    s_lshl_b32 s3, s{sA}, 11
    s_lshl_b32 s7, s{sB}, 8
    s_add_u32 s7, s7, s3
    v_lshl_add_u32 v35, v27, 4, s7
    v_lshl_add_u32 v35, v33, 10, v35
    v_lshl_add_u32 v{vZS}, v34, 9, v35
    s_lshl_b32 s7, s{sB}, 9
    s_add_u32 s7, s7, s3
    v_lshl_add_u32 v35, v27, 4, s7
    v_lshl_add_u32 v35, v34, 10, v35
    v_lshl_add_u32 v{vHS}, v33, 8, v35
    v_lshlrev_b32 v35, 4, v27
    v_lshl_add_u32 v{vSTA}, v32, 2, v35
    s_lshl_b32 s3, s{sR}, 12
    s_mul_i32 s7, s{sR}, 90112
    s_lshl_b32 s{sT+1}, s{sP0}, 17
    s_add_u32 s{sZST}, s{sT+1}, s3
    s_add_u32 s{sZST+1}, s{sZST}, {1<<17}
    s_add_u32 s{sZST+2}, s{sZST}, {2<<17}
    s_lshl_b32 s{sT+1}, s{sP0}, 12
    s_add_u32 s{sT+1}, s{sT+1}, s7
    s_add_u32 s{sHST}, s{sT+1}, {HH}
    s_add_u32 s{sHST+1}, s{sT+1}, {HH+4096}
    s_add_u32 s{sHST+2}, s{sT+1}, {HH+8192}""")
    a(f"""s_cmp_eq_u32 s{sNP}, 2
    s_cselect_b32 s{sZST+2}, {OOB}, s{sZST+2}
    s_cselect_b32 s{sHST+2}, {OOB}, s{sHST+2}
    s_cselect_b32 s{sVAL+1}, 0, 1.0
    s_lshl_b32 s{sT}, s{sG}, 1
    s_add_u32 s{sT}, s{sT}, s{sB}
    s_cmp_eq_u32 s{sT}, 15
    s_cselect_b32 s{sVAL}, 0, 1.0
    s_lshl_b32 s{sT+1}, s{sT}, 17
    s_add_u32 s{sT+1}, s{sT+1}, s3
    s_lshl_b32 s{sT+2}, s{sA}, 11
    s_add_u32 s{sT+1}, s{sT+1}, s{sT+2}
    s_add_u32 s{sPQST}, s{sT+1}, {PQ}
    s_lshl_b32 s{sT+1}, s{sR}, 1
    s_add_u32 s{sT+1}, s{sT+1}, s{sA}
    s_lshl_b32 s{sT+1}, s{sT+1}, 12
    s_add_u32 s{sSTLD}, s{sT+1}, {ST}
    s_lshl_b32 s{sT+1}, s{sT}, 8
    s_add_u32 s{sSTST}, s{sSTLD}, s{sT+1}""")
    sYST = sT+3
    a(f"""s_lshl_b32 s4, s{sR}, 3
    s_add_u32 s4, s4, s{sG}
    s_lshl_b32 s3, s4, 2
    s_add_u32 s3, s3, s{sW}
    s_lshl_b32 s3, s3, 10
    s_add_u32 s{sYST}, s3, {YY+4096}
    s_cmp_eq_u32 s{sW}, 0
    s_cselect_b32 s4, s4, {OOB}""")
    stamp(a, 'su')
    def clr_ops(M1, names):
        ops = []
        m = V(M1, 4)
        for nm in names:
            if nm == 's': ops.append(f'buffer_store_dword v{M1}, v{vSTA}, {srd(SWS)}, s{sSTST} offen sc1')
            if nm == 'z': ops += [f'buffer_store_dwordx4 {m}, v{vZS}, {srd(SWS)}, s{sZST+j} offen sc1' for j in range(3)]
            if nm == 'h': ops += [f'buffer_store_dwordx4 {m}, v{vHS}, {srd(SWS)}, s{sHST+j} offen sc1' for j in range(3)]
            if nm == 'y': ops.append(f'buffer_store_dwordx4 {m}, v{vL16}, {srd(SWS)}, s{sYST} offen sc1')
        return ops
    a(f"""v_xor_b32 v33, v24, v25
    v_and_b32 v34, 3, v25
    v_lshl_add_u32 v33, v34, 4, v33
    v_lshrrev_b32 v34, 2, v25
    v_lshlrev_b32 v34, 12, v34
    v_lshl_add_u32 v33, v33, 4, v34
    s_and_b32 s3, s{sG}, 1
    s_lshl_b32 s3, s3, 7
    s_lshl_b32 s7, s{sW}, 10
    s_add_u32 s3, s3, s7
    v_add_u32 v{vXW}, s3, v33
    v_xor_b32 v{vXW+1}, 0x80, v{vXW}
    s_add_u32 s{sM0O}, s7, {L_WO}
    s_lshl_b32 s5, s7, 2
    s_add_u32 s{sM0S}, s5, {L_STG}
    v_xor_b32 v33, v27, v32
    v_lshl_add_u32 v33, v32, 4, v33
    s_lshl_b32 s3, s{sA}, 11
    v_lshl_add_u32 v{vXR}, v33, 4, s3
    v_xor_b32 v{vXR+1}, 64, v{vXR}
    v_bfe_u32 v33, v0, 2, 2
    v_lshl_add_u32 v33, v32, 3, v33
    v_mul_u32_u24 v33, 192, v33
    v_and_b32 v34, 1, v32
    v_xor_b32 v34, s{sB}, v34
    v_lshl_add_u32 v33, v34, 5, v33
    v_and_b32 v34, 3, v0
    v_lshl_add_u32 v33, v34, 3, v33
    v_add_u32 v{vWR}, {L_RING}, v33
    v_add_u32 v{vWR+1}, {L_RING+4*12288}, v33
    s_lshl_b32 s3, s{sR}, 18
    s_add_u32 s3, s3, s7
    v_lshrrev_b32 v33, 1, v24
    v_xor_b32 v33, v33, v25
    v_lshl_add_u32 v33, v33, 4, s3
    v_lshl_add_u32 v{vSG}, v26, 12, v33
    v_xor_b32 v33, 64, v{vSG}
    v_add_u32 v{vSG+1}, {16*4096-1024}, v33
    v_add_u32 v{vSG+2}, {4*4096-2048}, v{vSG}
    v_add_u32 v{vSG+3}, {20*4096-3072}, v33
    v_and_b32 v33, 31, v0
    v_bfe_u32 v34, v0, 1, 3
    v_lshrrev_b32 v35, 5, v0
    v_xor_b32 v34, v34, v35
    v_lshlrev_b32 v34, 4, v34
    v_lshl_add_u32 v33, v33, 7, v34
    v_add_u32 v{vSR}, s{sM0S}, v33
    v_xor_b32 v{vSR+1}, 32, v{vSR}
    v_xor_b32 v{vSR+2}, 64, v{vSR}
    v_xor_b32 v{vSR+3}, 0x60, v{vSR}""")
    c0 = -2.0*math.sqrt(2.0/math.pi)*math.log2(math.e)
    a(f"""s_mov_b32 s{sGC}, {H(c0*0.044715)}
    s_mov_b32 s{sGC+1}, {H(c0)}
    s_mov_b32 s{sONE}, 0x3f803f80
    s_mov_b32 s{sLO}, 0x00003f80
    s_mov_b32 s{sHI}, 0x3f800000
    s_mov_b32 s{sCNT}, 0
    s_mov_b32 s{sMA}, 0xaaaaaaaa
    s_mov_b32 s{sMA+1}, 0xaaaaaaaa
    s_mov_b32 s{sMC}, 0xcccccccc
    s_mov_b32 s{sMC+1}, 0xcccccccc""")
    a(f"""s_add_u32 s{sT+1}, s{sP0}, s{sNP}
    s_sub_u32 s{sT+1}, s{sT+1}, 1
    s_lshl_b32 s{sT+1}, s{sT+1}, 17
    s_lshl_b32 s3, s{sW}, 15
    s_add_u32 s{sT+1}, s{sT+1}, s3
    s_lshl_b32 s6, s{sP0}, 17
    s_add_u32 s6, s6, s3
    s_lshl_b32 s{sT+2}, s{sG}, 7""")
    for i in range(8): a(f's_lshl_b32 s{sZO+i}, s{sSP+i}, 5\n s_add_u32 s{sZO+i}, s{sZO+i}, s6')
    M1 = 64
    for i in range(4): a(f'v_mov_b32 v{M1+i}, -1')
    a(f"""s_and_b32 s3, s{sG}, 1
    s_lshl_b32 s3, s3, 5
    s_lshl_b32 s7, s{sW}, 6
    s_add_u32 s3, s3, s7
    v_lshl_add_u32 v30, v24, 2, s3
    v_xor_b32 v26, 32, v30""")
    stamp(a, 'ad')
    for n in range(NX0, 16): x_issue(a, n)
    vR1A, vR1B = vXG, vXG+1
    a(f"""s_lshl_b32 s3, s{sA}, 7
    v_lshl_add_u32 v{vR1A}, v32, 4, s3
    v_lshl_add_u32 v{vR1B}, v27, 2, s3""")
    def W(k): return [(lambda a, p=p: w_issue(a, k, p)) for p in range(3)]
    def bgset(a, ops, gap, delay=0):
        a.bg = [o if isinstance(o, tuple) else (o, gap) for o in ops]; a.bg_i = 0; a.bg_next = a.t + delay; a.bg_on = True
    def bgend(a): a.bg_flush(); a.bg_on = False
    NWLN = cfg.get('nwln', 8)
    bgset(a, sum((W(k) for k in range(NWLN)), []), cfg.get('wgap', 64), cfg.get('w0', 20))
    stamp(a, 1)
    def red8(a, r):
        a(f'''v_add_f32_dpp v{r}, v{r}, v{r} quad_perm:[1,0,3,2] row_mask:0xf bank_mask:0xf
        v_add_f32_dpp v{r}, v{r}, v{r} quad_perm:[2,3,0,1] row_mask:0xf bank_mask:0xf
        v_add_f32_dpp v{r}, v{r}, v{r} row_half_mirror row_mask:0xf bank_mask:0xf''')
    for rs in range(2):
        a.cmt(f'LN rowset {rs}')
        X = XRAW + rs*32
        a('v_mov_b32 v35, 0\n v_mov_b32 v36, 0')
        for i in range(8):
            if i % 2 == 0: a.wait(vm=xt[rs, i+1])
            for k in range(4): a(f'v_dot2c_f32_bf16 v35, s{sONE}, v{X+4*i+k}')
        stamp(a, f'x{rs}')
        red8(a, 35)
        a(f'v_mul_f32 v35, {H(-1/512)}, v35')
        for i in range(9):
            if i < 8:
                for k in range(4):
                    t = 40 + (i % 2)*8 + 2*k
                    a(f'v_dot2_f32_bf16 v{t}, v{X+4*i+k}, s{sLO}, v35\n v_dot2_f32_bf16 v{t+1}, v{X+4*i+k}, s{sHI}, v35')
            if i > 0:
                j = i-1
                for k in range(4):
                    t = 40 + (j % 2)*8 + 2*k
                    a(f'v_cvt_pk_bf16_f32 v{X+4*j+k}, v{t}, v{t+1}')
                a(f'ds_write_b128 v{vXW+rs}, {V(X+4*j,4)} offset:{8192*j}')
        def sq_tail(a, k0, k1, rs=rs, X=X):
            for k in range(k0, k1): a(f'v_dot2c_f32_bf16 v36, v{X+k}, v{X+k}')
            if k1 < 32: return
            red8(a, 36)
            a(f"""v_mov_b32 v37, {H(1e-5)}
            v_fmac_f32 v37, {H(1/512)}, v36
            v_rsq_f32 v{28+rs}, v37""")
        SQ = cfg.get('sq', 16)
        sq_tail(a, 0, SQ if rs else 32)
    bgend(a)
    stamp(a, 2)
    SPSLOT = [0,1,2,0,1,2,3,4,5,0,1,2,3,4,5,1]
    vSR2 = [vWG, vWG+1, vWG+2, vXW]
    def SP(k):
        prev = [j for j in range(k) if SPSLOT[j] == SPSLOT[k]]
        def mk(p):
            def f(a):
                def pre(a):
                    if p == 0 and prev: a.wait(lg=a.tok['sr', prev[-1]])
                    if k == 8: a(f'v_add_u32 v{vSG+p}, 0x20000, v{vSG+p}')
                a.tok['sd', k] = a.dma((f's{sM0S}', SPSLOT[k]*16384), f'buffer_load_dwordx4 v{vSG+p}, {srd(SWSP)}, s{sSP+k%8} offen offset:{1024*p} lds', pre)
            return f
        return [mk(p) for p in range(4)]
    def RD(k):
        def mk(h):
            def f(a):
                a.wait(vm=a.tok['sd', k])
                for q in (2*h, 2*h+1):
                    r = ((k % 8)*4+q)*8 + (k//8)*4; sl = SPSLOT[k]
                    a.tok['sr', k] = a.one(f'ds_read_b128 {A(r,4)}, v{vSR+q if sl < 4 else vSR2[q]} offset:{(sl % 4)*16384}')
            return (f, 8)
        return [mk(0), mk(1)]
    vOG = vXR; vPR = vXR+1
    NEARLY = cfg.get('nearly', 12)
    def wo_issue(a, k):
        a.tok['wo', k] = a.dma((f's{sM0O}', ((k+10) % 22)*4096), f'buffer_load_dwordx4 v{vOG}, {srd(SWOUT)}, s5 offen lds',
                               lambda a: a(f's_add_u32 s5, s{sT+2}, {KORD[k]*32768}'))
    WO = lambda k: [lambda a: wo_issue(a, k)]
    def w_reads(k):
        ops = []
        sl = k % NSLOT; ar = vWR + (sl >= 4); base = (sl % 4)*12288
        for sg in range(2):
            if k < 8:
                for mt in range(2):
                    s_ = 2*k+sg
                    ops.append(f'ds_read_b128 {V(XF+(s_*2+mt)*4,4)}, v{vXR+sg} offset:{s_*4096+mt*1024}')
            for j in range(3):
                for u in range(2):
                    ops.append(f'ds_read_b64_tr_b16 {V(WB+(k%2)*24+(sg*3+j)*4+2*u,2)}, v{ar} offset:{base+sg*6144+u*768+j*64}')
        return ops
    BAR = {2: 5, 5: 7, 7: None, 11: 15, 15: None}
    def run(a, f): (f[0] if isinstance(f, tuple) else f)(a)
    def gemm_iter(a, k, late=()):
        a.cmt(f'gemm iter {k}')
        a.wait(vm=wt[BAR[k]] if BAR.get(k) is not None else None, lg=a.tok['wr', k])
        if k in BAR: a('s_barrier')
        stamp(a, f'g{k}')
        fill = [(lambda a, t=t: a.tok.__setitem__(('wr', k+1), a.one(t))) for t in (w_reads(k+1) if k not in (7, 15) else [])]
        late = list(late)
        for sg in range(2):
            for j in range(3):
                for mt in range(2):
                    x = V(XF+(((2*k+sg) % 16)*2+mt)*4, 4); w = V(WB+(k%2)*24+(sg*3+j)*4, 4)
                    acc = V((ACC2 if k < 8 else ACC1)+(j*2+mt)*4, 4)
                    c = '0' if (k % 8 == 0 and sg == 0) else acc
                    a(f'v_mfma_f32_16x16x32_bf16 {acc}, {x}, {w}, {c}' if k < 8 else f'v_mfma_f32_16x16x32_bf16 {acc}, {w}, {x}, {c}')
                    if fill:
                        for _ in range(2):
                            if fill: fill.pop(0)(a)
                    elif late: run(a, late.pop(0))
        for f in late: run(a, f)
    def T2(text):
        L = [l.strip() for l in text.strip().split('\n')]
        return [(lambda a, t='\n'.join(L[i:i+2]): a(t)) for i in range(0, len(L), 2)]
    a.wait(vm=wt[2], lg=a.lg_n)
    a('s_barrier')
    for t in w_reads(0): a.tok['wr', 0] = a.one(t)
    if SQ < 32: sq_tail(a, SQ, 32)
    def dbg_store(a, val=1, t=24):
        a(f"""v_mov_b32 v{t}, {val}
        v_mov_b32 v{t+1}, 0
        buffer_store_byte v{t}, v{t+1}, {srd(SDBG)}, s4 offen sc1""")
    clr = [(lambda a, t=t: a.tok.__setitem__('clr', a.one(t))) for t in clr_ops(M1, cfg.get('ce', 'sz'))]
    pre = sum((W(k) for k in range(NWLN, 8)), []) + clr
    misc1 = T2(f"""v_lshrrev_b32 v24, 3, v0
        v_bfe_u32 v25, v0, 4, 1
        s_lshl_b32 s3, s{sB}, 1
        v_add_u32 v25, s3, v25
        v_lshlrev_b32 v25, 1, v25
        v_and_b32 v30, 7, v0
        v_xor_b32 v25, v25, v30
        v_lshlrev_b32 v25, 4, v25
        s_lshl_b32 s3, s{sW}, 13
        v_lshl_add_u32 v25, v24, 10, v25
        v_add_u32 v{vOG}, s3, v25""")
    for k in range(8):
        if k < 2: late = pre[:(len(pre)+1)//2] if k == 0 else pre[(len(pre)+1)//2:]
        else: late = W(k+6)
        if k == 2: late = [lambda a: a('ds_write_b32 v30, v28\n ds_write_b32 v26, v29')] + late
        if k == 7:
            r1r = lambda a: [a.tok.__setitem__('r1', a.one(f'ds_read_b128 {V(ACC1+4*mt,4)}, v{vR1A} offset:{64*mt}')) for mt in range(2)]
            late = [r1r, misc1[0], late[0]] + misc1[1:3] + [late[1]] + misc1[3:6] + [late[2]]
        gemm_iter(a, k, late)
    stamp(a, 3)
    GAP = cfg.get('gap', 56)
    bgset(a, W(14)+W(15)+SP(0)+SP(1)+SP(2), cfg.get('egap', 52))
    def gelu_tile(a, acc, tmp, rop):
        for p in range(4): a(f'v_pk_mul_f32 {V(acc+2*p,2)}, {V(acc+2*p,2)}, {rop(p)}')
        for p in range(4): a(f'v_pk_mul_f32 {V(tmp+2*p,2)}, {V(acc+2*p,2)}, {V(acc+2*p,2)}')
        for p in range(4): a(f'v_pk_fma_f32 {V(tmp+2*p,2)}, {V(tmp+2*p,2)}, {S(sGC,2)}, {S(sGC,2)} op_sel:[0,0,1] op_sel_hi:[1,0,1]')
        for p in range(4): a(f'v_pk_mul_f32 {V(tmp+2*p,2)}, {V(tmp+2*p,2)}, {V(acc+2*p,2)}')
        for p in range(8): a(f'v_exp_f32 v{tmp+p}, v{tmp+p}')
        for p in range(4): a(f'v_pk_add_f32 {V(tmp+2*p,2)}, {V(tmp+2*p,2)}, 1.0 op_sel_hi:[1,0]')
        for p in range(8): a(f'v_rcp_f32 v{tmp+p}, v{tmp+p}')
        for p in range(4): a(f'v_pk_mul_f32 {V(acc+2*p,2)}, {V(acc+2*p,2)}, {V(tmp+2*p,2)}')
    a.wait(lg=a.tok['r1'])
    TM = WB+24; SS = ACC1+8; QQ = ACC1+16
    def b8(a):
        on = a.bg_on; a.bg_on = False
        assert a.tok['clr'] <= wt[13]
        a.wait(vm=wt[13]); a('s_barrier')
        for t in w_reads(8): a.tok['wr', 8] = a.one(t)
        a.bg_on = on
    for j in range(3):
        if j:
            for p in range(4): a(f'v_pk_mul_f32 {V(ACC1+2*p,2)}, {V(ACC1+2*p,2)}, {S(sVAL,2)} op_sel:[0,{j-1}] op_sel_hi:[1,{j-1}]')
        y = ACC2+8*j
        gelu_tile(a, y, TM, lambda p: V(ACC1+2*p, 2))
        for p in range(4):
            if j == 0: a(f'v_pk_mul_f32 {V(QQ+2*p,2)}, {V(y+2*p,2)}, {V(y+2*p,2)}')
            else: a(f'v_pk_fma_f32 {V(QQ+2*p,2)}, {V(y+2*p,2)}, {V(y+2*p,2)}, {V(QQ+2*p,2)}')
            if j == 1: a(f'v_pk_add_f32 {V(SS+2*p,2)}, {V(y+2*p,2)}, {V(ACC2+2*p,2)}')
            if j == 2: a(f'v_pk_add_f32 {V(SS+2*p,2)}, {V(y+2*p,2)}, {V(SS+2*p,2)}')
    if cfg.get('b8', 0) == 0: b8(a)
    for i in range(8): a(f'v_add_f32_dpp v{SS+i}, v{SS+i}, v{SS+i} row_ror:8 row_mask:0xf bank_mask:0x3')
    for i in range(8): a(f'v_add_f32_dpp v{SS+i}, v{QQ+i}, v{QQ+i} row_ror:8 row_mask:0xf bank_mask:0xc')
    for i in range(4): a(f'v_add_f32_dpp v{SS+i}, v{SS+i}, v{SS+i} row_half_mirror row_mask:0xf bank_mask:0x5')
    for i in range(4): a(f'v_add_f32_dpp v{SS+i}, v{SS+4+i}, v{SS+4+i} row_half_mirror row_mask:0xf bank_mask:0xa')
    for i in range(4): a(f'v_add_f32_dpp v{SS+i}, v{SS+i}, v{SS+i} quad_perm:[1,0,3,2] row_mask:0xf bank_mask:0xf')
    for i in range(4): a(f'v_add_f32_dpp v{SS+i}, v{SS+i}, v{SS+i} quad_perm:[2,3,0,1] row_mask:0xf bank_mask:0xf')
    a(f"""v_cndmask_b32 v{SS}, v{SS}, v{SS+1}, {S(sMA,2)}
    v_cndmask_b32 v{SS+2}, v{SS+2}, v{SS+3}, {S(sMA,2)}
    v_cndmask_b32 v26, v{SS}, v{SS+2}, {S(sMC,2)}""")
    left = a.bg[a.bg_i:]; a.bg_on = False
    if cfg.get('eflush', 1):
        for f in left: run(a, f)
        left = []
    a(f'buffer_store_dword v26, v{vSTA}, {srd(SWS)}, s{sSTST} offen sc1')
    if cfg.get('b8', 0) == 1: b8(a)
    dbg_store(a)
    for i in range(4): a(f'v_mov_b32 v{24+i}, -1')
    stamp(a, 4)
    vBS = 28
    clr2 = [(lambda a, t=t: a(t)) for t in clr_ops(24, cfg.get('cl', 'hy'))]
    misc2 = T2(f"""v_and_b32 v28, 12, v0
        v_and_b32 v29, 15, v0
        v_add_u32 v28, v28, v29
        v_lshlrev_b32 v30, 1, v28
        s_lshl_b32 s3, s{sR}, 7
        s_lshl_b32 s7, s{sA}, 6
        s_add_u32 s3, s3, s7
        buffer_load_short_d16_hi v{vBS}, v30, {srd(SBSP)}, s3 offen
        buffer_load_short_d16_hi v{vBS+1}, v30, {srd(SBSP)}, s3 offen offset:8""")
    misc3 = T2(f"""v_lshrrev_b32 v24, 2, v0
        v_lshlrev_b32 v24, 11, v24
        v_bfe_u32 v25, v0, 1, 1
        v_lshl_add_u32 v{vPR}, v25, 8, v24""")
    sr2 = T2('\n'.join(f'v_add_u32 v{vSR2[q]}, 0x10000, v{vSR+q}' for q in range(4)))
    def dbg_load(a):
        a(f'v_lshlrev_b32 v24, 2, v0')
        a.tok['dbg'] = a.one(f'buffer_load_dword v30, v24, {srd(SDBG)}, 0 offen sc1')
    r1b = lambda a: [a.tok.__setitem__('r1', a.one(f'ds_read_b32 v{26+mt}, v{vR1B} offset:{64*mt}')) for mt in range(2)]
    Z1 = {8: left + RD(0)+clr2, 9: RD(1)+SP(3), 10: RD(2)+SP(4), 11: SP(5)+sr2, 12: SP(6)+misc3, 13: SP(7)+misc2[:2], 14: misc2[2:]+SP(8)[:3],
          15: SP(8)[3:]+[dbg_load, r1b]}
    for k in range(8, 16): gemm_iter(a, k, Z1[k])
    stamp(a, 5)
    SL = WB
    def st_load(j):
        def f(a): a.tok['st'] = a.one(f'buffer_load_dwordx4 {V(SL+4*j,4)}, v{vL16}, {srd(SWS)}, s{sSTLD} offen offset:{1024*j} sc1')
        return f
    def st_loads(a):
        for j in range(4): st_load(j)(a)
    a.wait(lg=a.tok['r1'])
    STPOS = cfg.get('stpos', 1)
    for j in range(3):
        if j == STPOS:
            a.cmt('check clear-done bytes, then issue stats loads')
            a.wait(vm=a.tok['dbg'])
            a.label('L_dbg_chk')
            a('v_and_b32 v30, 0x01010101, v30\n v_cmp_ne_u32 vcc, 0x01010101, v30\n s_cbranch_vccnz L_dbg_retry')
            a.label('L_dbg_ok', keep_m0=True)
            bgset(a, [(st_load(j), 24) for j in range(4)]+RD(3)+RD(4)+RD(5)+SP(9)+RD(6)+SP(10)+RD(7)+RD(8)+SP(11), GAP)
        if j: a(f'v_pk_mul_f32 v[26:27], v[26:27], {S(sVAL,2)} op_sel:[0,{j-1}] op_sel_hi:[1,{j-1}]')
        gelu_tile(a, ACC1+8*j, TM, lambda p: f'v[26:27] op_sel:[0,{p//2}] op_sel_hi:[1,{p//2}]')
    stamp(a, 6)
    a.bg_on = False
    a.wait(vm=a.tok['st'])
    a.label('L_st_chk')
    a(f"""v_pk_add_f32 {V(SL,2)}, {V(SL,2)}, {V(SL+4,2)}
    v_pk_add_f32 {V(SL+2,2)}, {V(SL+2,2)}, {V(SL+6,2)}
    v_pk_add_f32 {V(SL+8,2)}, {V(SL+8,2)}, {V(SL+12,2)}
    v_pk_add_f32 {V(SL+10,2)}, {V(SL+10,2)}, {V(SL+14,2)}
    v_pk_add_f32 {V(SL,2)}, {V(SL,2)}, {V(SL+8,2)}
    v_pk_add_f32 {V(SL+2,2)}, {V(SL+2,2)}, {V(SL+10,2)}
    v_permlane32_swap_b32 v{SL}, v{SL+2}
    v_permlane32_swap_b32 v{SL+1}, v{SL+3}
    v_pk_add_f32 {V(SL,2)}, {V(SL,2)}, {V(SL+2,2)}
    v_permlane16_swap_b32 v{SL}, v{SL+1}
    v_add_f32 v{SL}, v{SL}, v{SL+1}
    v_cmp_u_f32 vcc, v{SL}, v{SL}
    s_cbranch_vccnz L_st_retry""")
    a.label('L_st_ok')
    a.bg_on = bool(cfg.get('nbg', 1))
    RS = SL+8; NB = SL+16
    a(f"""v_mul_f32 v{SL}, {H(1/688)}, v{SL}
    v_mul_f32 v{SL+2}, v{SL}, v{SL}
    v_sub_f32_dpp v{SL+1}, v{SL}, v{SL+2} row_ror:8 row_mask:0xf bank_mask:0xf
    v_max_f32 v{SL+1}, 0, v{SL+1}
    v_add_f32 v{SL+1}, {H(1e-5)}, v{SL+1}
    v_rsq_f32 v{SL+1}, v{SL+1}
    v_mul_f32_e64 v{SL+2}, -v{SL}, v{SL+1}""")
    for i in range(8): a(f'v_mov_b32_dpp v{RS+i}, v{SL+1} row_newbcast:{i} row_mask:0xf bank_mask:0xf')
    for i in range(8): a(f'v_mov_b32_dpp v{NB+i}, v{SL+2} row_newbcast:{i} row_mask:0xf bank_mask:0xf')
    a.bg_on = False; left = a.bg[a.bg_i:]
    PK = SL+24
    for j in range(3):
        y = ACC2+8*j
        for p in range(4): a(f'v_pk_fma_f32 {V(y+2*p,2)}, {V(y+2*p,2)}, {V(RS+2*p,2)}, {V(NB+2*p,2)}')
        for p in range(4): a(f'v_cvt_pk_bf16_f32 v{PK+4*j+p}, v{y+2*p}, v{y+2*p+1}')
        a(f'buffer_store_dwordx4 {V(PK+4*j,4)}, v{vZS}, {srd(SWS)}, s{sZST+j} offen sc1')
    stamp(a, 7)
    D = cfg.get('depth', 10); RING = 128
    vZ = (vL16, vXG, vXG+1); zt = {}
    def zload(a, gi, reg):
        r, i = divmod(gi, 32)
        return a.one(f'buffer_load_dwordx4 {V(reg,4)}, v{vZ[r]}, {srd(SWS)}, s{sZO+i//4} offen offset:{(i%4)*1024} sc1')
    RG = lambda gi: RING + (gi % D)*4
    def probe(a): a.tok['pr'] = a.one(f'buffer_load_dword v30, v{vPR}, {srd(SWS)}, s{sT+1} offen sc1')
    bgset(a, left+SP(12)+RD(9)+SP(13)+RD(10)+SP(14)+SP(15)+sum((WO(k) for k in range(NEARLY)), []), cfg.get('dgap', 56))
    DL = lambda pq, mt: ACC2 + (pq*2+mt)*4
    DH = lambda pq, mt: (48 if pq == 0 else 116) + mt*4
    ST_ = lambda sg, pq: 80 + (sg % 2)*16 + pq*8
    TPK = (112, 124)
    a(f"""v_and_b32 v24, 15, v0
    s_lshl_b32 s3, s{sT}, 4
    s_add_u32 s3, s3, 1
    v_add_u32 v24, s3, v24
    v_cvt_f32_u32 v24, v24
    v_mul_f32 v24, {H(1/512)}, v24
    s_lshl_b32 s3, s{sROT}, 6
    v_lshrrev_b32 v25, 4, v0
    v_lshl_add_u32 v25, v25, 3, s3
    v_cvt_f32_u32 v25, v25
    v_mul_f32 v25, v25, v24
    v_fract_f32 v88, v25
    v_mul_f32 v25, {H(32.0)}, v24""")
    for i in range(1, 8): a(f'v_add_f32 v{88+i}, v{87+i}, v24')
    for i in range(8): a(f'v_add_f32 v{104+i}, v{88+i}, v25')
    a('v_cos_f32 v25, v25')
    for i in range(8): a(f'v_cos_f32 v{80+i}, v{88+i}')
    a('v_add_f32 v25, v25, v25')
    cvt = lambda sg, pq: [f'v_cvt_pk_bf16_f32 v{TPK[pq]+i}, v{ST_(sg,pq)+2*i}, v{ST_(sg,pq)+2*i+1}' for i in range(4)]
    upd = lambda sg, pq: [f'v_fma_f32 v{ST_(sg,pq)+i}, v25, v{ST_(sg+1,pq)+i}, -v{ST_(sg,pq)+i}' for i in range(8)]
    for t in cvt(0, 0): a(t)
    PRPOS = cfg.get('prpos', 8)
    pf = [probe] + [(lambda a, gi=gi: zt.__setitem__(gi, zload(a, gi, RG(gi)))) for gi in range(D-1)]
    def start_pf(a):
        bgset(a, pf + a.bg[a.bg_i:], cfg.get('pgap', 40))
    for sg in range(8):
        if sg == PRPOS: start_pf(a)
        for pq in range(2):
            if sg == 0 and pq == 0: fl = [f'v_sin_f32 v{88+i}, v{88+i}' for i in range(8)] + cvt(0, 1)
            elif sg == 0: fl = [f'v_cos_f32 v{96+i}, v{104+i}' for i in range(8)] + cvt(1, 0)
            elif sg == 1 and pq == 0: fl = [f'v_sin_f32 v{104+i}, v{104+i}' for i in range(8)] + cvt(1, 1)
            elif pq == 0: fl = upd(sg, 1) + cvt(sg, 1)
            elif sg < 7: fl = upd(sg+1, 0) + cvt(sg+1, 0)
            else: fl = [f'ds_read_b128 {V(96+4*mt2,4)}, v{vR1A} offset:{64*mt2}' for mt2 in range(2)] + [f'v_cndmask_b32 v24, -1.0, 1.0, {S(sMA,2)}']
            for hf in range(2):
                for mt in range(2):
                    acc = V((DH if hf else DL)(pq, mt), 4)
                    a(f'v_mfma_f32_16x16x32_bf16 {acc}, {V(XF+((sg+8*hf)*2+mt)*4,4)}, {V(TPK[pq],4)}, {acc if sg else 0}')
                    for _ in range(4):
                        if fl:
                            t = fl.pop(0); tk = a.one(t)
                            if t.startswith('ds_'): a.tok['r1'] = tk
    if PRPOS == 8: start_pf(a)
    a.wait(lg=a.tok['r1'])
    for pq in range(2):
        for p in range(4): a(f'v_pk_fma_f32 {V(DL(pq,0)+2*p,2)}, {V(DH(pq,0)+2*p,2)}, v[24:25], {V(DL(pq,0)+2*p,2)} op_sel_hi:[1,0,1]')
        for p in range(4): a(f'v_pk_mul_f32 {V(DL(pq,0)+2*p,2)}, {V(DL(pq,0)+2*p,2)}, {V(96+2*p,2)}')
        for p in range(4): a(f'v_cvt_pk_bf16_f32 v{WB+4*pq+p}, v{DL(pq,0)+2*p}, v{DL(pq,0)+2*p+1}')
    a.bg_flush(len(pf)); a.bg_on = False
    for pq in range(2): a.tok['pqs'] = a.one(f'buffer_store_dwordx4 {V(WB+4*pq,4)}, v{vL16}, {srd(SWS)}, s{sPQST} offen offset:{1024*pq} sc1')
    stamp(a, 8)
    bgend(a)
    for k in range(11, 16):
        for f in RD(k): run(a, f)
    stamp(a, 9)
    a.wait(vm=a.tok['pr'])
    a.label('L_pr_chk')
    a('v_cmp_eq_u32 vcc, -1, v30\n s_cbranch_vccnz L_pr_retry')
    a.label('L_pr_ok')
    stamp(a, 10)
    vRW = vXW; vRR = vXW+1
    a(f's_cmp_eq_u32 s{sNP}, 2\n s_cbranch_scc1 L_pathB')
    b = a.fork()
    slow = []
    from gen2 import tail
    env = dict(globals()); env.update(locals())
    tail(a, 3, env)
    b.label('L_pathB')
    tail(b, 2, env)
    r = Asm(); r.out = a.out
    r.label('L_dbg_retry')
    r(f'buffer_load_dword v30, v24, {srd(SDBG)}, 0 offen sc1\n s_waitcnt vmcnt(0)')
    retry(r, 'L_dbg_chk', 'L_dbg_ok')
    r.label('L_st_retry')
    r(f's_cmp_gt_u32 s{sCNT}, {LIMIT}\n s_cbranch_scc1 L_st_ok\n s_add_u32 s{sCNT}, s{sCNT}, 1')
    st_loads(r); r('s_waitcnt vmcnt(0)\n s_branch L_st_chk')
    r.label('L_pr_retry')
    r(f's_cmp_gt_u32 s{sCNT}, {LIMIT}\n s_cbranch_scc1 L_pr_ok\n s_add_u32 s{sCNT}, s{sCNT}, 1')
    probe(r); r('s_waitcnt vmcnt(0)\n v_cmp_eq_u32 vcc, -1, v30\n s_cbranch_vccnz L_pr_retry')
    for gi in range(D-1): zload(r, gi, RG(gi))
    r('s_waitcnt vmcnt(0)\n s_branch L_pr_ok')
    for f in slow: f(r)
    r.label('L_end'); r('s_endpgm')
    r.raw('L_codeend:')
    hdr = open('parallel_sum__spectral_fnet__mixer_gmlp__prompt.s.ref').read().split('; @launch')[0] if cfg.get('hdr', True) else ''
    txt = hdr + f'''; @launch grid=(256,1,1) block=(256,1,1) lds=163840
.amdgcn_target "amdgcn-amd-amdhsa--gfx950"
.text
.globl {KN}
.p2align 8
.type {KN},@function
{KN}:
''' + '\n'.join(a.out) + f'''
.section .rodata,"a"
.p2align 6
.amdhsa_kernel {KN}
  .amdhsa_next_free_vgpr 512
  .amdhsa_next_free_sgpr 102
  .amdhsa_accum_offset 256
  .amdhsa_group_segment_fixed_size 0
  .amdhsa_kernarg_size 104
  .amdhsa_user_sgpr_count 2
  .amdhsa_user_sgpr_kernarg_segment_ptr 1
  .amdhsa_system_sgpr_workgroup_id_x 1
.end_amdhsa_kernel
'''
    return txt
if __name__ == '__main__':
    cfg = {}
    for kv in sys.argv[2:]:
        k, v = kv.split('='); cfg[k] = int(v) if v.lstrip('-').isdigit() else v
    open(sys.argv[1], 'w').write(gen(cfg))
```

```python
from asmlib import *
def tail(a, NP, env):
    globals().update({k: v for k, v in env.items() if not k.startswith('__') and k not in ('a', 'tail')})
    P = 'A' if NP == 3 else 'B'
    zt = dict(env['zt'])
    FL = []
    def F(text):
        for l in text.strip().split('\n'):
            l = l.strip()
            if l.startswith(('s_cselect', 'v_cndmask')): FL[-1] += '\n' + l
            else: FL.append(l)
    F(f'''v_add_u32 v{vZ[1]}, 0x20000, v{vL16}
    v_add_u32 v{vZ[2]}, 0x40000, v{vL16}
    s_lshl_b32 s3, s{sW}, 13
    s_add_u32 s3, s3, {L_RED}
    v_add_u32 v{vRW}, s3, v{vL16}
    s_lshl_b32 s3, s{sW}, 11
    s_add_u32 s3, s3, {L_RED}
    v_lshrrev_b32 v40, 4, v0
    v_lshl_add_u32 v40, v40, 8, s3
    v_add_u32 v{vRR}, v40, v{vL16}''')
    if NP == 2:
        F(f'''v_and_b32 v32, 31, v0
        v_cvt_f32_u32 v32, v32
        v_lshrrev_b32 v33, 5, v0
        s_lshl_b32 s3, s{sB}, 10
        v_add_u32 v36, s3, v{vL16}
        s_lshl_b32 s3, s{sW}, 12
        v_add_u32 v37, s3, v{vL16}
        s_lshl_b32 s3, s{sW}, 11
        v_add_u32 v38, s3, v{vL16}''')
        AR, CO, SI, PKD = 80, 88, 96, 104
        def args(kf, n0, steps):
            F(f'v_mul_f32 v34, {H(kf)}, v32\n {n0}\n v_cvt_f32_u32 v35, v35')
            for i, st in enumerate(steps):
                if st == 0: F(f'v_mul_f32 v{AR+i}, v35, v34')
                else: F(f'v_add_f32 v39, {H(float(st))}, v35\n v_mul_f32 v{AR+i}, v39, v34')
        args(1/32, f's_lshl_b32 s3, s{sB}, 4\n v_lshl_add_u32 v35, v33, 3, s3', range(8))
        for i in range(8): F(f'v_cos_f32 v{CO+i}, v{AR+i}')
        for i in range(8): F(f'v_sin_f32 v{SI+i}, v{AR+i}')
        for i in range(8): F(f'v_cvt_pk_bf16_f32 v{PKD+i}, v{CO+2*i}, v{CO+2*i+1}')
        for i in range(4): F(f'v_xor_b32 v{PKD+8+i}, 0x80008000, v{PKD+4+i}')
        for q in range(3): F(f'ds_write_b128 v36, {V(PKD+4*q,4)} offset:{2048*q}')
        args(1/2048, f's_lshl_b32 s3, s{sW}, 4\n v_lshl_add_u32 v35, v33, 2, s3', [0,1,2,3,8,9,10,11])
        for i in range(8): F(f'v_cos_f32 v{CO+i}, v{AR+i}')
        for i in range(8): F(f'v_sin_f32 v{SI+i}, v{AR+i}')
        for j in range(2):
            F(f'ds_write_b128 v37, {V(CO+4*j,4)} offset:{6144+j*2048}\n ds_write_b128 v37, {V(SI+4*j,4)} offset:{6144+j*2048+1024}')
        args(1/64, f's_lshl_b32 s3, s{sA}, 5\n s_add_u32 s3, s3, s{sB}\n v_lshl_add_u32 v35, v33, 2, s3', [0,2,8,10,16,18,24,26])
        for i in range(8): F(f'v_cos_f32 v{40+i}, v{AR+i}')
        for i in range(8): F(f'v_sin_f32_e64 v{48+i}, -v{AR+i}')
        for i in range(8): F(f'v_cvt_pk_bf16_f32 v{116+i}, v{40+2*i}, v{41+2*i}')
        for q in range(2): F(f'ds_write_b128 v38, {V(116+4*q,4)} offset:{22528+1024*q}')
    FL0 = FL; FL = []
    vX3, vO3, vY3 = vWG, vWG+1, vWG+2; vOR = vSG; vPQG, vPQW = vWR, vWR+1; vPQR, vYS = vZS, vSTA
    sX3, sHB, sYB, sYS, sY13, sPQL = sWO, sWO+1, sWO+2, sWO+3, sWO+4, sWO+5
    F(f'''v_and_b32 v40, 12, v0
    v_and_b32 v41, 15, v0
    v_add_u32 v40, v40, v41
    s_lshl_b32 s3, s{sA}, 5
    s_lshl_b32 s7, s{sB}, 2
    s_add_u32 s3, s3, s7
    v_add_u32 v40, s3, v40
    v_lshrrev_b32 v41, 4, v0
    v_lshlrev_b32 v42, 10, v40
    v_lshl_add_u32 v{vX3}, v41, 3, v42
    v_and_b32 v43, 1, v41
    v_lshl_add_u32 v42, v43, 5, v42
    v_lshrrev_b32 v44, 1, v41
    v_lshl_add_u32 v{vO3}, v44, 4, v42
    s_lshl_b32 s{sX3}, s{sR}, 16
    s_add_u32 s{sX3}, s{sX3}, s{sT+2}
    s_mul_i32 s{sHB}, s{sR}, 90112
    s_lshl_b32 s3, s{sW}, 10
    s_add_u32 s{sHB}, s{sHB}, s3
    s_add_u32 s{sHB}, s{sHB}, {HH}
    s_lshl_b32 s3, s{sG}, 6
    s_sub_u32 s7, 500, s3
    s_cmp_ge_u32 s{sG}, 4
    s_cselect_b32 s3, s7, s3
    s_cselect_b32 s7, -1, 0
    s_cselect_b32 s{sYS}, 0xfffff000, 0x1000
    s_lshl_b32 s3, s3, 12
    s_add_u32 s{sYB}, s3, {YY}
    s_mul_i32 s{sY13}, s{sYS}, 13
    s_lshl_b32 s3, s{sR}, 6
    v_add_u32 v40, s3, v40
    v_xor_b32 v40, s7, v40
    v_subrev_u32 v40, s7, v40
    v_and_b32 v40, 0x7ff, v40
    v_xor_b32 v42, s7, v41
    v_and_b32 v42, 3, v42
    v_lshlrev_b32 v42, 14, v42
    v_lshrrev_b32 v44, 6, v40
    v_lshl_add_u32 v42, v44, 7, v42
    v_and_b32 v44, 31, v40
    v_lshl_add_u32 v42, v44, 2, v42
    v_bfe_u32 v44, v40, 5, 1
    v_lshl_add_u32 v{vY3}, v44, 1, v42
    v_bfe_u32 v40, v0, 2, 2
    v_lshl_add_u32 v42, v41, 3, v40
    v_lshlrev_b32 v42, 7, v42
    v_lshrrev_b32 v44, 1, v40
    v_lshl_add_u32 v44, v43, 1, v44
    v_lshl_add_u32 v42, v44, 5, v42
    v_and_b32 v44, 3, v0
    v_lshl_add_u32 v42, v44, 3, v42
    v_add_u32 v{vOR}, {L_WO+40960}, v42
    v_xor_b32 v{vOR+1}, 32, v{vOR}
    v_xor_b32 v{vOR+2}, 64, v{vOR}
    v_xor_b32 v{vOR+3}, 0x60, v{vOR}'''.replace('s_cselect_b32 s%d, 0xfffff000, 0x1000' % sYS, f's_xor_b32 s{sYS}, s7, 0x1000\n s_sub_u32 s{sYS}, s{sYS}, s7'))
    if NP == 2:
        F(f'''s_and_b32 s3, s{sR}, 3
        s_lshl_b32 s3, s3, 6
        v_xor_b32 v42, s{sW}, v44
        v_lshl_add_u32 v42, v42, 4, s3
        v_lshrrev_b32 v32, 2, v0
        v_lshl_add_u32 v{vPQG}, v32, 8, v42
        s_sub_u32 s3, s{sG}, 6
        s_lshl_b32 s3, s3, 3
        s_lshr_b32 s7, s{sR}, 2
        s_add_u32 s3, s3, s7
        s_lshl_b32 s3, s3, 17
        s_lshl_b32 s7, s{sW}, 12
        s_add_u32 s3, s3, s7
        s_add_u32 s{sPQL}, s3, {PQ}
        s_lshl_b32 s3, s{sW}, 10
        s_add_u32 s3, s3, {L_RED}
        v_add_u32 v{vPQW}, s3, v{vL16}
        v_lshrrev_b32 v32, 5, v0
        v_lshl_add_u32 v42, v32, 3, v40
        v_lshlrev_b32 v42, 10, v42
        v_lshrrev_b32 v33, 1, v44
        v_lshl_add_u32 v33, v43, 1, v33
        v_lshl_add_u32 v42, v33, 6, v42
        v_xor_b32 v33, s{sW}, v40
        v_lshl_add_u32 v42, v33, 4, v42
        v_and_b32 v33, 1, v44
        v_lshl_add_u32 v42, v33, 3, v42
        v_add_u32 v{vPQR}, {L_RED}, v42
        v_and_b32 v33, 31, v0
        v_lshlrev_b32 v33, 2, v33
        v_lshl_add_u32 v{vYS}, v32, 8, v33
        s_sub_u32 s3, s{sG}, 6
        s_lshl_b32 s3, s3, 5
        s_add_u32 s3, s3, s{sR}
        s_lshl_b32 s3, s3, 2
        s_add_u32 s3, s3, s{sW}
        s_lshl_b32 s3, s3, 12
        s_add_u32 s{sYST}, s3, {YY+4096}''')
        vY0 = vY3
    else:
        vY0 = vWR
        F(f'''s_cmp_eq_u32 s{sG}, 0
        s_cselect_b32 s3, 16, 0
        v_mov_b32 v{vY0}, {OOB}
        v_cmp_le_u32 vcc, s3, v0
        v_cndmask_b32 v{vY0}, v{vY0}, v{vY3}, vcc''')
    FL1 = FL
    if NP == 3: FL0 += FL1; FL1 = []
    G = 32*NP
    ACC = lambda r: 224 if (NP-1-r) % 2 == 0 else 192
    a.wait(lg=a.lg_n)
    if NP == 2: a('s_barrier')
    TP = 80; HP = 112
    def red_ops(r, pk):
        W = [(lambda a, q=q: a.tok.__setitem__('rw', a.one(f'ds_write_b128 v{vRW}, {V(ACC(r)+4*q,4)} offset:{1024*q}'))) for q in range(8)]
        def bar(a): a.wait(lg=a.tok['rw']); a('s_barrier')
        Rd = [(lambda a, q=q: a.tok.__setitem__(('rr', q), a.one(f'ds_read_b128 {V(TP+4*q,4)}, v{vRR} offset:{(q//2)*8192+(q%2)*256}'))) for q in range(8)]
        C = []
        def op(t): C.append(lambda a: a(t))
        def add8(d, x, y):
            if pk:
                for p in range(4): op(f'v_pk_add_f32 {V(d+2*p,2)}, {V(x+2*p,2)}, {V(y+2*p,2)}')
            else:
                for p in range(8): op(f'v_add_f32 v{d+p}, v{x+p}, v{y+p}')
        C.append(lambda a: a.wait(lg=a.tok['rr', 3])); add8(TP, TP, TP+8)
        if pk:
            for p in range(4): op(f'v_pk_add_f32 {V(TP+2*p,2)}, {V(TP+2*p,2)}, {V(vBS,2)} op_sel:[0,{p//2}] op_sel_hi:[1,{p//2}]')
        else:
            for p in range(8): op(f'v_add_f32 v{TP+p}, v{TP+p}, v{vBS+p//4}')
        C.append(lambda a: a.wait(lg=a.tok['rr', 7])); add8(TP+16, TP+16, TP+24); add8(TP, TP, TP+16)
        if pk:
            for p in range(4): op(f'v_pk_mul_f32 {V(TP+2*p,2)}, {V(TP+2*p,2)}, {V(ACC1+8*r+2*p,2)}')
        else:
            for p in range(8): op(f'v_mul_f32 v{TP+p}, v{TP+p}, v{ACC1+8*r+p}')
        for p in range(4): op(f'v_cvt_pk_bf16_f32 v{HP+p}, v{TP+2*p}, v{TP+2*p+1}')
        op(f'v_permlane16_swap_b32 v{HP}, v{HP+2}'); op(f'v_permlane16_swap_b32 v{HP+1}, v{HP+3}')
        op(f'buffer_store_dwordx4 {V(HP,4)}, v{vHS}, {srd(SWS)}, s{sHST+r} offen sc1')
        return W, bar, Rd, C
    PQR = [32, 36, 40, 44, 48, 52, 116, 120]
    def pq_load(a, i):
        a(f's_add_u32 s5, s{sPQL}, {i*16384}')
        a.tok['pq'] = a.one(f'buffer_load_dwordx4 {V(PQR[i],4)}, v{vPQG}, {srd(SWS)}, s5 offen sc1')
    wol = list(range(NEARLY, 22))
    for r in range(NP):
        a.cmt(f'P2 round {r}')
        sched = {}
        def at(g, f): sched.setdefault(g, []).append(f)
        if r > 0:
            W, bar, Rd, C = red_ops(r-1, False)
            for q, f in enumerate(W): at(4+2*q, f)
            at(24, bar)
            for q, f in enumerate(Rd): at(24+q, f)
            for q, f in enumerate(C): at(34+q//2, f)
        if r: at(61, lambda a: (a.wait(lg=a.lg_n), a('s_barrier')))
        else:
            def sig2(a):
                assert a.vm_done >= a.tok['pqs']
                a('s_barrier'); dbg_store(a, 3)
            s2 = 2*D
            if 'cp2' in cfg:
                c0, cs = cfg['cp2'], cfg.get('cp2s', 2)
                at(c0, lambda a: [a(f'v_mov_b32 v{ACC(1)+i}, -1') for i in range(4)])
                for q, t in enumerate(clr_ops(ACC(1), cfg.get('cl', 'hy'))):
                    at(c0+1+q*cs, lambda a, t=t: a.tok.__setitem__('pqs', a.one(t))); s2 = (c0+1+q*cs)//2*2 + 2*D + 2
            at(s2, sig2)
        fl = FL0 if r == 0 else FL1 if r == 1 else []
        ng = 62 if r == 0 else 2*(32-D+1)-2
        for q, t in enumerate(fl): at(q*ng//len(fl), lambda a, t=t: a(t))
        if r == NP-1:
            def d2l(a):
                a('v_lshlrev_b32 v25, 2, v0')
                a.tok['dbg'] = a.one(f'buffer_load_dword v30, v25, {srd(SDBG)}, 0 offen sc1')
            def d2c(a):
                a.wait(vm=a.tok['dbg'])
                a.label(f'L_d2{P}_chk')
                a(f'v_and_b32 v30, 0x02020202, v30\n v_cmp_ne_u32 vcc, 0x02020202, v30\n s_cbranch_vccnz L_d2{P}_retry')
                a.label(f'L_d2{P}_ok')
            def d2r(s):
                s.label(f'L_d2{P}_retry')
                s(f'buffer_load_dword v30, v25, {srd(SDBG)}, 0 offen sc1\n s_waitcnt vmcnt(0)')
                retry(s, f'L_d2{P}_chk', f'L_d2{P}_ok')
            slow.append(d2r)
            at(1, d2l); at(2*D+1, d2c)
            assert 2*D+1 < 2*(32-D+1)
        MX = 26 + r % 2
        for i in range(32):
            gi = r*32+i
            a.wait(vm=zt[gi])
            if i == 1: a(f'v_max_u32 v{MX}, v{RG(gi-1)}, v{RG(gi)}')
            elif i % 2: a(f'v_max3_u32 v{MX}, v{RG(gi-1)}, v{RG(gi)}, v{MX}')
            for tt in range(2):
                acc = V(ACC(r)+16*tt, 16)
                a(f'v_mfma_f32_32x32x16_bf16 {acc}, {V(RG(gi),4)}, {A(i*8+4*tt,4)}, {acc if i else 0}')
                if tt == 0:
                    nx = gi+D-1
                    if nx < G: zt[nx] = zload(a, nx, RG(nx))
                    elif NP == 2 and nx-G < 8: pq_load(a, nx-G)
                    elif NP == 3 and wol: wo_issue(a, wol.pop(0))
                for f in sched.get(2*i+tt, []): f(a)
        a(f'v_cmp_eq_u32 vcc, -1, v{MX}\n s_cbranch_vccnz L_slow{P}{r}')
        a.label(f'L_ret{P}{r}')
        stamp(a, 11+r)
        def mk_slow(r=r, MX=MX):
            def f(s):
                s.label(f'L_slow{P}{r}')
                s(f's_cmp_gt_u32 s{sCNT}, {LIMIT}\n s_cbranch_scc1 L_ret{P}{r}\n s_add_u32 s{sCNT}, s{sCNT}, 1\n v_mov_b32 v{MX}, 0')
                for bb in range(4):
                    for q in range(8): zload(s, r*32+bb*8+q, TP+4*q)
                    s('s_waitcnt vmcnt(0)')
                    for q in range(4): s(f'v_max3_u32 v{MX}, v{TP+8*q}, v{TP+8*q+4}, v{MX}')
                    for q in range(8):
                        i = bb*8+q
                        for tt in range(2):
                            acc = V(ACC(r)+16*tt, 16)
                            s(f'v_mfma_f32_32x32x16_bf16 {acc}, {V(TP+4*q,4)}, {A(i*8+4*tt,4)}, {acc if i else 0}')
                s(f'v_cmp_eq_u32 vcc, -1, v{MX}\n s_cbranch_vccnz L_slow{P}{r}\n s_nop 7\n s_nop 7\n s_branch L_ret{P}{r}')
            return f
        slow.append(mk_slow())
    if NP == 2: stamp(a, 13)
    HF = 128; A3 = 32; XR = 48; YR = 56
    def hload(a, k):
        a(f's_add_u32 s3, s{sHB}, {KORD[k]*4096}')
        a.tok['h', k] = a.one(f'buffer_load_dwordx4 {V(HF+4*k,4)}, v{vL16}, {srd(SWS)}, s3 offen sc1')
    K0 = [0, 8, 16, 22]
    HL = lambda s: [(lambda a, k=k: hload(a, k)) for k in range(K0[s], K0[s+1])]
    XL = [(lambda a, m=m: a.tok.__setitem__('x', a.one(f'buffer_load_dwordx2 {V(XR+2*m,2)}, v{vX3}, {srd(SX)}, s{sX3} offen offset:{32*m}'))) for m in range(4)]
    W, bar, Rd, C = red_ops(NP-1, True)
    L = [(lambda a, k=k: wo_issue(a, k)) for k in wol] + (HL(0) if NP == 3 else [])
    n1 = cfg.get('tl1', 4); n2 = cfg.get('tl2', 3)
    for q, f in enumerate(W):
        f(a)
        if q >= 8-n1 and L: L.pop(0)(a)
    bar(a)
    for f in Rd: f(a)
    for q in range(n2):
        if L: L.pop(0)(a)
    bgset(a, L, cfg.get('tgap', 48), 20)
    for f in C[:-1]: f(a)
    a.bg_on = False; L = a.bg[a.bg_i:]
    C[-1](a)
    stamp(a, 14)
    if NP == 3:
        for f in L: run(a, f)
        pend = HL(1) + XL
    else:
        a.cmt('FFT')
        for f in L: run(a, f)
        B1, B2, A1, TW, D1, A2 = 0, 24, 56, 192, 128, 80
        for q in range(6): a(f'ds_read_b128 {A(B1+4*q,4)}, v{vL16} offset:{1024*q}')
        for q in range(8): a(f'ds_read_b128 {A(B2+4*q,4)}, v{vL16} offset:{22528+1024*q}')
        a.wait(vm=a.tok['pq'])
        a('s_barrier')
        for i in range(8): t = a.one(f'ds_write_b128 v{vPQW}, {V(PQR[i],4)} offset:{4096*i}')
        a.wait(lg=t)
        a('s_barrier')
        at1 = {}
        for tile in range(2):
            for ka in range(2):
                for pq in range(2):
                    for u in range(2):
                        at1[tile, ka] = a.one(f'ds_read_b64_tr_b16 {A(A1+((tile*2+ka)*2+pq)*4+2*u,2)}, v{vPQR} offset:{(16*ka+4*u)*1024+tile*512+pq*256}')
        twt = {}
        for tile in range(2):
            U = V(D1+32*tile, 16); Vv = V(D1+32*tile+16, 16)
            for ka in range(2):
                a.wait(lg=at1[tile, ka])
                Pf = A(A1+((tile*2+ka)*2)*4, 4); Qf = A(A1+((tile*2+ka)*2+1)*4, 4)
                cc, ss, ns = A(B1+4*ka, 4), A(B1+8+4*ka, 4), A(B1+16+4*ka, 4)
                for n, (acc, x, y) in enumerate(((U, Pf, cc), (Vv, Pf, ss), (U, Qf, ns), (Vv, Qf, cc))):
                    a(f'v_mfma_f32_32x32x16_bf16 {acc}, {x}, {y}, {acc if (ka or n > 1) else 0}')
                    q = (tile*2+ka)*4+n
                    twt[q] = a.one(f'ds_read_b128 {V(TW+4*q,4)}, v{vL16} offset:{6144+1024*q}')
        E, O = 32, 48
        for tile in range(2):
            a.wait(lg=twt[tile*8+7])
            U = D1+32*tile; Vv = U+16
            for j in range(4):
                tc = TW+((tile*4+j)*2)*4; ts = tc+4
                for p in range(2):
                    a(f'v_pk_mul_f32 {V(112+4*p,2)}, {V(Vv+4*j+2*p,2)}, {V(ts+2*p,2)}')
                    a(f'v_pk_mul_f32 {V(114+4*p,2)}, {V(Vv+4*j+2*p,2)}, {V(tc+2*p,2)}')
                for p in range(2):
                    a(f'v_pk_fma_f32 {V(Vv+4*j+2*p,2)}, {V(U+4*j+2*p,2)}, {V(ts+2*p,2)}, {V(114+4*p,2)}')
                    a(f'v_pk_fma_f32 {V(U+4*j+2*p,2)}, {V(U+4*j+2*p,2)}, {V(tc+2*p,2)}, {V(112+4*p,2)} neg_lo:[0,0,1] neg_hi:[0,0,1]')
                for pi in range(2):
                    for cp, X in enumerate((U, Vv)):
                        a(f'v_cvt_pk_bf16_f32 v{A2+((tile*2+pi)*2+cp)*4+j}, v{X+4*j+pi}, v{X+4*j+pi+2}')
            for cp in range(2):
                for pi in range(2):
                    acc = V(O if pi else E, 16); q = ((tile*2+pi)*2+cp)*4
                    a(f'v_mfma_f32_32x32x16_bf16 {acc}, {A(B2+q,4)}, {V(A2+q,4)}, {acc if (tile or cp) else 0}')
        for hf in range(2):
            for p in range(8):
                a(f'v_pk_add_f32 {V(D1+16*hf+2*p,2)}, {V(E+2*p,2)}, {V(O+2*p,2)}' + (' neg_lo:[0,1] neg_hi:[0,1]' if hf else ''))
            for p in range(8): a(f'v_cvt_pk_bf16_f32 v{64+8*hf+p}, v{D1+16*hf+2*p}, v{D1+16*hf+2*p+1}')
            for p in range(8): a(f'buffer_store_dword v{64+8*hf+p}, v{vYS}, {srd(SWS)}, s{sYST} offen offset:{(p//2)*512+(p%2)*128+hf*2048} sc1')
        for f in HL(0): f(a)
        pend = HL(1) + XL
    stamp(a, 15)
    def yloads(a):
        a(f's_mov_b32 s7, s{sYB}')
        for q in range(16):
            a.tok['y'] = a.one(f'buffer_load_short_d16_hi v{YR+q}, v{vY3 if q else vY0}, {srd(SWS)}, s7 offen sc1')
            if q < 15: a(f's_add_u32 s7, s7, s{sY13 if q % 4 == 3 else sYS}')
    def o_reads(k):
        pos = (k+10) % 22; ops = []
        if pos == 0: ops.append(lambda a: [a(f'v_subrev_u32 v{vOR+m}, 40960, v{vOR+m}') for m in range(4)])
        base = 10 if k < 12 else 0
        AR = (0 if k < 8 else 128 if k < 16 else 0) + (k - (0 if k < 8 else 8 if k < 16 else 16))*16
        for m in range(4):
            for u in range(2):
                ops.append(lambda a, m=m, u=u: a.tok.__setitem__(('or', k), a.one(f'ds_read_b64_tr_b16 {A(AR+4*m+2*u,2)}, v{vOR+m} offset:{(pos-base)*4096+u*512}')))
        return ops
    def mf3(a, k, m):
        AR = (0 if k < 8 else 128 if k < 16 else 0) + (k - (0 if k < 8 else 8 if k < 16 else 16))*16
        a(f'v_mfma_f32_16x16x32_bf16 {V(A3+4*m,4)}, {A(AR+4*m,4)}, {V(HF+4*k,4)}, {V(A3+4*m,4) if k else 0}')
    def hcheck(a, s, first_wait=True):
        ks = list(range(K0[s], K0[s+1]))
        a.wait(vm=a.tok['h', ks[-1]])
        a.label(f'L_h{P}{s}_chk')
        a(f'v_max_u32 v24, v{HF+4*ks[0]}, v{HF+4*ks[1]}')
        for q in range(1, len(ks)//2): a(f'v_max3_u32 v24, v{HF+4*ks[2*q]}, v{HF+4*ks[2*q+1]}, v24')
        a(f'v_cmp_eq_u32 vcc, -1, v24\n s_cbranch_vccnz L_h{P}{s}_retry')
        a.label(f'L_h{P}{s}_ok')
        def f(r):
            r.label(f'L_h{P}{s}_retry')
            r(f's_cmp_gt_u32 s{sCNT}, {LIMIT}\n s_cbranch_scc1 L_h{P}{s}_ok\n s_add_u32 s{sCNT}, s{sCNT}, 1')
            for k in ks: hload(r, k)
            r(f's_waitcnt vmcnt(0)\n s_branch L_h{P}{s}_chk')
        slow.append(f)
    def wo_bar(a, k):
        if k >= NEARLY and not a.tok.get(('wob', k)):
            a.wait(vm=a.tok['wo', k]); a('s_barrier')
            for kk in range(22):
                if ('wo', kk) in a.tok and a.tok['wo', kk] <= a.vm_done: a.tok['wob', kk] = True
    wo_bar(a, 1)
    for k in range(2):
        for f in o_reads(k): f(a)
    hcheck(a, 0)
    XU = 80
    rdq = list(range(2, 22))
    for k in range(16):
        if k == 8:
            while pend: pend.pop(0)(a)
            hcheck(a, 1)
        if k == cfg.get('h2pos', 12):
            for f in HL(2): f(a)
            yloads(a)
        nk = rdq.pop(0)
        if nk >= NEARLY: wo_bar(a, 21)
        ops = o_reads(nk)
        a.wait(lg=a.tok['or', k])
        for m in range(4):
            mf3(a, k, m)
            if m % 2 and pend: pend.pop(0)(a)
            for _ in range(2 if m else len(ops)-6): ops.pop(0)(a)
    for nk in rdq:
        for f in o_reads(nk): f(a)
    a.wait(vm=a.tok['x'])
    for m in range(4):
        for p in range(2):
            a(f'v_lshlrev_b32 v{XU+4*m+2*p}, 16, v{XR+2*m+p}\n v_and_b32 v{XU+4*m+2*p+1}, 0xffff0000, v{XR+2*m+p}')
    for p in range(8): a(f'v_pk_add_f32 {V(A3+2*p,2)}, {V(A3+2*p,2)}, {V(XU+2*p,2)}')
    stamp(a, 16)
    a.wait(lg=a.lg_n)
    hcheck(a, 2)
    stamp(a, 17)
    for k in range(16, 22):
        for m in range(4): mf3(a, k, m)
    a.wait(vm=a.tok['y'])
    a.label(f'L_y{P}_chk')
    a(f'v_max_u32 v24, v{YR}, v{YR+1}')
    for q in range(1, 8): a(f'v_max3_u32 v24, v{YR+2*q}, v{YR+2*q+1}, v24')
    a(f'v_cmp_eq_u32 vcc, 0xffff0000, v24\n s_cbranch_vccnz L_y{P}_retry')
    a.label(f'L_y{P}_ok')
    def yr(r):
        r.label(f'L_y{P}_retry')
        r(f's_cmp_gt_u32 s{sCNT}, {LIMIT}\n s_cbranch_scc1 L_y{P}_ok\n s_add_u32 s{sCNT}, s{sCNT}, 1')
        yloads(r); r(f's_waitcnt vmcnt(0)\n s_branch L_y{P}_chk')
    slow.append(yr)
    for p in range(8): a(f'v_pk_add_f32 {V(A3+2*p,2)}, {V(A3+2*p,2)}, {V(YR+2*p,2)}')
    for p in range(8): a(f'v_cvt_pk_bf16_f32 v{72+p}, v{A3+2*p}, v{A3+2*p+1}')
    for io in range(2):
        a(f'v_permlane16_swap_b32 v{72+4*io}, v{74+4*io}\n v_permlane16_swap_b32 v{73+4*io}, v{75+4*io}')
        a(f'buffer_store_dwordx4 {V(72+4*io,4)}, v{vO3}, {srd(SOUT)}, s{sX3} offen offset:{64*io}')
    if stamps:
        stamp(a, 18)
        a.waitall(); stamp(a, 19)
        a(f'''s_waitcnt lgkmcnt(0)
        v_writelane_b32 v{vST}, s100, 19
        v_writelane_b32 v{vST}, s{sCNT}, 20
        s_lshl_b32 s3, s2, 2
        s_add_u32 s3, s3, s{sW}
        s_lshl_b32 s3, s3, 8
        s_add_u32 s3, s3, {STAMP}
        v_lshlrev_b32 v24, 2, v0
        buffer_store_dword v{vST}, v24, {srd(SWS)}, s3 offen''')
    if 'calib' in cfg:
        cw = cfg.get('calwg', -1)
        a(f'''v_readlane_b32 s4, v{vST}, {cfg['calib']}
        s_add_u32 s4, s4, 6000''')
        if cw >= 0: a(f's_cmp_eq_u32 s2, {cw}\n s_cbranch_scc0 L_end')
        a.label(f'L_cal{P}')
        a(f'''s_memrealtime s[6:7]
        s_waitcnt lgkmcnt(0)
        s_sub_u32 s6, s6, s4
        s_cmp_lt_i32 s6, 0
        s_cbranch_scc1 L_cal{P}''')
    a('s_endpgm')
```

```python
import sys, math, struct
from asmlib import *
KN = "parallel_sum__spectral_fnet__mixer_gmlp__prompt_kernel"
def f2u(x): return struct.unpack('<I', struct.pack('<f', x))[0]
def H(x): return hex(f2u(x))
Z2 = 0; HH = 0x2C0000; PQ = 0x580000; YY = 0x780000; ST = 0x881000; STAMP = 0x1000000
OOB = 0x40000000
L_STG = 0; L_WO = 73728; L_RING = 65536; L_MISC = 0; L_RED = 32768
NSLOT = 8
SX, SWIN, SWSP, SWOUT, SWS, SOUT, SDBG, SBSP = 8, 12, 16, 20, 24, 28, 32, 36
sR, sG, sW, sA, sB, sP0, sNP, sROT = 40, 41, 42, 43, 44, 45, 46, 47
sXO = 48; sZO = 48; sWO = 56; sSP = 64
sGC = 72; sONE = 74; sLO = 75; sHI = 76; sZST = 77; sHST = 80; sPQST = 83; sSTST = 84; sSTLD = 85
sVAL = 86; sM0W = 88; sM0S = 89; sM0O = 90; sCNT = 91; sMA = 92; sMC = 94; sT = 96
vL16 = 1; vXG = 2; vXW = 4; vXR = 6; vWG = 8; vWR = 11; vSG = 13; vSR = 17; vZS = 21; vHS = 22; vSTA = 23
vTMP = 24; ACC2 = 32; ACC1 = 56; WB = 80; XF = 128; XRAW = 192
LIMIT = 40000
STAGES = [[0,3,6,9,12,15,18,20],[1,4,7,10,13,16,19,21],[2,5,8,11,14,17]]
KORD = STAGES[0]+STAGES[1]+STAGES[2]
def srd(r): return S(r, 4)

def gen(cfg):
    a = Asm()
    stamps = cfg.get('stamps', False)
    vST = 31
    class St: n = 0
    SETS = {0: list(range(20)),
            1: [0,'xi','ad',1,'x0','x1',2,'g0','g2','g4','g6',3,4,'g10','g12','g14',5,6,18,19]}
    SET = SETS[cfg.get('set', 0)]
    def stamp(a, k):
        if not stamps or k not in SET: return
        k = SET.index(k)
        b = a.in_bg; a.in_bg = True
        if k > 0:
            if cfg.get('set', 0): a.raw('    s_waitcnt lgkmcnt(0)'); a.lg_done = a.lg_n
            a(f'v_writelane_b32 v{vST}, s100, {k-1}')
        a('s_memtime s[100:101]' if stamps == 2 else 's_memrealtime s[100:101]')
        a.in_bg = b
    def retry(a, back, out):
        a(f's_add_u32 s{sCNT}, s{sCNT}, 1\n s_cmp_gt_u32 s{sCNT}, {LIMIT}\n s_cbranch_scc1 {out}\n s_branch {back}')
    a('s_cmp_ge_u32 s2, 256\n s_cbranch_scc1 L_end')
    for r, off in ((SX,0),(SWIN,48),(SWS,96),(SWSP,56),(SWOUT,72),(SDBG,88),(SBSP,64),(SOUT,80)):
        a(f's_load_dwordx2 {S(r,2)}, s[0:1], {off}')
    stamp(a, 0)
    def code_pf(a):
        a(f"""s_getpc_b64 s[4:5]
        s_lshl_b32 s6, s2, 9
        s_and_b32 s6, s6, 0xf000
        v_lshl_add_u32 v27, v0, 4, s6
        v_min_u32 v27, L_codeend-{KN}-1024, v27
        global_load_dwordx4 v[124:127], v27, s[4:5]""")
    if cfg.get('pf0', 1): code_pf(a)
    a(f"""v_lshrrev_b32 v25, 6, v0
    s_lshr_b32 s3, s2, 3
    v_readfirstlane_b32 s{sW}, v25""")
    if cfg.get('map', '2d') == 'row':
        a(f"""s_and_b32 s{sR}, s2, 7
        s_lshl_b32 s{sR}, s{sR}, 2
        s_and_b32 s6, s3, 3
        s_add_u32 s{sR}, s{sR}, s6
        s_lshr_b32 s{sG}, s2, 5
        s_lshl_b32 s6, s6, 1
        s_add_u32 s{sROT}, s{sG}, s6""")
    else:
        a(f"""s_and_b32 s{sR}, s2, 3
        s_lshl_b32 s{sR}, s{sR}, 3
        s_and_b32 s6, s3, 7
        s_add_u32 s{sR}, s{sR}, s6
        s_lshr_b32 s7, s3, 3
        s_and_b32 s{sG}, s2, 4
        s_add_u32 s{sG}, s{sG}, s7
        s_lshl_b32 s7, s7, 1
        s_add_u32 s{sROT}, s7, s6""")
    a(f"""s_lshr_b32 s{sA}, s{sW}, 1
    s_and_b32 s{sB}, s{sW}, 1
    s_mov_b32 s{SX+2}, 2097152
    s_mov_b32 s{SX+3}, 0x00020000
    v_bfe_u32 v24, v0, 3, 3
    v_and_b32 v25, 7, v0
    s_lshl_b32 s5, s{sR}, 1
    s_add_u32 s5, s5, s{sA}
    s_lshl_b32 s5, s5, 1
    s_and_b32 s6, s{sG}, 1
    s_add_u32 s5, s5, s6
    s_lshl_b32 s5, s5, 2
    s_add_u32 s5, s5, s{sB}
    s_lshl_b32 s5, s5, 12
    v_and_b32 v26, 4, v24
    v_add_u32 v26, v26, v24
    v_lshl_add_u32 v27, v26, 10, s5
    v_lshl_add_u32 v{vXG}, v25, 4, v27
    v_xor_b32 v{vXG+1}, 0x4000, v{vXG}
    s_lshl_b32 s7, s{sROT}, 7
    s_movk_i32 s6, 0x380""")
    for i in range(8):
        a(f's_and_b32 s{sSP+i}, s7, s6')
        if i < 7: a(f's_addk_i32 s7, 128')
    a('s_waitcnt lgkmcnt(0)')
    stamp(a, 'ka')
    xt = {}
    def x_issue(a, n):
        rs, i = divmod(n, 8)
        xt[rs, i] = a.one(f'buffer_load_dwordx4 {V(XRAW+rs*32+i*4,4)}, v{vXG+rs}, {srd(SX)}, s{sSP+i} offen')
    NX0 = cfg.get('nx0', 10)
    for n in range(NX0): x_issue(a, n)
    if not cfg.get('pf0', 1): code_pf(a)
    a(f"""v_and_b32 v0, 63, v0
    v_lshlrev_b32 v{vL16}, 4, v0""")
    if cfg.get('xw'): a.wait(vm=xt[0, cfg['xw']-1])
    stamp(a, 'xi')
    a(f"""s_mul_i32 s{sP0}, s{sG}, 3
    s_min_u32 s{sP0}, s{sP0}, 20
    s_cmp_ge_u32 s{sG}, 6
    s_cselect_b32 s{sNP}, 2, 3""")
    for i in range(8): a(f's_mul_i32 s{sWO+i}, s{sSP+i}, 1376')
    a(f"""s_mul_i32 s3, s{sW}, {16*2752}
    s_lshl_b32 s7, s{sP0}, 6
    s_add_u32 s3, s3, s7
    s_add_u32 s3, s3, 1376
    s_movk_i32 s7, 2752""")
    for p in range(3):
        a(f"""v_add_u32 v32, {64*p}, v0
        v_mul_u32_u24 v33, 171, v32
        v_lshrrev_b32 v33, 11, v33
        v_mul_u32_u24 v34, 12, v33
        v_sub_u32 v32, v32, v34
        v_lshrrev_b32 v34, 2, v33
        v_and_b32 v34, 2, v34
        v_xor_b32 v32, v32, v34
        v_lshl_add_u32 v32, v32, 4, s3
        v_mad_u32_u24 v{vWG+p}, v33, s7, v32""")
        if p < 2: a(f's_sub_u32 s3, s3, 1024')
    a(f"""s_mul_i32 s{sM0W}, s{sW}, 3072
    s_add_u32 s{sM0W}, s{sM0W}, {L_RING}""")
    wt = {}
    def w_issue(a, k, p):
        if k == 8 : a(f'v_subrev_u32 v{vWG+p}, 1376, v{vWG+p}')
        wt[k] = a.dma((f's{sM0W}', (k % NSLOT)*12288), f'buffer_load_dwordx4 v{vWG+p}, {srd(SWIN)}, s{sWO+k%8} offen offset:{1024*p} lds')
    for r, n in ((SWIN,1409024),(SWSP,8388608),(SWOUT,704512),(SWS,0x10000000),(SOUT,2097152),(SDBG,256),(SBSP,4096)):
        a(f's_mov_b32 s{r+2}, {n}\n s_mov_b32 s{r+3}, 0x00020000')
    a(f"""v_and_b32 v27, 15, v0
    v_lshrrev_b32 v32, 4, v0
    v_lshrrev_b32 v33, 1, v32
    v_and_b32 v34, 1, v32
    s_lshl_b32 s3, s{sA}, 11
    s_lshl_b32 s7, s{sB}, 8
    s_add_u32 s7, s7, s3
    v_lshl_add_u32 v35, v27, 4, s7
    v_lshl_add_u32 v35, v33, 10, v35
    v_lshl_add_u32 v{vZS}, v34, 9, v35
    s_lshl_b32 s7, s{sB}, 9
    s_add_u32 s7, s7, s3
    v_lshl_add_u32 v35, v27, 4, s7
    v_lshl_add_u32 v35, v34, 10, v35
    v_lshl_add_u32 v{vHS}, v33, 8, v35
    v_lshlrev_b32 v35, 4, v27
    v_lshl_add_u32 v{vSTA}, v32, 2, v35
    s_lshl_b32 s3, s{sR}, 12
    s_mul_i32 s7, s{sR}, 90112
    s_lshl_b32 s{sT+1}, s{sP0}, 17
    s_add_u32 s{sZST}, s{sT+1}, s3
    s_add_u32 s{sZST+1}, s{sZST}, {1<<17}
    s_add_u32 s{sZST+2}, s{sZST}, {2<<17}
    s_lshl_b32 s{sT+1}, s{sP0}, 12
    s_add_u32 s{sT+1}, s{sT+1}, s7
    s_add_u32 s{sHST}, s{sT+1}, {HH}
    s_add_u32 s{sHST+1}, s{sT+1}, {HH+4096}
    s_add_u32 s{sHST+2}, s{sT+1}, {HH+8192}""")
    a(f"""s_cmp_eq_u32 s{sNP}, 2
    s_cselect_b32 s{sZST+2}, {OOB}, s{sZST+2}
    s_cselect_b32 s{sHST+2}, {OOB}, s{sHST+2}
    s_cselect_b32 s{sVAL+1}, 0, 1.0
    s_lshl_b32 s{sT}, s{sG}, 1
    s_add_u32 s{sT}, s{sT}, s{sB}
    s_cmp_eq_u32 s{sT}, 15
    s_cselect_b32 s{sVAL}, 0, 1.0
    s_lshl_b32 s{sT+1}, s{sT}, 17
    s_add_u32 s{sT+1}, s{sT+1}, s3
    s_lshl_b32 s{sT+2}, s{sA}, 11
    s_add_u32 s{sT+1}, s{sT+1}, s{sT+2}
    s_add_u32 s{sPQST}, s{sT+1}, {PQ}
    s_lshl_b32 s{sT+1}, s{sR}, 1
    s_add_u32 s{sT+1}, s{sT+1}, s{sA}
    s_lshl_b32 s{sT+1}, s{sT+1}, 12
    s_add_u32 s{sSTLD}, s{sT+1}, {ST}
    s_lshl_b32 s{sT+1}, s{sT}, 8
    s_add_u32 s{sSTST}, s{sSTLD}, s{sT+1}""")
    sYST = sT+3
    a(f"""s_lshl_b32 s4, s{sR}, 3
    s_add_u32 s4, s4, s{sG}
    s_lshl_b32 s3, s4, 2
    s_add_u32 s3, s3, s{sW}
    s_lshl_b32 s3, s3, 10
    s_add_u32 s{sYST}, s3, {YY+4096}
    s_cmp_eq_u32 s{sW}, 0
    s_cselect_b32 s4, s4, {OOB}""")
    stamp(a, 'su')
    def clr_ops(M1, names):
        ops = []
        m = V(M1, 4)
        for nm in names:
            if nm == 's': ops.append(f'buffer_store_dword v{M1}, v{vSTA}, {srd(SWS)}, s{sSTST} offen sc1')
            if nm == 'z': ops += [f'buffer_store_dwordx4 {m}, v{vZS}, {srd(SWS)}, s{sZST+j} offen sc1' for j in range(3)]
            if nm == 'h': ops += [f'buffer_store_dwordx4 {m}, v{vHS}, {srd(SWS)}, s{sHST+j} offen sc1' for j in range(3)]
            if nm == 'y': ops.append(f'buffer_store_dwordx4 {m}, v{vL16}, {srd(SWS)}, s{sYST} offen sc1')
        return ops
    a(f"""v_xor_b32 v33, v24, v25
    v_and_b32 v34, 3, v25
    v_lshl_add_u32 v33, v34, 4, v33
    v_lshrrev_b32 v34, 2, v25
    v_lshlrev_b32 v34, 12, v34
    v_lshl_add_u32 v33, v33, 4, v34
    s_and_b32 s3, s{sG}, 1
    s_lshl_b32 s3, s3, 7
    s_lshl_b32 s7, s{sW}, 10
    s_add_u32 s3, s3, s7
    v_add_u32 v{vXW}, s3, v33
    v_xor_b32 v{vXW+1}, 0x80, v{vXW}
    s_add_u32 s{sM0O}, s7, {L_WO}
    s_lshl_b32 s5, s7, 2
    s_add_u32 s{sM0S}, s5, {L_STG}
    v_xor_b32 v33, v27, v32
    v_lshl_add_u32 v33, v32, 4, v33
    s_lshl_b32 s3, s{sA}, 11
    v_lshl_add_u32 v{vXR}, v33, 4, s3
    v_xor_b32 v{vXR+1}, 64, v{vXR}
    v_bfe_u32 v33, v0, 2, 2
    v_lshl_add_u32 v33, v32, 3, v33
    v_mul_u32_u24 v33, 192, v33
    v_and_b32 v34, 1, v32
    v_xor_b32 v34, s{sB}, v34
    v_lshl_add_u32 v33, v34, 5, v33
    v_and_b32 v34, 3, v0
    v_lshl_add_u32 v33, v34, 3, v33
    v_add_u32 v{vWR}, {L_RING}, v33
    v_add_u32 v{vWR+1}, {L_RING+4*12288}, v33
    s_lshl_b32 s3, s{sR}, 18
    s_add_u32 s3, s3, s7
    v_lshrrev_b32 v33, 1, v24
    v_xor_b32 v33, v33, v25
    v_lshl_add_u32 v33, v33, 4, s3
    v_lshl_add_u32 v{vSG}, v26, 12, v33
    v_xor_b32 v33, 64, v{vSG}
    v_add_u32 v{vSG+1}, {16*4096-1024}, v33
    v_add_u32 v{vSG+2}, {4*4096-2048}, v{vSG}
    v_add_u32 v{vSG+3}, {20*4096-3072}, v33
    v_and_b32 v33, 31, v0
    v_bfe_u32 v34, v0, 1, 3
    v_lshrrev_b32 v35, 5, v0
    v_xor_b32 v34, v34, v35
    v_lshlrev_b32 v34, 4, v34
    v_lshl_add_u32 v33, v33, 7, v34
    v_add_u32 v{vSR}, s{sM0S}, v33
    v_xor_b32 v{vSR+1}, 32, v{vSR}
    v_xor_b32 v{vSR+2}, 64, v{vSR}
    v_xor_b32 v{vSR+3}, 0x60, v{vSR}""")
    c0 = -2.0*math.sqrt(2.0/math.pi)*math.log2(math.e)
    a(f"""s_mov_b32 s{sGC}, {H(c0*0.044715)}
    s_mov_b32 s{sGC+1}, {H(c0)}
    s_mov_b32 s{sONE}, 0x3f803f80
    s_mov_b32 s{sLO}, 0x00003f80
    s_mov_b32 s{sHI}, 0x3f800000
    s_mov_b32 s{sCNT}, 0
    s_mov_b32 s{sMA}, 0xaaaaaaaa
    s_mov_b32 s{sMA+1}, 0xaaaaaaaa
    s_mov_b32 s{sMC}, 0xcccccccc
    s_mov_b32 s{sMC+1}, 0xcccccccc""")
    a(f"""s_add_u32 s{sT+1}, s{sP0}, s{sNP}
    s_sub_u32 s{sT+1}, s{sT+1}, 1
    s_lshl_b32 s{sT+1}, s{sT+1}, 17
    s_lshl_b32 s3, s{sW}, 15
    s_add_u32 s{sT+1}, s{sT+1}, s3
    s_lshl_b32 s6, s{sP0}, 17
    s_add_u32 s6, s6, s3
    s_lshl_b32 s{sT+2}, s{sG}, 7""")
    for i in range(8): a(f's_lshl_b32 s{sZO+i}, s{sSP+i}, 5\n s_add_u32 s{sZO+i}, s{sZO+i}, s6')
    M1 = 64
    for i in range(4): a(f'v_mov_b32 v{M1+i}, -1')
    a(f"""s_and_b32 s3, s{sG}, 1
    s_lshl_b32 s3, s3, 5
    s_lshl_b32 s7, s{sW}, 6
    s_add_u32 s3, s3, s7
    v_lshl_add_u32 v30, v24, 2, s3
    v_xor_b32 v26, 32, v30""")
    stamp(a, 'ad')
    for n in range(NX0, 16): x_issue(a, n)
    vR1A, vR1B = vXG, vXG+1
    a(f"""s_lshl_b32 s3, s{sA}, 7
    v_lshl_add_u32 v{vR1A}, v32, 4, s3
    v_lshl_add_u32 v{vR1B}, v27, 2, s3""")
    def W(k): return [(lambda a, p=p: w_issue(a, k, p)) for p in range(3)]
    def bgset(a, ops, gap, delay=0):
        a.bg = [o if isinstance(o, tuple) else (o, gap) for o in ops]; a.bg_i = 0; a.bg_next = a.t + delay; a.bg_on = True
    def bgend(a): a.bg_flush(); a.bg_on = False
    NWLN = cfg.get('nwln', 8)
    clr = [(lambda a, t=t: a.tok.__setitem__('clr', a.one(t))) for t in clr_ops(M1, cfg.get('ce', 'sz'))]
    lnbg = sum((W(k) for k in range(NWLN)), [])
    CPOS = cfg.get('cpos', -1)
    if CPOS >= 0:
        for i, f in enumerate(clr): lnbg.insert(CPOS + i*cfg.get('cstep', 1), f)
        clr = []
    bgset(a, lnbg, cfg.get('wgap', 64), cfg.get('w0', 20))
    stamp(a, 1)
    def red8(a, r):
        a(f'''v_add_f32_dpp v{r}, v{r}, v{r} quad_perm:[1,0,3,2] row_mask:0xf bank_mask:0xf
        v_add_f32_dpp v{r}, v{r}, v{r} quad_perm:[2,3,0,1] row_mask:0xf bank_mask:0xf
        v_add_f32_dpp v{r}, v{r}, v{r} row_half_mirror row_mask:0xf bank_mask:0xf''')
    for rs in range(2):
        a.cmt(f'LN rowset {rs}')
        X = XRAW + rs*32
        a('v_mov_b32 v35, 0\n v_mov_b32 v36, 0')
        for i in range(8):
            if i % 2 == 0: a.wait(vm=xt[rs, i+1])
            for k in range(4): a(f'v_dot2c_f32_bf16 v35, s{sONE}, v{X+4*i+k}')
        stamp(a, f'x{rs}')
        red8(a, 35)
        a(f'v_mul_f32 v35, {H(-1/512)}, v35')
        for i in range(9):
            if i < 8:
                for k in range(4):
                    t = 40 + (i % 2)*8 + 2*k
                    a(f'v_dot2_f32_bf16 v{t}, v{X+4*i+k}, s{sLO}, v35\n v_dot2_f32_bf16 v{t+1}, v{X+4*i+k}, s{sHI}, v35')
            if i > 0:
                j = i-1
                for k in range(4):
                    t = 40 + (j % 2)*8 + 2*k
                    a(f'v_cvt_pk_bf16_f32 v{X+4*j+k}, v{t}, v{t+1}')
                a(f'ds_write_b128 v{vXW+rs}, {V(X+4*j,4)} offset:{8192*j}')
        def sq_tail(a, k0, k1, rs=rs, X=X):
            for k in range(k0, k1): a(f'v_dot2c_f32_bf16 v36, v{X+k}, v{X+k}')
            if k1 < 32: return
            red8(a, 36)
            a(f"""v_mov_b32 v37, {H(1e-5)}
            v_fmac_f32 v37, {H(1/512)}, v36
            v_rsq_f32 v{28+rs}, v37""")
        SQ = cfg.get('sq', 16)
        sq_tail(a, 0, SQ if rs else 32)
    bgend(a)
    stamp(a, 2)
    ORD = {0: [0,1,8,9,2,4,6,3,5,7,10,12,14,11,13,15], 1: list(range(16)), 2: [0,1,8,9,2,3,10,11,4,5,12,13,6,7,14,15],
           3: [0,8,1,9,2,10,3,11,4,12,5,13,6,14,7,15]}[cfg.get('ord', 0)]
    SPSLOT = [n % 7 for n in range(16)]
    vSR2 = [vWG, vWG+1, vWG+2, vXW]
    def SP(n):
        k = ORD[n]
        def mk(p):
            def f(a):
                def pre(a):
                    if p == 0 and n >= 7: a.wait(lg=a.tok['sr', n-7])
                    if k >= 8: a(f's_add_u32 s5, s{sSP+k%8}, 0x20000')
                if SPSLOT[n] >= 4: assert a.tok.get('b11')
                a.tok['sd', n] = a.dma((f's{sM0S}', SPSLOT[n]*16384), f'buffer_load_dwordx4 v{vSG+p}, {srd(SWSP)}, s{5 if k >= 8 else sSP+k} offen offset:{1024*p} lds', pre)
                a.tok['sdn', n] = p
            return f
        return [mk(p) for p in range(4)]
    def RD(n):
        k = ORD[n]
        def mk(h):
            def f(a):
                assert a.tok['sdn', n] == 3
                if n == 15: assert a.tok.get('r1done')
                a.wait(vm=a.tok['sd', n])
                for q in (2*h, 2*h+1):
                    r = ((k % 8)*4+q)*8 + (k//8)*4; sl = SPSLOT[n]
                    a.tok['sr', n] = a.one(f'ds_read_b128 {A(r,4)}, v{vSR+q if sl < 4 else vSR2[q]} offset:{(sl % 4)*16384}')
                a.tok['srn', n] = h
            return (f, 8)
        return [mk(0), mk(1)]
    assert ORD[15] == 15
    aR1A = (228, 236); aR1B = 244
    vOG = vXR; vPR = vXR+1
    NEARLY = cfg.get('nearly', 8)
    def wo_issue(a, k):
        a.tok['wo', k] = a.dma((f's{sM0O}', ((k+10) % 22)*4096), f'buffer_load_dwordx4 v{vOG}, {srd(SWOUT)}, s5 offen lds',
                               lambda a: a(f's_add_u32 s5, s{sT+2}, {KORD[k]*32768}'))
    WO = lambda k: [lambda a: wo_issue(a, k)]
    def w_reads(k):
        ops = []
        sl = k % NSLOT; ar = vWR + (sl >= 4); base = (sl % 4)*12288
        for sg in range(2):
            if k < 8:
                for mt in range(2):
                    s_ = 2*k+sg
                    ops.append(f'ds_read_b128 {V(XF+(s_*2+mt)*4,4)}, v{vXR+sg} offset:{s_*4096+mt*1024}')
            for j in range(3):
                for u in range(2):
                    ops.append(f'ds_read_b64_tr_b16 {V(WB+(k%2)*24+(sg*3+j)*4+2*u,2)}, v{ar} offset:{base+sg*6144+u*768+j*64}')
        return ops
    SIG1 = cfg.get('sig1', 7)
    BAR = {2: 5, 5: 7, 7: None, 11: 15, 15: None}
    def run(a, f): (f[0] if isinstance(f, tuple) else f)(a)
    def gemm_iter(a, k, late=()):
        a.cmt(f'gemm iter {k}')
        a.wait(vm=max(a.tok['clr'] if k == SIG1 else 0, wt[BAR[k]] if BAR.get(k) is not None else 0), lg=a.tok['wr', k])
        if k in BAR: a('s_barrier'); a.tok[f'b{k}'] = True
        stamp(a, f'g{k}')
        fill = [(lambda a, t=t: a.tok.__setitem__(('wr', k+1), a.one(t))) for t in (w_reads(k+1) if k not in (7, 15) else [])]
        late = list(late)
        for sg in range(2):
            for j in range(3):
                for mt in range(2):
                    x = V(XF+(((2*k+sg) % 16)*2+mt)*4, 4); w = V(WB+(k%2)*24+(sg*3+j)*4, 4)
                    acc = V((ACC2 if k < 8 else ACC1)+(j*2+mt)*4, 4)
                    c = '0' if (k % 8 == 0 and sg == 0) else acc
                    a(f'v_mfma_f32_16x16x32_bf16 {acc}, {x}, {w}, {c}' if k < 8 else f'v_mfma_f32_16x16x32_bf16 {acc}, {w}, {x}, {c}')
                    if fill:
                        for _ in range(2):
                            if fill: fill.pop(0)(a)
                    elif late: run(a, late.pop(0))
        for f in late: run(a, f)
    def T2(text):
        L = [l.strip() for l in text.strip().split('\n')]
        return [(lambda a, t='\n'.join(L[i:i+2]): a(t)) for i in range(0, len(L), 2)]
    a.wait(vm=wt[2], lg=a.lg_n)
    a('s_barrier')
    for t in w_reads(0): a.tok['wr', 0] = a.one(t)
    if SQ < 32: sq_tail(a, SQ, 32)
    def dbg_store(a, val=1, t=24):
        a(f"""v_mov_b32 v{t}, {val}
        v_mov_b32 v{t+1}, 0
        buffer_store_byte v{t}, v{t+1}, {srd(SDBG)}, s4 offen sc1""")
    pre = sum((W(k) for k in range(NWLN, 8)), []) + clr
    misc1 = T2(f"""v_lshrrev_b32 v24, 3, v0
        v_bfe_u32 v25, v0, 4, 1
        s_lshl_b32 s3, s{sB}, 1
        v_add_u32 v25, s3, v25
        v_lshlrev_b32 v25, 1, v25
        v_and_b32 v30, 7, v0
        v_xor_b32 v25, v25, v30
        v_lshlrev_b32 v25, 4, v25
        s_lshl_b32 s3, s{sW}, 13
        v_lshl_add_u32 v25, v24, 10, v25
        v_add_u32 v{vOG}, s3, v25""")
    for k in range(8):
        if k < 2: late = pre[:(len(pre)+1)//2] if k == 0 else pre[(len(pre)+1)//2:]
        else: late = W(k+6)
        if k == 2: late = [lambda a: a('ds_write_b32 v30, v28\n ds_write_b32 v26, v29')] + late
        if k == 5:
            def r1r(a):
                for mt in range(2):
                    a(f'''ds_read_b128 {V(ACC1+4*mt,4)}, v{vR1A} offset:{64*mt}
                    ds_read_b128 {A(aR1A[mt],4)}, v{vR1A} offset:{64*mt}
                    ds_read_b32 a{aR1B+mt}, v{vR1B} offset:{64*mt}''')
            late = [r1r] + late
        if k == 7:
            late = [misc1[0], late[0]] + misc1[1:3] + [late[1]] + misc1[3:6] + [late[2]]
        if SIG1 == k: late = [lambda a: dbg_store(a, 1, 24 if k < 7 else vXG)] + late
        gemm_iter(a, k, late)
    stamp(a, 3)
    GAP = cfg.get('gap', 56)
    SL = WB
    def st_load(j):
        def f(a):
            assert a.tok.get('dbgok')
            a.tok['st'] = a.one(f'buffer_load_dwordx4 {V(SL+4*j,4)}, v{vL16}, {srd(SWS)}, s{sSTLD} offen offset:{1024*j} sc1')
        return f
    def st_loads(a):
        for j in range(4): st_load(j)(a)
    def dbg_load(a):
        a(f'v_lshlrev_b32 v{vXG}, 2, v0')
        a.tok['dbg'] = a.one(f'buffer_load_dword v{vXG+1}, v{vXG}, {srd(SDBG)}, 0 offen sc1')
    def dbg_chk(a):
        a.wait(vm=a.tok['dbg'])
        a.label('L_dbg_chk')
        a(f'v_and_b32 v{vXG+1}, 0x01010101, v{vXG+1}\n v_cmp_ne_u32 vcc, 0x01010101, v{vXG+1}\n s_cbranch_vccnz L_dbg_retry')
        a.label('L_dbg_ok'); a.tok['dbgok'] = True
    clr2 = [(lambda a, t=t: a(t)) for t in clr_ops(24, cfg.get('cl', 'hy'))]
    used = []
    def SCH(key, dflt):
        ops = []
        for t in str(cfg.get(key, dflt)).split('.'):
            if t in ('', '-'): continue
            used.append(t); c = t[0]; n = int(t[1:]) if len(t) > 1 else None
            ops += {'W': lambda: W(n), 'S': lambda: SP(n), 'R': lambda: RD(n), 'O': lambda: WO(n), 'C': lambda: clr2, 'D': lambda: [dbg_load],
                    'K': lambda: [dbg_chk], 'T': lambda: [(st_load(j), 24) for j in range(4)], 'N': lambda: [lambda a: None]}[c]()
        return ops
    bgset(a, SCH('e', 'W14.W15.S0.S1.S2'), cfg.get('egap', 52))
    def gelu_tile(a, acc, tmp, rop):
        for p in range(4): a(f'v_pk_mul_f32 {V(acc+2*p,2)}, {V(acc+2*p,2)}, {rop(p)}')
        for p in range(4): a(f'v_pk_mul_f32 {V(tmp+2*p,2)}, {V(acc+2*p,2)}, {V(acc+2*p,2)}')
        for p in range(4): a(f'v_pk_fma_f32 {V(tmp+2*p,2)}, {V(tmp+2*p,2)}, {S(sGC,2)}, {S(sGC,2)} op_sel:[0,0,1] op_sel_hi:[1,0,1]')
        for p in range(4): a(f'v_pk_mul_f32 {V(tmp+2*p,2)}, {V(tmp+2*p,2)}, {V(acc+2*p,2)}')
        for p in range(8): a(f'v_exp_f32 v{tmp+p}, v{tmp+p}')
        for p in range(4): a(f'v_pk_add_f32 {V(tmp+2*p,2)}, {V(tmp+2*p,2)}, 1.0 op_sel_hi:[1,0]')
        for p in range(8): a(f'v_rcp_f32 v{tmp+p}, v{tmp+p}')
        for p in range(4): a(f'v_pk_mul_f32 {V(acc+2*p,2)}, {V(acc+2*p,2)}, {V(tmp+2*p,2)}')
    TM = WB+24; SS = ACC1+8; QQ = ACC1+16
    def b8(a):
        on = a.bg_on; a.bg_on = False
        assert a.tok['clr'] <= wt[13]
        a.wait(vm=wt[13]); a('s_barrier')
        if SIG1 == 8: dbg_store(a, 1, vXG)
        for t in w_reads(8): a.tok['wr', 8] = a.one(t)
        a.bg_on = on
    for j in range(3):
        if j:
            for p in range(4): a(f'v_pk_mul_f32 {V(ACC1+2*p,2)}, {V(ACC1+2*p,2)}, {S(sVAL,2)} op_sel:[0,{j-1}] op_sel_hi:[1,{j-1}]')
        y = ACC2+8*j
        gelu_tile(a, y, TM, lambda p: V(ACC1+2*p, 2))
        for p in range(4):
            if j == 0: a(f'v_pk_mul_f32 {V(QQ+2*p,2)}, {V(y+2*p,2)}, {V(y+2*p,2)}')
            else: a(f'v_pk_fma_f32 {V(QQ+2*p,2)}, {V(y+2*p,2)}, {V(y+2*p,2)}, {V(QQ+2*p,2)}')
            if j == 1: a(f'v_pk_add_f32 {V(SS+2*p,2)}, {V(y+2*p,2)}, {V(ACC2+2*p,2)}')
            if j == 2: a(f'v_pk_add_f32 {V(SS+2*p,2)}, {V(y+2*p,2)}, {V(SS+2*p,2)}')
    if cfg.get('b8', 0) == 0: b8(a)
    for i in range(8): a(f'v_add_f32_dpp v{SS+i}, v{SS+i}, v{SS+i} row_ror:8 row_mask:0xf bank_mask:0x3')
    for i in range(8): a(f'v_add_f32_dpp v{SS+i}, v{QQ+i}, v{QQ+i} row_ror:8 row_mask:0xf bank_mask:0xc')
    for i in range(4): a(f'v_add_f32_dpp v{SS+i}, v{SS+i}, v{SS+i} row_half_mirror row_mask:0xf bank_mask:0x5')
    for i in range(4): a(f'v_add_f32_dpp v{SS+i}, v{SS+4+i}, v{SS+4+i} row_half_mirror row_mask:0xf bank_mask:0xa')
    for i in range(4): a(f'v_add_f32_dpp v{SS+i}, v{SS+i}, v{SS+i} quad_perm:[1,0,3,2] row_mask:0xf bank_mask:0xf')
    for i in range(4): a(f'v_add_f32_dpp v{SS+i}, v{SS+i}, v{SS+i} quad_perm:[2,3,0,1] row_mask:0xf bank_mask:0xf')
    a(f"""v_cndmask_b32 v{SS}, v{SS}, v{SS+1}, {S(sMA,2)}
    v_cndmask_b32 v{SS+2}, v{SS+2}, v{SS+3}, {S(sMA,2)}
    v_cndmask_b32 v26, v{SS}, v{SS+2}, {S(sMC,2)}""")
    left = a.bg[a.bg_i:]; a.bg_on = False
    if cfg.get('eflush', 1):
        for f in left: run(a, f)
        left = []
    a(f'buffer_store_dword v26, v{vSTA}, {srd(SWS)}, s{sSTST} offen sc1')
    if cfg.get('b8', 0) == 1: b8(a)
    for i in range(4): a(f'v_mov_b32 v{24+i}, -1')
    stamp(a, 4)
    vBS = 28
    misc2 = T2(f"""v_and_b32 v28, 12, v0
        v_and_b32 v29, 15, v0
        v_add_u32 v28, v28, v29
        v_lshlrev_b32 v30, 1, v28
        s_lshl_b32 s3, s{sR}, 7
        s_lshl_b32 s7, s{sA}, 6
        s_add_u32 s3, s3, s7
        buffer_load_short_d16_hi v{vBS}, v30, {srd(SBSP)}, s3 offen
        buffer_load_short_d16_hi v{vBS+1}, v30, {srd(SBSP)}, s3 offen offset:8""")
    misc3 = T2(f"""v_lshrrev_b32 v24, 2, v0
        v_lshlrev_b32 v24, 11, v24
        v_bfe_u32 v25, v0, 1, 1
        v_lshl_add_u32 v{vPR}, v25, 8, v24""")
    sr2 = T2('\n'.join(f'v_add_u32 v{vSR2[q]}, 0x10000, v{vSR+q}' for q in range(4)))
    r1b = lambda a: a(f'v_accvgpr_read_b32 v26, a{aR1B}\n v_accvgpr_read_b32 v27, a{aR1B+1}')
    ZD = {8: 'S3', 9: '' if 'cp2' in cfg else 'C', 10: '', 11: 'S4', 12: 'S5.R0', 13: 'D.S6.R1', 14: 'R2.S7', 15: 'R3.K.T'}
    ZX = {8: left, 11: [], 12: sr2, 13: misc3, 14: misc2, 15: [r1b]}
    for k in range(8, 16):
        x = ZX.get(k, []); y = SCH(f'i{k}', ZD[k]); late = []
        while x or y:
            if y: late.append(y.pop(0))
            if x: late.append(x.pop(0))
        gemm_iter(a, k, late)
    stamp(a, 5)
    bgset(a, SCH('q', 'S8.R4.S9.R5.S10.R6.S11.R7'), GAP)
    for j in range(3):
        if j: a(f'v_pk_mul_f32 v[26:27], v[26:27], {S(sVAL,2)} op_sel:[0,{j-1}] op_sel_hi:[1,{j-1}]')
        gelu_tile(a, ACC1+8*j, TM, lambda p: f'v[26:27] op_sel:[0,{p//2}] op_sel_hi:[1,{p//2}]')
    stamp(a, 6)
    a.bg_on = False
    a.wait(vm=a.tok['st'])
    a.label('L_st_chk')
    a(f"""v_pk_add_f32 {V(SL,2)}, {V(SL,2)}, {V(SL+4,2)}
    v_pk_add_f32 {V(SL+2,2)}, {V(SL+2,2)}, {V(SL+6,2)}
    v_pk_add_f32 {V(SL+8,2)}, {V(SL+8,2)}, {V(SL+12,2)}
    v_pk_add_f32 {V(SL+10,2)}, {V(SL+10,2)}, {V(SL+14,2)}
    v_pk_add_f32 {V(SL,2)}, {V(SL,2)}, {V(SL+8,2)}
    v_pk_add_f32 {V(SL+2,2)}, {V(SL+2,2)}, {V(SL+10,2)}
    v_permlane32_swap_b32 v{SL}, v{SL+2}
    v_permlane32_swap_b32 v{SL+1}, v{SL+3}
    v_pk_add_f32 {V(SL,2)}, {V(SL,2)}, {V(SL+2,2)}
    v_permlane16_swap_b32 v{SL}, v{SL+1}
    v_add_f32 v{SL}, v{SL}, v{SL+1}
    v_cmp_u_f32 vcc, v{SL}, v{SL}
    s_cbranch_vccnz L_st_retry""")
    a.label('L_st_ok')
    a.bg_on = bool(cfg.get('nbg', 1))
    RS = SL+8; NB = SL+16
    a(f"""v_mul_f32 v{SL}, {H(1/688)}, v{SL}
    v_mul_f32 v{SL+2}, v{SL}, v{SL}
    v_sub_f32_dpp v{SL+1}, v{SL}, v{SL+2} row_ror:8 row_mask:0xf bank_mask:0xf
    v_max_f32 v{SL+1}, 0, v{SL+1}
    v_add_f32 v{SL+1}, {H(1e-5)}, v{SL+1}
    v_rsq_f32 v{SL+1}, v{SL+1}
    v_mul_f32_e64 v{SL+2}, -v{SL}, v{SL+1}""")
    for i in range(8): a(f'v_mov_b32_dpp v{RS+i}, v{SL+1} row_newbcast:{i} row_mask:0xf bank_mask:0xf')
    for i in range(8): a(f'v_mov_b32_dpp v{NB+i}, v{SL+2} row_newbcast:{i} row_mask:0xf bank_mask:0xf')
    a.bg_on = False; left = a.bg[a.bg_i:]
    PK = SL+24
    for j in range(3):
        y = ACC2+8*j
        for p in range(4): a(f'v_pk_fma_f32 {V(y+2*p,2)}, {V(y+2*p,2)}, {V(RS+2*p,2)}, {V(NB+2*p,2)}')
        for p in range(4): a(f'v_cvt_pk_bf16_f32 v{PK+4*j+p}, v{y+2*p}, v{y+2*p+1}')
        a(f'buffer_store_dwordx4 {V(PK+4*j,4)}, v{vZS}, {srd(SWS)}, s{sZST+j} offen sc1')
    stamp(a, 7)
    D = cfg.get('depth', 10); RING = 128
    vZ = (vL16, vXG, vXG+1); zt = {}
    def zload(a, gi, reg):
        r, i = divmod(gi, 32)
        return a.one(f'buffer_load_dwordx4 {V(reg,4)}, v{vZ[r]}, {srd(SWS)}, s{sZO+i//4} offen offset:{(i%4)*1024} sc1')
    RG = lambda gi: RING + (gi % D)*4
    def probe(a): a.tok['pr'] = a.one(f'buffer_load_dword v30, v{vPR}, {srd(SWS)}, s{sT+1} offen sc1')
    bgset(a, left+SCH('d', 'S12.R8.S13.R9.S14.R10.S15')+sum((WO(k) for k in range(NEARLY)), []), cfg.get('dgap', 56))
    DL = lambda pq, mt: ACC2 + (pq*2+mt)*4
    DH = lambda pq, mt: (48 if pq == 0 else 116) + mt*4
    ST_ = lambda sg, pq: 80 + (sg % 2)*16 + pq*8
    TPK = (112, 124)
    a(f"""v_and_b32 v24, 15, v0
    s_lshl_b32 s3, s{sT}, 4
    s_add_u32 s3, s3, 1
    v_add_u32 v24, s3, v24
    v_cvt_f32_u32 v24, v24
    v_mul_f32 v24, {H(1/512)}, v24
    s_lshl_b32 s3, s{sROT}, 6
    v_lshrrev_b32 v25, 4, v0
    v_lshl_add_u32 v25, v25, 3, s3
    v_cvt_f32_u32 v25, v25
    v_mul_f32 v25, v25, v24
    v_fract_f32 v88, v25
    v_mul_f32 v25, {H(32.0)}, v24""")
    for i in range(1, 8): a(f'v_add_f32 v{88+i}, v{87+i}, v24')
    for i in range(8): a(f'v_add_f32 v{104+i}, v{88+i}, v25')
    a('v_cos_f32 v25, v25')
    for i in range(8): a(f'v_cos_f32 v{80+i}, v{88+i}')
    a('v_add_f32 v25, v25, v25')
    cvt = lambda sg, pq: [f'v_cvt_pk_bf16_f32 v{TPK[pq]+i}, v{ST_(sg,pq)+2*i}, v{ST_(sg,pq)+2*i+1}' for i in range(4)]
    upd = lambda sg, pq: [f'v_fma_f32 v{ST_(sg,pq)+i}, v25, v{ST_(sg+1,pq)+i}, -v{ST_(sg,pq)+i}' for i in range(8)]
    for t in cvt(0, 0): a(t)
    PRPOS = cfg.get('prpos', 8)
    pf = [probe] + [(lambda a, gi=gi: zt.__setitem__(gi, zload(a, gi, RG(gi)))) for gi in range(D-1)]
    def start_pf(a):
        bgset(a, pf + a.bg[a.bg_i:], cfg.get('pgap', 40))
    for sg in range(8):
        if sg == PRPOS: start_pf(a)
        for pq in range(2):
            if sg == 0 and pq == 0: fl = [f'v_sin_f32 v{88+i}, v{88+i}' for i in range(8)] + cvt(0, 1)
            elif sg == 0: fl = [f'v_cos_f32 v{96+i}, v{104+i}' for i in range(8)] + cvt(1, 0)
            elif sg == 1 and pq == 0: fl = [f'v_sin_f32 v{104+i}, v{104+i}' for i in range(8)] + cvt(1, 1)
            elif pq == 0: fl = upd(sg, 1) + cvt(sg, 1)
            elif sg < 7: fl = upd(sg+1, 0) + cvt(sg+1, 0)
            else: fl = [f'v_accvgpr_read_b32 v{96+i}, a{aR1A[i//4]+i%4}' for i in range(8)] + [f'v_cndmask_b32 v24, -1.0, 1.0, {S(sMA,2)}']
            for hf in range(2):
                for mt in range(2):
                    acc = V((DH if hf else DL)(pq, mt), 4)
                    a(f'v_mfma_f32_16x16x32_bf16 {acc}, {V(XF+((sg+8*hf)*2+mt)*4,4)}, {V(TPK[pq],4)}, {acc if sg else 0}')
                    for _ in range(4):
                        if fl:
                            t = fl.pop(0); tk = a.one(t)
                            if t.startswith('ds_'): a.tok['r1'] = tk
    a.tok['r1done'] = True
    if PRPOS == 8: start_pf(a)
    for pq in range(2):
        for p in range(4): a(f'v_pk_fma_f32 {V(DL(pq,0)+2*p,2)}, {V(DH(pq,0)+2*p,2)}, v[24:25], {V(DL(pq,0)+2*p,2)} op_sel_hi:[1,0,1]')
        for p in range(4): a(f'v_pk_mul_f32 {V(DL(pq,0)+2*p,2)}, {V(DL(pq,0)+2*p,2)}, {V(96+2*p,2)}')
        for p in range(4): a(f'v_cvt_pk_bf16_f32 v{WB+4*pq+p}, v{DL(pq,0)+2*p}, v{DL(pq,0)+2*p+1}')
    a.bg_flush(len(pf)); a.bg_on = False
    for pq in range(2): a.tok['pqs'] = a.one(f'buffer_store_dwordx4 {V(WB+4*pq,4)}, v{vL16}, {srd(SWS)}, s{sPQST} offen offset:{1024*pq} sc1')
    stamp(a, 8)
    bgend(a)
    for k in range(16):
        if f'R{k}' not in used:
            for f in RD(k): run(a, f)
    assert all(a.tok['srn', k] == 1 for k in range(16)) and sorted(used) == sorted(set(used) - {'N'}) + ['N']*0 or 'N' in used
    assert all(t in used for t in ('D', 'K', 'T', 'W14', 'W15')) and (('C' in used) != ('cp2' in cfg))
    stamp(a, 9)
    a.wait(vm=a.tok['pr'])
    a.label('L_pr_chk')
    a('v_cmp_eq_u32 vcc, -1, v30\n s_cbranch_vccnz L_pr_retry')
    a.label('L_pr_ok')
    stamp(a, 10)
    vRW = vXW; vRR = vXW+1
    a(f's_cmp_eq_u32 s{sNP}, 2\n s_cbranch_scc1 L_pathB')
    b = a.fork()
    slow = []
    from gen2 import tail
    env = dict(globals()); env.update(locals())
    tail(a, 3, env)
    b.label('L_pathB')
    tail(b, 2, env)
    r = Asm(); r.out = a.out; r.tok['dbgok'] = True
    r.label('L_dbg_retry')
    r(f'buffer_load_dword v{vXG+1}, v{vXG}, {srd(SDBG)}, 0 offen sc1\n s_waitcnt vmcnt(0)')
    retry(r, 'L_dbg_chk', 'L_dbg_ok')
    r.label('L_st_retry')
    r(f's_cmp_gt_u32 s{sCNT}, {LIMIT}\n s_cbranch_scc1 L_st_ok\n s_add_u32 s{sCNT}, s{sCNT}, 1')
    st_loads(r); r('s_waitcnt vmcnt(0)\n s_branch L_st_chk')
    r.label('L_pr_retry')
    r(f's_cmp_gt_u32 s{sCNT}, {LIMIT}\n s_cbranch_scc1 L_pr_ok\n s_add_u32 s{sCNT}, s{sCNT}, 1')
    probe(r); r('s_waitcnt vmcnt(0)\n v_cmp_eq_u32 vcc, -1, v30\n s_cbranch_vccnz L_pr_retry')
    for gi in range(D-1): zload(r, gi, RG(gi))
    r('s_waitcnt vmcnt(0)\n s_branch L_pr_ok')
    for f in slow: f(r)
    r.label('L_end'); r('s_endpgm')
    r.raw('L_codeend:')
    hdr = open('parallel_sum__spectral_fnet__mixer_gmlp__prompt.s.ref').read().split('; @launch')[0] if cfg.get('hdr', True) else ''
    txt = hdr + f'''; @launch grid=(256,1,1) block=(256,1,1) lds=163840
.amdgcn_target "amdgcn-amd-amdhsa--gfx950"
.text
.globl {KN}
.p2align 8
.type {KN},@function
{KN}:
''' + '\n'.join(a.out) + f'''
.section .rodata,"a"
.p2align 6
.amdhsa_kernel {KN}
  .amdhsa_next_free_vgpr 512
  .amdhsa_next_free_sgpr 102
  .amdhsa_accum_offset 256
  .amdhsa_group_segment_fixed_size 0
  .amdhsa_kernarg_size 104
  .amdhsa_user_sgpr_count 2
  .amdhsa_user_sgpr_kernarg_segment_ptr 1
  .amdhsa_system_sgpr_workgroup_id_x 1
.end_amdhsa_kernel
'''
    return txt
if __name__ == '__main__':
    cfg = {}
    for kv in sys.argv[2:]:
        k, v = kv.split('='); cfg[k] = int(v) if v.lstrip('-').isdigit() else v
    open(sys.argv[1], 'w').write(gen(cfg))
```

```python
import sys, math, struct
from asmlib import *
KN = "parallel_sum__spectral_fnet__mixer_gmlp__prompt_kernel"
def f2u(x): return struct.unpack('<I', struct.pack('<f', x))[0]
def H(x): return hex(f2u(x))
Z2 = 0; HH = 0x2C0000; PQ = 0x580000; YY = 0x780000; ST = 0x881000; STAMP = 0x1000000
OOB = 0x40000000
L_STG = 0; L_WO = 73728; L_RING = 65536; L_MISC = 0; L_RED = 32768
NSLOT = 8
SX, SWIN, SWSP, SWOUT, SWS, SOUT, SDBG, SBSP = 8, 12, 16, 20, 24, 28, 32, 36
sR, sG, sW, sA, sB, sP0, sNP, sROT = 40, 41, 42, 43, 44, 45, 46, 47
sXO = 48; sZO = 48; sWO = 56; sSP = 64
sGC = 72; sONE = 74; sLO = 75; sHI = 76; sZST = 77; sHST = 80; sPQST = 83; sSTST = 84; sSTLD = 85
sVAL = 86; sM0W = 88; sM0S = 89; sM0O = 90; sCNT = 91; sMA = 92; sMC = 94; sT = 96
vL16 = 1; vXG = 2; vXW = 4; vXR = 6; vWG = 8; vWR = 11; vSG = 13; vSR = 17; vZS = 21; vHS = 22; vSTA = 23
vTMP = 24; ACC2 = 32; ACC1 = 56; WB = 80; XF = 128; XRAW = 192
LIMIT = 40000
STAGES = [[0,3,6,9,12,15,18,20],[1,4,7,10,13,16,19,21],[2,5,8,11,14,17]]
KORD = STAGES[0]+STAGES[1]+STAGES[2]
def srd(r): return S(r, 4)

PRE = {'a': dict(npk=0, l='W0.W1.W2.W3.W4.W5.W6.W7', wgap=64, i0='E0.E1', i1='E2.E3', i2='W8', i3='W9', i4='W10', i5='W11', e='W14.W15.S0.S1.S2',
                 i8='S3', i10='', i11='S4', i12='S5.R0', i13='D.S6.R1', i14='R2.S7', i15='R3.K.T', q='S8.R4.S9.R5.S10.R6.S11.R7', d='S12.R8.S13.R9.S14.R10.S15'),
       }
def gen(cfg):
    if 'pre' in cfg: cfg = dict(PRE[cfg['pre']], **cfg)
    a = Asm()
    stamps = cfg.get('stamps', False)
    vST = 31
    class St: n = 0
    SETS = {0: list(range(20)),
            1: [0,'xi','ad',1,'x0','x1',2,'g0','g2','g4','g6',3,4,'g10','g12','g14',5,6,18,19]}
    SET = SETS[cfg.get('set', 0)]
    def stamp(a, k):
        if not stamps or k not in SET: return
        k = SET.index(k)
        b = a.in_bg; a.in_bg = True
        if k > 0:
            if cfg.get('set', 0): a.raw('    s_waitcnt lgkmcnt(0)'); a.lg_done = a.lg_n
            a(f'v_writelane_b32 v{vST}, s100, {k-1}')
        a('s_memtime s[100:101]' if stamps == 2 else 's_memrealtime s[100:101]')
        a.in_bg = b
    def retry(a, back, out):
        a(f's_add_u32 s{sCNT}, s{sCNT}, 1\n s_cmp_gt_u32 s{sCNT}, {LIMIT}\n s_cbranch_scc1 {out}\n s_branch {back}')
    a('s_cmp_ge_u32 s2, 256\n s_cbranch_scc1 L_end')
    for r, off in ((SX,0),(SWIN,48),(SWS,96),(SWSP,56),(SWOUT,72),(SDBG,88),(SBSP,64),(SOUT,80)):
        a(f's_load_dwordx2 {S(r,2)}, s[0:1], {off}')
    stamp(a, 0)
    def code_pf(a):
        a(f"""s_getpc_b64 s[4:5]
        s_lshl_b32 s6, s2, 9
        s_and_b32 s6, s6, 0xf000
        v_lshl_add_u32 v27, v0, 4, s6
        v_min_u32 v27, L_codeend-{KN}-1024, v27
        global_load_dwordx4 v[124:127], v27, s[4:5]""")
    if cfg.get('pf0', 1): code_pf(a)
    a(f"""v_lshrrev_b32 v25, 6, v0
    s_lshr_b32 s3, s2, 3
    v_readfirstlane_b32 s{sW}, v25""")
    if cfg.get('map', '2d') == 'row':
        a(f"""s_and_b32 s{sR}, s2, 7
        s_lshl_b32 s{sR}, s{sR}, 2
        s_and_b32 s6, s3, 3
        s_add_u32 s{sR}, s{sR}, s6
        s_lshr_b32 s{sG}, s2, 5
        s_lshl_b32 s6, s6, 1
        s_add_u32 s{sROT}, s{sG}, s6""")
    else:
        a(f"""s_and_b32 s{sR}, s2, 3
        s_lshl_b32 s{sR}, s{sR}, 3
        s_and_b32 s6, s3, 7
        s_add_u32 s{sR}, s{sR}, s6
        s_lshr_b32 s7, s3, 3
        s_and_b32 s{sG}, s2, 4
        s_add_u32 s{sG}, s{sG}, s7
        s_lshl_b32 s7, s7, 1
        s_add_u32 s{sROT}, s7, s6""")
    a(f"""s_lshr_b32 s{sA}, s{sW}, 1
    s_and_b32 s{sB}, s{sW}, 1
    s_mov_b32 s{SX+2}, 2097152
    s_mov_b32 s{SX+3}, 0x00020000
    v_bfe_u32 v24, v0, 3, 3
    v_and_b32 v25, 7, v0
    s_lshl_b32 s5, s{sR}, 1
    s_add_u32 s5, s5, s{sA}
    s_lshl_b32 s5, s5, 1
    s_and_b32 s6, s{sG}, 1
    s_add_u32 s5, s5, s6
    s_lshl_b32 s5, s5, 2
    s_add_u32 s5, s5, s{sB}
    s_lshl_b32 s5, s5, 12
    v_and_b32 v26, 4, v24
    v_add_u32 v26, v26, v24
    v_lshl_add_u32 v27, v26, 10, s5
    v_lshl_add_u32 v{vXG}, v25, 4, v27
    v_xor_b32 v{vXG+1}, 0x4000, v{vXG}
    s_lshl_b32 s7, s{sROT}, 7
    s_movk_i32 s6, 0x380""")
    for i in range(8):
        a(f's_and_b32 s{sSP+i}, s7, s6')
        if i < 7: a(f's_addk_i32 s7, 128')
    a('s_waitcnt lgkmcnt(0)')
    stamp(a, 'ka')
    xt = {}; NT = str(cfg.get('nt', ''))
    def x_issue(a, n):
        rs, i = divmod(n, 8)
        xt[rs, i] = a.one(f'buffer_load_dwordx4 {V(XRAW+rs*32+i*4,4)}, v{vXG+rs}, {srd(SX)}, s{sSP+i} offen' + (' nt' if 'x' in NT else ''))
    NX0 = cfg.get('nx0', 10)
    for n in range(NX0): x_issue(a, n)
    if not cfg.get('pf0', 1): code_pf(a)
    a(f"""v_and_b32 v0, 63, v0
    v_lshlrev_b32 v{vL16}, 4, v0""")
    if cfg.get('xw'): a.wait(vm=xt[0, cfg['xw']-1])
    stamp(a, 'xi')
    a(f"""s_mul_i32 s{sP0}, s{sG}, 3
    s_min_u32 s{sP0}, s{sP0}, 20
    s_cmp_ge_u32 s{sG}, 6
    s_cselect_b32 s{sNP}, 2, 3""")
    for i in range(8): a(f's_mul_i32 s{sWO+i}, s{sSP+i}, 1376')
    a(f"""s_mul_i32 s3, s{sW}, {16*2752}
    s_lshl_b32 s7, s{sP0}, 6
    s_add_u32 s3, s3, s7
    s_add_u32 s3, s3, 1376
    s_movk_i32 s7, 2752""")
    for p in range(3):
        a(f"""v_add_u32 v32, {64*p}, v0
        v_mul_u32_u24 v33, 171, v32
        v_lshrrev_b32 v33, 11, v33
        v_mul_u32_u24 v34, 12, v33
        v_sub_u32 v32, v32, v34
        v_lshrrev_b32 v34, 2, v33
        v_and_b32 v34, 2, v34
        v_xor_b32 v32, v32, v34
        v_lshl_add_u32 v32, v32, 4, s3
        v_mad_u32_u24 v{vWG+p}, v33, s7, v32""")
        if p < 2: a(f's_sub_u32 s3, s3, 1024')
    a(f"""s_mul_i32 s{sM0W}, s{sW}, 3072
    s_add_u32 s{sM0W}, s{sM0W}, {L_RING}""")
    wt = {}
    def w_issue(a, k, p):
        if k == 8 : a(f'v_subrev_u32 v{vWG+p}, 1376, v{vWG+p}')
        wt[k] = a.dma((f's{sM0W}', (k % NSLOT)*12288), f'buffer_load_dwordx4 v{vWG+p}, {srd(SWIN)}, s{sWO+k%8} offen offset:{1024*p}' + (' nt' if 'w' in NT else '') + ' lds')
    for r, n in ((SWIN,1409024),(SWSP,8388608),(SWOUT,704512),(SWS,0x10000000),(SOUT,2097152),(SDBG,256),(SBSP,4096)):
        a(f's_mov_b32 s{r+2}, {n}\n s_mov_b32 s{r+3}, 0x00020000')
    a(f"""v_and_b32 v27, 15, v0
    v_lshrrev_b32 v32, 4, v0
    v_lshrrev_b32 v33, 1, v32
    v_and_b32 v34, 1, v32
    s_lshl_b32 s3, s{sA}, 11
    s_lshl_b32 s7, s{sB}, 8
    s_add_u32 s7, s7, s3
    v_lshl_add_u32 v35, v27, 4, s7
    v_lshl_add_u32 v35, v33, 10, v35
    v_lshl_add_u32 v{vZS}, v34, 9, v35
    s_lshl_b32 s7, s{sB}, 9
    s_add_u32 s7, s7, s3
    v_lshl_add_u32 v35, v27, 4, s7
    v_lshl_add_u32 v35, v34, 10, v35
    v_lshl_add_u32 v{vHS}, v33, 8, v35
    v_lshlrev_b32 v35, 4, v27
    v_lshl_add_u32 v{vSTA}, v32, 2, v35
    s_lshl_b32 s3, s{sR}, 12
    s_mul_i32 s7, s{sR}, 90112
    s_lshl_b32 s{sT+1}, s{sP0}, 17
    s_add_u32 s{sZST}, s{sT+1}, s3
    s_add_u32 s{sZST+1}, s{sZST}, {1<<17}
    s_add_u32 s{sZST+2}, s{sZST}, {2<<17}
    s_lshl_b32 s{sT+1}, s{sP0}, 12
    s_add_u32 s{sT+1}, s{sT+1}, s7
    s_add_u32 s{sHST}, s{sT+1}, {HH}
    s_add_u32 s{sHST+1}, s{sT+1}, {HH+4096}
    s_add_u32 s{sHST+2}, s{sT+1}, {HH+8192}""")
    a(f"""s_cmp_eq_u32 s{sNP}, 2
    s_cselect_b32 s{sZST+2}, {OOB}, s{sZST+2}
    s_cselect_b32 s{sHST+2}, {OOB}, s{sHST+2}
    s_cselect_b32 s{sVAL+1}, 0, 1.0
    s_lshl_b32 s{sT}, s{sG}, 1
    s_add_u32 s{sT}, s{sT}, s{sB}
    s_cmp_eq_u32 s{sT}, 15
    s_cselect_b32 s{sVAL}, 0, 1.0
    s_lshl_b32 s{sT+1}, s{sT}, 17
    s_add_u32 s{sT+1}, s{sT+1}, s3
    s_lshl_b32 s{sT+2}, s{sA}, 11
    s_add_u32 s{sT+1}, s{sT+1}, s{sT+2}
    s_add_u32 s{sPQST}, s{sT+1}, {PQ}
    s_lshl_b32 s{sT+1}, s{sR}, 1
    s_add_u32 s{sT+1}, s{sT+1}, s{sA}
    s_lshl_b32 s{sT+1}, s{sT+1}, 12
    s_add_u32 s{sSTLD}, s{sT+1}, {ST}
    s_lshl_b32 s{sT+1}, s{sT}, 8
    s_add_u32 s{sSTST}, s{sSTLD}, s{sT+1}""")
    sYST = sT+3
    a(f"""s_lshl_b32 s4, s{sR}, 3
    s_add_u32 s4, s4, s{sG}
    s_lshl_b32 s3, s4, 2
    s_add_u32 s3, s3, s{sW}
    s_lshl_b32 s3, s3, 10
    s_add_u32 s{sYST}, s3, {YY+4096}
    s_cmp_eq_u32 s{sW}, 0
    s_cselect_b32 s4, s4, {OOB}""")
    stamp(a, 'su')
    def clr_ops(M1, names):
        ops = []
        m = V(M1, 4)
        for nm in names:
            if nm == 's': ops.append(f'buffer_store_dword v{M1}, v{vSTA}, {srd(SWS)}, s{sSTST} offen sc1')
            if nm == 'z': ops += [f'buffer_store_dwordx4 {m}, v{vZS}, {srd(SWS)}, s{sZST+j} offen sc1' for j in range(3)]
            if nm == 'h': ops += [f'buffer_store_dwordx4 {m}, v{vHS}, {srd(SWS)}, s{sHST+j} offen sc1' for j in range(3)]
            if nm == 'y': ops.append(f'buffer_store_dwordx4 {m}, v{vL16}, {srd(SWS)}, s{sYST} offen sc1')
        return ops
    a(f"""v_xor_b32 v33, v24, v25
    v_and_b32 v34, 3, v25
    v_lshl_add_u32 v33, v34, 4, v33
    v_lshrrev_b32 v34, 2, v25
    v_lshlrev_b32 v34, 12, v34
    v_lshl_add_u32 v33, v33, 4, v34
    s_and_b32 s3, s{sG}, 1
    s_lshl_b32 s3, s3, 7
    s_lshl_b32 s7, s{sW}, 10
    s_add_u32 s3, s3, s7
    v_add_u32 v{vXW}, s3, v33
    v_xor_b32 v{vXW+1}, 0x80, v{vXW}
    s_add_u32 s{sM0O}, s7, {L_WO}
    s_lshl_b32 s5, s7, 2
    s_add_u32 s{sM0S}, s5, {L_STG}
    v_xor_b32 v33, v27, v32
    v_lshl_add_u32 v33, v32, 4, v33
    s_lshl_b32 s3, s{sA}, 11
    v_lshl_add_u32 v{vXR}, v33, 4, s3
    v_xor_b32 v{vXR+1}, 64, v{vXR}
    v_bfe_u32 v33, v0, 2, 2
    v_lshl_add_u32 v33, v32, 3, v33
    v_mul_u32_u24 v33, 192, v33
    v_and_b32 v34, 1, v32
    v_xor_b32 v34, s{sB}, v34
    v_lshl_add_u32 v33, v34, 5, v33
    v_and_b32 v34, 3, v0
    v_lshl_add_u32 v33, v34, 3, v33
    v_add_u32 v{vWR}, {L_RING}, v33
    v_add_u32 v{vWR+1}, {L_RING+4*12288}, v33
    s_lshl_b32 s3, s{sR}, 18
    s_add_u32 s3, s3, s7
    v_lshrrev_b32 v33, 1, v24
    v_xor_b32 v33, v33, v25
    v_lshl_add_u32 v33, v33, 4, s3
    v_lshl_add_u32 v{vSG}, v26, 12, v33
    v_xor_b32 v33, 64, v{vSG}
    v_add_u32 v{vSG+1}, {16*4096-1024}, v33
    v_add_u32 v{vSG+2}, {4*4096-2048}, v{vSG}
    v_add_u32 v{vSG+3}, {20*4096-3072}, v33
    v_and_b32 v33, 31, v0
    v_bfe_u32 v34, v0, 1, 3
    v_lshrrev_b32 v35, 5, v0
    v_xor_b32 v34, v34, v35
    v_lshlrev_b32 v34, 4, v34
    v_lshl_add_u32 v33, v33, 7, v34
    v_add_u32 v{vSR}, s{sM0S}, v33
    v_xor_b32 v{vSR+1}, 32, v{vSR}
    v_xor_b32 v{vSR+2}, 64, v{vSR}
    v_xor_b32 v{vSR+3}, 0x60, v{vSR}""")
    c0 = -2.0*math.sqrt(2.0/math.pi)*math.log2(math.e)
    a(f"""s_mov_b32 s{sGC}, {H(c0*0.044715)}
    s_mov_b32 s{sGC+1}, {H(c0)}
    s_mov_b32 s{sONE}, 0x3f803f80
    s_mov_b32 s{sLO}, 0x00003f80
    s_mov_b32 s{sHI}, 0x3f800000
    s_mov_b32 s{sCNT}, 0
    s_mov_b32 s{sMA}, 0xaaaaaaaa
    s_mov_b32 s{sMA+1}, 0xaaaaaaaa
    s_mov_b32 s{sMC}, 0xcccccccc
    s_mov_b32 s{sMC+1}, 0xcccccccc""")
    a(f"""s_add_u32 s{sT+1}, s{sP0}, s{sNP}
    s_sub_u32 s{sT+1}, s{sT+1}, 1
    s_lshl_b32 s{sT+1}, s{sT+1}, 17
    s_lshl_b32 s3, s{sW}, 15
    s_add_u32 s{sT+1}, s{sT+1}, s3
    s_lshl_b32 s6, s{sP0}, 17
    s_add_u32 s6, s6, s3
    s_lshl_b32 s{sT+2}, s{sG}, 7""")
    for i in range(8): a(f's_lshl_b32 s{sZO+i}, s{sSP+i}, 5\n s_add_u32 s{sZO+i}, s{sZO+i}, s6')
    M1 = 64
    for i in range(4): a(f'v_mov_b32 v{M1+i}, -1')
    a(f"""s_and_b32 s3, s{sG}, 1
    s_lshl_b32 s3, s3, 5
    s_lshl_b32 s7, s{sW}, 6
    s_add_u32 s3, s3, s7
    v_lshl_add_u32 v30, v24, 2, s3
    v_xor_b32 v26, 32, v30""")
    stamp(a, 'ad')
    for n in range(NX0, 16): x_issue(a, n)
    vR1A, vR1B = vXG, vXG+1
    a(f"""s_lshl_b32 s3, s{sA}, 7
    v_lshl_add_u32 v{vR1A}, v32, 4, s3
    v_lshl_add_u32 v{vR1B}, v27, 2, s3""")
    def W(k): return [(lambda a, p=p: w_issue(a, k, p)) for p in range(3)]
    def bgset(a, ops, gap, delay=0):
        a.bg = [o if isinstance(o, tuple) else (o, gap) for o in ops]; a.bg_i = 0; a.bg_next = a.t + delay; a.bg_on = True
    def bgend(a): a.bg_flush(); a.bg_on = False
    clr = [(lambda a, t=t: a.tok.__setitem__('clr', a.one(t))) for t in clr_ops(M1, cfg.get('ce', 'sz'))]
    ORD = {0: [0,1,8,9,2,4,6,3,5,7,10,12,14,11,13,15], 1: list(range(16)), 2: [0,1,8,9,2,3,10,11,4,5,12,13,6,7,14,15],
           3: [0,8,1,9,2,10,3,11,4,12,5,13,6,14,7,15]}[cfg.get('ord', 0)]
    NPK = cfg.get('npk', 4)
    SPSLOT = [int(c) for c in str(cfg.get('slots', 'x3333012301456230' if NPK == 4 else 'x3301230145623012' if NPK == 2 else 'x0123456012345601'))[1:]]
    AQ = lambda k, q: ((k % 8)*4+q)*8 + (k//8)*4
    def PK_(n):
        k = ORD[n]
        def mk(p):
            def f(a):
                b = a.in_bg; a.in_bg = True
                if k >= 8: a(f's_add_u32 s5, s{sSP+k%8}, 0x20000')
                a.tok['pk', n] = a.one(f'buffer_load_dwordx4 {A(AQ(k,p),4)}, v{vSG+p}, {srd(SWSP)}, s{5 if k >= 8 else sSP+k} offen offset:{1024*p}' + (' nt' if 'p' in NT else ''))
                a.in_bg = b; a.tok['pkn', n] = p
            return f
        return [mk(p) for p in range(4)]
    def XP(n):
        k = ORD[n]
        def mk(h):
            def f(a):
                assert a.tok['pkn', n] == 3 and a.tok.get('b7')
                a.wait(vm=a.tok['pk', n])
                if not a.tok.get('xpa'): a(f'v_add_u32 v{vXW+1}, s{sM0S}, v{vL16}'); a.tok['xpa'] = True
                for q in (2*h, 2*h+1): a(f'ds_write_b128 v{vXW+1}, {A(AQ(k,q),4)} offset:{SPSLOT[n]*16384+1024*q}')
                if h: a.tok['sdn', n] = 3; a.tok['sd', n] = 0
            return (f, 16)
        return [mk(0), mk(1)] + RD(n)
    vSR2 = [vWG, vWG+1, vWG+2, vXW]
    def SP(n):
        k = ORD[n]; prev = [j for j in range(n) if SPSLOT[j] == SPSLOT[n]]
        def mk(p):
            def f(a):
                def pre(a):
                    if p == 0 and prev:
                        assert a.tok['srn', prev[-1]] == 1
                        a.wait(lg=a.tok['sr', prev[-1]])
                    if k >= 8: a(f's_add_u32 s5, s{sSP+k%8}, 0x20000')
                assert a.tok.get('b11' if SPSLOT[n] >= 4 else 'b7')
                a.tok['sd', n] = a.dma((f's{sM0S}', SPSLOT[n]*16384), f'buffer_load_dwordx4 v{vSG+p}, {srd(SWSP)}, s{5 if k >= 8 else sSP+k} offen offset:{1024*p}' + (' nt' if 's' in NT or ('p' in NT and n < cfg.get('nown', 4)) else '') + ' lds', pre)
                a.tok['sdn', n] = p
            return f
        return [mk(p) for p in range(4)]
    def RD(n):
        k = ORD[n]
        def mk(h):
            def f(a):
                assert a.tok['sdn', n] == 3
                if n == 15: assert a.tok.get('r1done')
                a.wait(vm=a.tok['sd', n])
                for q in (2*h, 2*h+1):
                    r = ((k % 8)*4+q)*8 + (k//8)*4; sl = SPSLOT[n]
                    a.tok['sr', n] = a.one(f'ds_read_b128 {A(r,4)}, v{vSR+q if sl < 4 else vSR2[q]} offset:{(sl % 4)*16384}')
                a.tok['srn', n] = h
            return (f, 8)
        return [mk(0), mk(1)]
    assert ORD[15] == 15
    aR1A = (228, 236); aR1B = 244
    vOG = vXR; vPR = vXR+1
    NEARLY = cfg.get('nearly', 8)
    def wo_issue(a, k):
        a.tok['wo', k] = a.dma((f's{sM0O}', ((k+10) % 22)*4096), f'buffer_load_dwordx4 v{vOG}, {srd(SWOUT)}, s5 offen lds',
                               lambda a: a(f's_add_u32 s5, s{sT+2}, {KORD[k]*32768}'))
    WO = lambda k: [lambda a: wo_issue(a, k)]
    SL = WB
    def st_load(j):
        def f(a):
            assert a.tok.get('dbgok')
            a.tok['st'] = a.one(f'buffer_load_dwordx4 {V(SL+4*j,4)}, v{vL16}, {srd(SWS)}, s{sSTLD} offen offset:{1024*j} sc1')
        return f
    def st_loads(a):
        for j in range(4): st_load(j)(a)
    def dbg_load(a):
        a(f'v_lshlrev_b32 v{vXG}, 2, v0')
        a.tok['dbg'] = a.one(f'buffer_load_dword v{vXG+1}, v{vXG}, {srd(SDBG)}, 0 offen sc1')
    def dbg_chk(a):
        a.wait(vm=a.tok['dbg'])
        a.label('L_dbg_chk')
        a(f'v_and_b32 v{vXG+1}, 0x01010101, v{vXG+1}\n v_cmp_ne_u32 vcc, 0x01010101, v{vXG+1}\n s_cbranch_vccnz L_dbg_retry')
        a.label('L_dbg_ok'); a.tok['dbgok'] = True
    clr2 = [(lambda a, t=t: a(t)) for t in clr_ops(24, cfg.get('cl', 'hy'))]
    used = []
    def SCH(key, dflt):
        ops = []
        for t in str(cfg.get(key, dflt)).split('.'):
            if t in ('', '-'): continue
            used.append(t); c = t[0]; n = int(t[1:]) if len(t) > 1 else None
            ops += {'W': lambda: W(n), 'S': lambda: SP(n), 'R': lambda: RD(n), 'O': lambda: WO(n), 'C': lambda: clr2, 'E': lambda: clr if n is None else [clr[n]], 'P': lambda: PK_(n), 'X': lambda: XP(n),
                    'p': lambda: PK_(n//2)[2*(n%2):2*(n%2)+2], 'D': lambda: [dbg_load],
                    'K': lambda: [dbg_chk], 'T': lambda: [(st_load(j), 24) for j in range(4)], 'N': lambda: [lambda a: None]}[c]()
        return ops
    bgset(a, SCH('l', 'W0.W1.W2.W3.W4.W5.W6.W7.P0'), cfg.get('wgap', 56), cfg.get('w0', 20))
    stamp(a, 1)
    def red8(a, r):
        a(f'''v_add_f32_dpp v{r}, v{r}, v{r} quad_perm:[1,0,3,2] row_mask:0xf bank_mask:0xf
        v_add_f32_dpp v{r}, v{r}, v{r} quad_perm:[2,3,0,1] row_mask:0xf bank_mask:0xf
        v_add_f32_dpp v{r}, v{r}, v{r} row_half_mirror row_mask:0xf bank_mask:0xf''')
    for rs in range(2):
        a.cmt(f'LN rowset {rs}')
        X = XRAW + rs*32
        a('v_mov_b32 v35, 0\n v_mov_b32 v36, 0')
        for i in range(8):
            if i % 2 == 0: a.wait(vm=xt[rs, i+1])
            for k in range(4): a(f'v_dot2c_f32_bf16 v35, s{sONE}, v{X+4*i+k}')
        stamp(a, f'x{rs}')
        red8(a, 35)
        a(f'v_mul_f32 v35, {H(-1/512)}, v35')
        for i in range(9):
            if i < 8:
                for k in range(4):
                    t = 40 + (i % 2)*8 + 2*k
                    a(f'v_dot2_f32_bf16 v{t}, v{X+4*i+k}, s{sLO}, v35\n v_dot2_f32_bf16 v{t+1}, v{X+4*i+k}, s{sHI}, v35')
            if i > 0:
                j = i-1
                for k in range(4):
                    t = 40 + (j % 2)*8 + 2*k
                    a(f'v_cvt_pk_bf16_f32 v{X+4*j+k}, v{t}, v{t+1}')
                a(f'ds_write_b128 v{vXW+rs}, {V(X+4*j,4)} offset:{8192*j}')
        def sq_tail(a, k0, k1, rs=rs, X=X):
            for k in range(k0, k1): a(f'v_dot2c_f32_bf16 v36, v{X+k}, v{X+k}')
            if k1 < 32: return
            red8(a, 36)
            a(f"""v_mov_b32 v37, {H(1e-5)}
            v_fmac_f32 v37, {H(1/512)}, v36
            v_rsq_f32 v{28+rs}, v37""")
        SQ = cfg.get('sq', 16)
        sq_tail(a, 0, SQ if rs else 32)
    bgend(a)
    stamp(a, 2)
    def w_reads(k):
        ops = []
        sl = k % NSLOT; ar = vWR + (sl >= 4); base = (sl % 4)*12288
        for sg in range(2):
            if k < 8:
                for mt in range(2):
                    s_ = 2*k+sg
                    ops.append(f'ds_read_b128 {V(XF+(s_*2+mt)*4,4)}, v{vXR+sg} offset:{s_*4096+mt*1024}')
            for j in range(3):
                for u in range(2):
                    ops.append(f'ds_read_b64_tr_b16 {V(WB+(k%2)*24+(sg*3+j)*4+2*u,2)}, v{ar} offset:{base+sg*6144+u*768+j*64}')
        return ops
    SIG1 = cfg.get('sig1', 7)
    BAR = {2: 5, 5: 7, 7: None, 11: 15, 15: None}
    def run(a, f): (f[0] if isinstance(f, tuple) else f)(a)
    def gemm_iter(a, k, late=()):
        a.cmt(f'gemm iter {k}')
        a.wait(vm=max(a.tok['clr'] if k == SIG1 else 0, wt[BAR[k]] if BAR.get(k) is not None else 0), lg=a.tok['wr', k])
        if k in BAR: a('s_barrier'); a.tok[f'b{k}'] = True
        stamp(a, f'g{k}')
        fill = [(lambda a, t=t: a.tok.__setitem__(('wr', k+1), a.one(t))) for t in (w_reads(k+1) if k not in (7, 15) else [])]
        late = list(late)
        for sg in range(2):
            for j in range(3):
                for mt in range(2):
                    x = V(XF+(((2*k+sg) % 16)*2+mt)*4, 4); w = V(WB+(k%2)*24+(sg*3+j)*4, 4)
                    acc = V((ACC2 if k < 8 else ACC1)+(j*2+mt)*4, 4)
                    c = '0' if (k % 8 == 0 and sg == 0) else acc
                    a(f'v_mfma_f32_16x16x32_bf16 {acc}, {x}, {w}, {c}' if k < 8 else f'v_mfma_f32_16x16x32_bf16 {acc}, {w}, {x}, {c}')
                    if fill:
                        for _ in range(2):
                            if fill: fill.pop(0)(a)
                    elif late: run(a, late.pop(0))
        for f in late: run(a, f)
    def T2(text):
        L = [l.strip() for l in text.strip().split('\n')]
        return [(lambda a, t='\n'.join(L[i:i+2]): a(t)) for i in range(0, len(L), 2)]
    a.wait(vm=wt[2], lg=a.lg_n)
    a('s_barrier')
    for t in w_reads(0): a.tok['wr', 0] = a.one(t)
    if SQ < 32: sq_tail(a, SQ, 32)
    def dbg_store(a, val=1, t=24):
        a(f"""v_mov_b32 v{t}, {val}
        v_mov_b32 v{t+1}, 0
        buffer_store_byte v{t}, v{t+1}, {srd(SDBG)}, s4 offen sc1""")
    ZD = {0: 'P1', 1: 'E', 2: 'W8.p4', 3: 'W9.p5', 4: 'W10.p6', 5: 'W11.p7', 6: 'W12', 7: 'W13',
          8: 'R4.S7', 9: '' if 'cp2' in cfg else 'C', 10: 'R5.S8', 11: 'R6.S9', 12: 'S10.R7', 13: 'D.S11.R8', 14: 'S12.R9', 15: 'K.T'}
    misc1 = T2(f"""v_lshrrev_b32 v24, 3, v0
        v_bfe_u32 v25, v0, 4, 1
        s_lshl_b32 s3, s{sB}, 1
        v_add_u32 v25, s3, v25
        v_lshlrev_b32 v25, 1, v25
        v_and_b32 v30, 7, v0
        v_xor_b32 v25, v25, v30
        v_lshlrev_b32 v25, 4, v25
        s_lshl_b32 s3, s{sW}, 13
        v_lshl_add_u32 v25, v24, 10, v25
        v_add_u32 v{vOG}, s3, v25""")
    for k in range(8):
        late = SCH(f'i{k}', ZD[k])
        if k == 2: late = [lambda a: a('ds_write_b32 v30, v28\n ds_write_b32 v26, v29')] + late
        if k == 5:
            def r1r(a):
                for mt in range(2):
                    a(f'''ds_read_b128 {V(ACC1+4*mt,4)}, v{vR1A} offset:{64*mt}
                    ds_read_b128 {A(aR1A[mt],4)}, v{vR1A} offset:{64*mt}
                    ds_read_b32 a{aR1B+mt}, v{vR1B} offset:{64*mt}''')
            late = [r1r] + late
        if k == 7:
            late = [misc1[0], late[0]] + misc1[1:3] + [late[1]] + misc1[3:6] + late[2:]
        if SIG1 == k: late = [lambda a: dbg_store(a, 1, 24 if k < 7 else vXG)] + late
        gemm_iter(a, k, late)
    stamp(a, 3)
    GAP = cfg.get('gap', 56)
    bgset(a, SCH('e', 'W14.X0.W15.X1.S4.X2.S5.X3.S6'), cfg.get('egap', 52))
    def gelu_tile(a, acc, tmp, rop):
        for p in range(4): a(f'v_pk_mul_f32 {V(acc+2*p,2)}, {V(acc+2*p,2)}, {rop(p)}')
        for p in range(4): a(f'v_pk_mul_f32 {V(tmp+2*p,2)}, {V(acc+2*p,2)}, {V(acc+2*p,2)}')
        for p in range(4): a(f'v_pk_fma_f32 {V(tmp+2*p,2)}, {V(tmp+2*p,2)}, {S(sGC,2)}, {S(sGC,2)} op_sel:[0,0,1] op_sel_hi:[1,0,1]')
        for p in range(4): a(f'v_pk_mul_f32 {V(tmp+2*p,2)}, {V(tmp+2*p,2)}, {V(acc+2*p,2)}')
        for p in range(8): a(f'v_exp_f32 v{tmp+p}, v{tmp+p}')
        for p in range(4): a(f'v_pk_add_f32 {V(tmp+2*p,2)}, {V(tmp+2*p,2)}, 1.0 op_sel_hi:[1,0]')
        for p in range(8): a(f'v_rcp_f32 v{tmp+p}, v{tmp+p}')
        for p in range(4): a(f'v_pk_mul_f32 {V(acc+2*p,2)}, {V(acc+2*p,2)}, {V(tmp+2*p,2)}')
    TM = WB+24; SS = ACC1+8; QQ = ACC1+16
    def b8(a):
        on = a.bg_on; a.bg_on = False
        assert a.tok['clr'] <= wt[13]
        a.wait(vm=wt[13]); a('s_barrier')
        if SIG1 == 8: dbg_store(a, 1, vXG)
        for t in w_reads(8): a.tok['wr', 8] = a.one(t)
        a.bg_on = on
    for j in range(3):
        if j:
            for p in range(4): a(f'v_pk_mul_f32 {V(ACC1+2*p,2)}, {V(ACC1+2*p,2)}, {S(sVAL,2)} op_sel:[0,{j-1}] op_sel_hi:[1,{j-1}]')
        y = ACC2+8*j
        gelu_tile(a, y, TM, lambda p: V(ACC1+2*p, 2))
        for p in range(4):
            if j == 0: a(f'v_pk_mul_f32 {V(QQ+2*p,2)}, {V(y+2*p,2)}, {V(y+2*p,2)}')
            else: a(f'v_pk_fma_f32 {V(QQ+2*p,2)}, {V(y+2*p,2)}, {V(y+2*p,2)}, {V(QQ+2*p,2)}')
            if j == 1: a(f'v_pk_add_f32 {V(SS+2*p,2)}, {V(y+2*p,2)}, {V(ACC2+2*p,2)}')
            if j == 2: a(f'v_pk_add_f32 {V(SS+2*p,2)}, {V(y+2*p,2)}, {V(SS+2*p,2)}')
    if cfg.get('b8', 0) == 0: b8(a)
    for i in range(8): a(f'v_add_f32_dpp v{SS+i}, v{SS+i}, v{SS+i} row_ror:8 row_mask:0xf bank_mask:0x3')
    for i in range(8): a(f'v_add_f32_dpp v{SS+i}, v{QQ+i}, v{QQ+i} row_ror:8 row_mask:0xf bank_mask:0xc')
    for i in range(4): a(f'v_add_f32_dpp v{SS+i}, v{SS+i}, v{SS+i} row_half_mirror row_mask:0xf bank_mask:0x5')
    for i in range(4): a(f'v_add_f32_dpp v{SS+i}, v{SS+4+i}, v{SS+4+i} row_half_mirror row_mask:0xf bank_mask:0xa')
    for i in range(4): a(f'v_add_f32_dpp v{SS+i}, v{SS+i}, v{SS+i} quad_perm:[1,0,3,2] row_mask:0xf bank_mask:0xf')
    for i in range(4): a(f'v_add_f32_dpp v{SS+i}, v{SS+i}, v{SS+i} quad_perm:[2,3,0,1] row_mask:0xf bank_mask:0xf')
    a(f"""v_cndmask_b32 v{SS}, v{SS}, v{SS+1}, {S(sMA,2)}
    v_cndmask_b32 v{SS+2}, v{SS+2}, v{SS+3}, {S(sMA,2)}
    v_cndmask_b32 v26, v{SS}, v{SS+2}, {S(sMC,2)}""")
    left = a.bg[a.bg_i:]; a.bg_on = False
    if cfg.get('eflush', 1):
        for f in left: run(a, f)
        left = []
    a(f'buffer_store_dword v26, v{vSTA}, {srd(SWS)}, s{sSTST} offen sc1')
    if cfg.get('b8', 0) == 1: b8(a)
    for i in range(4): a(f'v_mov_b32 v{24+i}, -1')
    stamp(a, 4)
    vBS = 28
    misc2 = T2(f"""v_and_b32 v28, 12, v0
        v_and_b32 v29, 15, v0
        v_add_u32 v28, v28, v29
        v_lshlrev_b32 v30, 1, v28
        s_lshl_b32 s3, s{sR}, 7
        s_lshl_b32 s7, s{sA}, 6
        s_add_u32 s3, s3, s7
        buffer_load_short_d16_hi v{vBS}, v30, {srd(SBSP)}, s3 offen
        buffer_load_short_d16_hi v{vBS+1}, v30, {srd(SBSP)}, s3 offen offset:8""")
    misc3 = T2(f"""v_lshrrev_b32 v24, 2, v0
        v_lshlrev_b32 v24, 11, v24
        v_bfe_u32 v25, v0, 1, 1
        v_lshl_add_u32 v{vPR}, v25, 8, v24""")
    sr2 = T2('\n'.join(f'v_add_u32 v{vSR2[q]}, 0x10000, v{vSR+q}' for q in range(4)))
    r1b = lambda a: a(f'v_accvgpr_read_b32 v26, a{aR1B}\n v_accvgpr_read_b32 v27, a{aR1B+1}')
    ZX = {8: left, 11: [], 12: sr2, 13: misc3, 14: misc2, 15: [r1b]}
    for k in range(8, 16):
        x = ZX.get(k, []); y = SCH(f'i{k}', ZD[k]); late = []
        while x or y:
            if y: late.append(y.pop(0))
            if x: late.append(x.pop(0))
        gemm_iter(a, k, late)
    stamp(a, 5)
    bgset(a, SCH('q', 'S13.S14.R10.S15.R11.R12'), GAP)
    for j in range(3):
        if j: a(f'v_pk_mul_f32 v[26:27], v[26:27], {S(sVAL,2)} op_sel:[0,{j-1}] op_sel_hi:[1,{j-1}]')
        gelu_tile(a, ACC1+8*j, TM, lambda p: f'v[26:27] op_sel:[0,{p//2}] op_sel_hi:[1,{p//2}]')
    stamp(a, 6)
    a.bg_on = False
    a.wait(vm=a.tok['st'])
    a.label('L_st_chk')
    a(f"""v_pk_add_f32 {V(SL,2)}, {V(SL,2)}, {V(SL+4,2)}
    v_pk_add_f32 {V(SL+2,2)}, {V(SL+2,2)}, {V(SL+6,2)}
    v_pk_add_f32 {V(SL+8,2)}, {V(SL+8,2)}, {V(SL+12,2)}
    v_pk_add_f32 {V(SL+10,2)}, {V(SL+10,2)}, {V(SL+14,2)}
    v_pk_add_f32 {V(SL,2)}, {V(SL,2)}, {V(SL+8,2)}
    v_pk_add_f32 {V(SL+2,2)}, {V(SL+2,2)}, {V(SL+10,2)}
    v_permlane32_swap_b32 v{SL}, v{SL+2}
    v_permlane32_swap_b32 v{SL+1}, v{SL+3}
    v_pk_add_f32 {V(SL,2)}, {V(SL,2)}, {V(SL+2,2)}
    v_permlane16_swap_b32 v{SL}, v{SL+1}
    v_add_f32 v{SL}, v{SL}, v{SL+1}
    v_cmp_u_f32 vcc, v{SL}, v{SL}
    s_cbranch_vccnz L_st_retry""")
    a.label('L_st_ok')
    a.bg_on = bool(cfg.get('nbg', 1))
    RS = SL+8; NB = SL+16
    a(f"""v_mul_f32 v{SL}, {H(1/688)}, v{SL}
    v_mul_f32 v{SL+2}, v{SL}, v{SL}
    v_sub_f32_dpp v{SL+1}, v{SL}, v{SL+2} row_ror:8 row_mask:0xf bank_mask:0xf
    v_max_f32 v{SL+1}, 0, v{SL+1}
    v_add_f32 v{SL+1}, {H(1e-5)}, v{SL+1}
    v_rsq_f32 v{SL+1}, v{SL+1}
    v_mul_f32_e64 v{SL+2}, -v{SL}, v{SL+1}""")
    for i in range(8): a(f'v_mov_b32_dpp v{RS+i}, v{SL+1} row_newbcast:{i} row_mask:0xf bank_mask:0xf')
    for i in range(8): a(f'v_mov_b32_dpp v{NB+i}, v{SL+2} row_newbcast:{i} row_mask:0xf bank_mask:0xf')
    a.bg_on = False; left = a.bg[a.bg_i:]
    PK = SL+24
    for j in range(3):
        y = ACC2+8*j
        for p in range(4): a(f'v_pk_fma_f32 {V(y+2*p,2)}, {V(y+2*p,2)}, {V(RS+2*p,2)}, {V(NB+2*p,2)}')
        for p in range(4): a(f'v_cvt_pk_bf16_f32 v{PK+4*j+p}, v{y+2*p}, v{y+2*p+1}')
        a(f'buffer_store_dwordx4 {V(PK+4*j,4)}, v{vZS}, {srd(SWS)}, s{sZST+j} offen sc1')
    stamp(a, 7)
    D = cfg.get('depth', 10); RING = 128
    vZ = (vL16, vXG, vXG+1); zt = {}
    def zload(a, gi, reg):
        r, i = divmod(gi, 32)
        return a.one(f'buffer_load_dwordx4 {V(reg,4)}, v{vZ[r]}, {srd(SWS)}, s{sZO+i//4} offen offset:{(i%4)*1024} sc1')
    RG = lambda gi: RING + (gi % D)*4
    def probe(a): a.tok['pr'] = a.one(f'buffer_load_dword v30, v{vPR}, {srd(SWS)}, s{sT+1} offen sc1')
    bgset(a, left+SCH('d', 'R13.R14')+sum((WO(k) for k in range(NEARLY)), []), cfg.get('dgap', 56))
    DL = lambda pq, mt: ACC2 + (pq*2+mt)*4
    DH = lambda pq, mt: (48 if pq == 0 else 116) + mt*4
    ST_ = lambda sg, pq: 80 + (sg % 2)*16 + pq*8
    TPK = (112, 124)
    a(f"""v_and_b32 v24, 15, v0
    s_lshl_b32 s3, s{sT}, 4
    s_add_u32 s3, s3, 1
    v_add_u32 v24, s3, v24
    v_cvt_f32_u32 v24, v24
    v_mul_f32 v24, {H(1/512)}, v24
    s_lshl_b32 s3, s{sROT}, 6
    v_lshrrev_b32 v25, 4, v0
    v_lshl_add_u32 v25, v25, 3, s3
    v_cvt_f32_u32 v25, v25
    v_mul_f32 v25, v25, v24
    v_fract_f32 v88, v25
    v_mul_f32 v25, {H(32.0)}, v24""")
    for i in range(1, 8): a(f'v_add_f32 v{88+i}, v{87+i}, v24')
    for i in range(8): a(f'v_add_f32 v{104+i}, v{88+i}, v25')
    a('v_cos_f32 v25, v25')
    for i in range(8): a(f'v_cos_f32 v{80+i}, v{88+i}')
    a('v_add_f32 v25, v25, v25')
    cvt = lambda sg, pq: [f'v_cvt_pk_bf16_f32 v{TPK[pq]+i}, v{ST_(sg,pq)+2*i}, v{ST_(sg,pq)+2*i+1}' for i in range(4)]
    upd = lambda sg, pq: [f'v_fma_f32 v{ST_(sg,pq)+i}, v25, v{ST_(sg+1,pq)+i}, -v{ST_(sg,pq)+i}' for i in range(8)]
    for t in cvt(0, 0): a(t)
    PRPOS = cfg.get('prpos', 8)
    pf = [probe] + [(lambda a, gi=gi: zt.__setitem__(gi, zload(a, gi, RG(gi)))) for gi in range(D-1)]
    def start_pf(a):
        bgset(a, pf + a.bg[a.bg_i:], cfg.get('pgap', 40))
    for sg in range(8):
        if sg == PRPOS: start_pf(a)
        for pq in range(2):
            if sg == 0 and pq == 0: fl = [f'v_sin_f32 v{88+i}, v{88+i}' for i in range(8)] + cvt(0, 1)
            elif sg == 0: fl = [f'v_cos_f32 v{96+i}, v{104+i}' for i in range(8)] + cvt(1, 0)
            elif sg == 1 and pq == 0: fl = [f'v_sin_f32 v{104+i}, v{104+i}' for i in range(8)] + cvt(1, 1)
            elif pq == 0: fl = upd(sg, 1) + cvt(sg, 1)
            elif sg < 7: fl = upd(sg+1, 0) + cvt(sg+1, 0)
            else: fl = [f'v_accvgpr_read_b32 v{96+i}, a{aR1A[i//4]+i%4}' for i in range(8)] + [f'v_cndmask_b32 v24, -1.0, 1.0, {S(sMA,2)}']
            for hf in range(2):
                for mt in range(2):
                    acc = V((DH if hf else DL)(pq, mt), 4)
                    a(f'v_mfma_f32_16x16x32_bf16 {acc}, {V(XF+((sg+8*hf)*2+mt)*4,4)}, {V(TPK[pq],4)}, {acc if sg else 0}')
                    for _ in range(4):
                        if fl:
                            t = fl.pop(0); tk = a.one(t)
                            if t.startswith('ds_'): a.tok['r1'] = tk
    a.tok['r1done'] = True
    if PRPOS == 8: start_pf(a)
    for pq in range(2):
        for p in range(4): a(f'v_pk_fma_f32 {V(DL(pq,0)+2*p,2)}, {V(DH(pq,0)+2*p,2)}, v[24:25], {V(DL(pq,0)+2*p,2)} op_sel_hi:[1,0,1]')
        for p in range(4): a(f'v_pk_mul_f32 {V(DL(pq,0)+2*p,2)}, {V(DL(pq,0)+2*p,2)}, {V(96+2*p,2)}')
        for p in range(4): a(f'v_cvt_pk_bf16_f32 v{WB+4*pq+p}, v{DL(pq,0)+2*p}, v{DL(pq,0)+2*p+1}')
    a.bg_flush(len(pf)); a.bg_on = False
    for pq in range(2): a.tok['pqs'] = a.one(f'buffer_store_dwordx4 {V(WB+4*pq,4)}, v{vL16}, {srd(SWS)}, s{sPQST} offen offset:{1024*pq} sc1')
    stamp(a, 8)
    bgend(a)
    for k in range(16):
        if f'R{k}' not in used and f'X{k}' not in used:
            for f in RD(k): run(a, f)
    assert all(a.tok['srn', k] == 1 for k in range(16)) and len([u for u in used if u != 'N']) == len(set(used) - {'N'})
    assert 'E' in used or all(f'E{i}' in used for i in range(len(clr)))
    assert all(t in used for t in ('D', 'K', 'T', 'W14', 'W15')) and (('C' in used) != ('cp2' in cfg))
    stamp(a, 9)
    a.wait(vm=a.tok['pr'])
    a.label('L_pr_chk')
    a('v_cmp_eq_u32 vcc, -1, v30\n s_cbranch_vccnz L_pr_retry')
    a.label('L_pr_ok')
    stamp(a, 10)
    vRW = vXW; vRR = vXW+1
    a(f's_cmp_eq_u32 s{sNP}, 2\n s_cbranch_scc1 L_pathB')
    b = a.fork()
    slow = []
    from gen2 import tail
    env = dict(globals()); env.update(locals())
    tail(a, 3, env)
    b.label('L_pathB')
    tail(b, 2, env)
    r = Asm(); r.out = a.out; r.tok['dbgok'] = True
    r.label('L_dbg_retry')
    r(f'buffer_load_dword v{vXG+1}, v{vXG}, {srd(SDBG)}, 0 offen sc1\n s_waitcnt vmcnt(0)')
    retry(r, 'L_dbg_chk', 'L_dbg_ok')
    r.label('L_st_retry')
    r(f's_cmp_gt_u32 s{sCNT}, {LIMIT}\n s_cbranch_scc1 L_st_ok\n s_add_u32 s{sCNT}, s{sCNT}, 1')
    st_loads(r); r('s_waitcnt vmcnt(0)\n s_branch L_st_chk')
    r.label('L_pr_retry')
    r(f's_cmp_gt_u32 s{sCNT}, {LIMIT}\n s_cbranch_scc1 L_pr_ok\n s_add_u32 s{sCNT}, s{sCNT}, 1')
    probe(r); r('s_waitcnt vmcnt(0)\n v_cmp_eq_u32 vcc, -1, v30\n s_cbranch_vccnz L_pr_retry')
    for gi in range(D-1): zload(r, gi, RG(gi))
    r('s_waitcnt vmcnt(0)\n s_branch L_pr_ok')
    for f in slow: f(r)
    r.label('L_end'); r('s_endpgm')
    r.raw('L_codeend:')
    hdr = open('parallel_sum__spectral_fnet__mixer_gmlp__prompt.s.ref').read().split('; @launch')[0] if cfg.get('hdr', True) else ''
    txt = hdr + f'''; @launch grid=(256,1,1) block=(256,1,1) lds=163840
.amdgcn_target "amdgcn-amd-amdhsa--gfx950"
.text
.globl {KN}
.p2align 8
.type {KN},@function
{KN}:
''' + '\n'.join(a.out) + f'''
.section .rodata,"a"
.p2align 6
.amdhsa_kernel {KN}
  .amdhsa_next_free_vgpr 512
  .amdhsa_next_free_sgpr 102
  .amdhsa_accum_offset 256
  .amdhsa_group_segment_fixed_size 0
  .amdhsa_kernarg_size 104
  .amdhsa_user_sgpr_count 2
  .amdhsa_user_sgpr_kernarg_segment_ptr 1
  .amdhsa_system_sgpr_workgroup_id_x 1
.end_amdhsa_kernel
'''
    return txt
if __name__ == '__main__':
    cfg = {}
    for kv in sys.argv[2:]:
        k, v = kv.split('='); cfg[k] = int(v) if v.lstrip('-').isdigit() else v
    open(sys.argv[1], 'w').write(gen(cfg))
```

```python
import sys, math, struct
from asmlib import *
KN = "parallel_sum__spectral_fnet__mixer_gmlp__prompt_kernel"
def f2u(x): return struct.unpack('<I', struct.pack('<f', x))[0]
def H(x): return hex(f2u(x))
Z2 = 0; HH = 0x2C0000; PQ = 0x580000; YY = 0x780000; ST = 0x881000; STAMP = 0x1000000
OOB = 0x40000000
L_STG = 0; L_WO = 73728; L_RING = 65536; L_MISC = 0; L_RED = 32768
NSLOT = 8
SX, SWIN, SWSP, SWOUT, SWS, SOUT, SDBG, SBSP = 8, 12, 16, 20, 24, 28, 32, 36
sR, sG, sW, sA, sB, sP0, sNP, sROT = 40, 41, 42, 43, 44, 45, 46, 47
sXO = 48; sZO = 48; sWO = 56; sSP = 64
sGC = 72; sONE = 74; sLO = 75; sHI = 76; sZST = 77; sHST = 80; sPQST = 83; sSTST = 84; sSTLD = 85
sVAL = 86; sM0W = 88; sM0S = 89; sM0O = 90; sCNT = 91; sMA = 92; sMC = 94; sT = 96
vL16 = 1; vXG = 2; vXW = 4; vXR = 6; vWG = 8; vWR = 11; vSG = 13; vSR = 17; vZS = 21; vHS = 22; vSTA = 23
vTMP = 24; ACC2 = 32; ACC1 = 56; WB = 80; XF = 128; XRAW = 192
LIMIT = 40000
STAGES = [[0,3,6,9,12,15,18,20],[1,4,7,10,13,16,19,21],[2,5,8,11,14,17]]
KORD = STAGES[0]+STAGES[1]+STAGES[2]
def srd(r): return S(r, 4)

PRE = {'a': dict(npk=0, l='W0.W1.W2.W3.W4.W5.W6.W7', wgap=64, i0='E0.E1', i1='E2.E3', i2='W8', i3='W9', i4='W10', i5='W11', e='W14.W15.S0.S1.S2',
                 i8='S3', i10='', i11='S4', i12='S5.R0', i13='D.S6.R1', i14='R2.S7', i15='R3.K.T', q='S8.R4.S9.R5.S10.R6.S11.R7', d='S12.R8.S13.R9.S14.R10.S15'),
       }
def gen(cfg):
    if 'pre' in cfg: cfg = dict(PRE[cfg['pre']], **cfg)
    a = Asm()
    stamps = cfg.get('stamps', False)
    vST = 31
    class St: n = 0
    SETS = {0: list(range(20)),
            1: [0,'xi','ad',1,'x0','x1',2,'g0','g2','g4','g6',3,4,'g10','g12','g14',5,6,18,19]}
    SET = SETS[cfg.get('set', 0)]
    def stamp(a, k):
        if not stamps or k not in SET: return
        k = SET.index(k)
        b = a.in_bg; a.in_bg = True
        if k > 0:
            if cfg.get('set', 0): a.raw('    s_waitcnt lgkmcnt(0)'); a.lg_done = a.lg_n
            a(f'v_writelane_b32 v{vST}, s100, {k-1}')
        a('s_memtime s[100:101]' if stamps == 2 else 's_memrealtime s[100:101]')
        a.in_bg = b
    def retry(a, back, out):
        a(f's_add_u32 s{sCNT}, s{sCNT}, 1\n s_cmp_gt_u32 s{sCNT}, {LIMIT}\n s_cbranch_scc1 {out}\n s_branch {back}')
    a('s_cmp_ge_u32 s2, 256\n s_cbranch_scc1 L_end')
    for r, off in ((SX,0),(SWIN,48),(SWS,96),(SWSP,56),(SWOUT,72),(SDBG,88),(SBSP,64),(SOUT,80)):
        a(f's_load_dwordx2 {S(r,2)}, s[0:1], {off}')
    stamp(a, 0)
    def code_pf(a):
        a(f"""s_getpc_b64 s[4:5]
        s_lshl_b32 s6, s2, 9
        s_and_b32 s6, s6, 0xf000
        v_lshl_add_u32 v27, v0, 4, s6
        v_min_u32 v27, L_codeend-{KN}-1024, v27
        global_load_dwordx4 v[124:127], v27, s[4:5]""")
    if cfg.get('pf0', 1): code_pf(a)
    a(f"""v_lshrrev_b32 v25, 6, v0
    s_lshr_b32 s3, s2, 3
    v_readfirstlane_b32 s{sW}, v25""")
    if cfg.get('map', '2d') == 'row':
        a(f"""s_and_b32 s{sR}, s2, 7
        s_lshl_b32 s{sR}, s{sR}, 2
        s_and_b32 s6, s3, 3
        s_add_u32 s{sR}, s{sR}, s6
        s_lshr_b32 s{sG}, s2, 5
        s_lshl_b32 s6, s6, 1
        s_add_u32 s{sROT}, s{sG}, s6""")
    else:
        a(f"""s_and_b32 s{sR}, s2, 3
        s_lshl_b32 s{sR}, s{sR}, 3
        s_and_b32 s6, s3, 7
        s_add_u32 s{sR}, s{sR}, s6
        s_lshr_b32 s7, s3, 3
        s_and_b32 s{sG}, s2, 4
        s_add_u32 s{sG}, s{sG}, s7
        s_lshl_b32 s7, s7, 1
        s_add_u32 s{sROT}, s7, s6""")
    a(f"""s_lshr_b32 s{sA}, s{sW}, 1
    s_and_b32 s{sB}, s{sW}, 1
    s_mov_b32 s{SX+2}, 2097152
    s_mov_b32 s{SX+3}, 0x00020000
    v_bfe_u32 v24, v0, 3, 3
    v_and_b32 v25, 7, v0
    s_lshl_b32 s5, s{sR}, 1
    s_add_u32 s5, s5, s{sA}
    s_lshl_b32 s5, s5, 1
    s_and_b32 s6, s{sG}, 1
    s_add_u32 s5, s5, s6
    s_lshl_b32 s5, s5, 2
    s_add_u32 s5, s5, s{sB}
    s_lshl_b32 s5, s5, 12
    v_and_b32 v26, 4, v24
    v_add_u32 v26, v26, v24
    v_lshl_add_u32 v27, v26, 10, s5
    v_lshl_add_u32 v{vXG}, v25, 4, v27
    v_xor_b32 v{vXG+1}, 0x4000, v{vXG}
    s_lshl_b32 s7, s{sROT}, 7
    s_movk_i32 s6, 0x380""")
    for i in range(8):
        a(f's_and_b32 s{sSP+i}, s7, s6')
        if i < 7: a(f's_addk_i32 s7, 128')
    a('s_waitcnt lgkmcnt(0)')
    stamp(a, 'ka')
    if 'probe' in cfg:
        pb = cfg['probe']; rr = SWS if pb[0] in 'ws' else SWSP
        a(f's_mov_b32 s{rr+2}, {0x10000000 if rr == SWS else 8388608}\n s_mov_b32 s{rr+3}, 0x00020000\n s_lshl_b32 s5, s2, 15\n v_lshlrev_b32 v28, 4, v0')
        if rr == SWS: a(f's_add_u32 s5, s5, {cfg.get("po", 32) << 20}')
        for i in range(8):
            a(f'buffer_{"store" if pb[0] == "s" else "load"}_dwordx4 {V(64+4*i,4)}, v28, {srd(rr)}, s5 offen' + (' sc1' if pb[0] == 's' else '') + (' nt' if 'n' in pb else '') + '\n s_add_u32 s5, s5, 4096')
        a.waitall(); stamp(a, 'xi')
    xt = {}; NT = str(cfg.get('nt', ''))
    def x_issue(a, n):
        rs, i = divmod(n, 8)
        xt[rs, i] = a.one(f'buffer_load_dwordx4 {V(XRAW+rs*32+i*4,4)}, v{vXG+rs}, {srd(SX)}, s{sSP+i} offen' + (' nt' if 'x' in NT else ''))
    NX0 = cfg.get('nx0', 10)
    for n in range(NX0): x_issue(a, n)
    if not cfg.get('pf0', 1): code_pf(a)
    a(f"""v_and_b32 v0, 63, v0
    v_lshlrev_b32 v{vL16}, 4, v0""")
    if cfg.get('xw'): a.wait(vm=xt[0, cfg['xw']-1])
    if 'probe' not in cfg: stamp(a, 'xi')
    a(f"""s_mul_i32 s{sP0}, s{sG}, 3
    s_min_u32 s{sP0}, s{sP0}, 20
    s_cmp_ge_u32 s{sG}, 6
    s_cselect_b32 s{sNP}, 2, 3""")
    for i in range(8): a(f's_mul_i32 s{sWO+i}, s{sSP+i}, 1376')
    a(f"""s_mul_i32 s3, s{sW}, {16*2752}
    s_lshl_b32 s7, s{sP0}, 6
    s_add_u32 s3, s3, s7
    s_add_u32 s3, s3, 1376
    s_movk_i32 s7, 2752""")
    for p in range(3):
        a(f"""v_add_u32 v32, {64*p}, v0
        v_mul_u32_u24 v33, 171, v32
        v_lshrrev_b32 v33, 11, v33
        v_mul_u32_u24 v34, 12, v33
        v_sub_u32 v32, v32, v34
        v_lshrrev_b32 v34, 2, v33
        v_and_b32 v34, 2, v34
        v_xor_b32 v32, v32, v34
        v_lshl_add_u32 v32, v32, 4, s3
        v_mad_u32_u24 v{vWG+p}, v33, s7, v32""")
        if p < 2: a(f's_sub_u32 s3, s3, 1024')
    a(f"""s_mul_i32 s{sM0W}, s{sW}, 3072
    s_add_u32 s{sM0W}, s{sM0W}, {L_RING}""")
    wt = {}
    def w_issue(a, k, p):
        if k == 8 : a(f'v_subrev_u32 v{vWG+p}, 1376, v{vWG+p}')
        wt[k] = a.dma((f's{sM0W}', (k % NSLOT)*12288), f'buffer_load_dwordx4 v{vWG+p}, {srd(SWIN)}, s{sWO+k%8} offen offset:{1024*p}' + (' nt' if 'w' in NT else '') + ' lds')
    for r, n in ((SWIN,1409024),(SWSP,8388608),(SWOUT,704512),(SWS,0x10000000),(SOUT,2097152),(SDBG,256),(SBSP,4096)):
        a(f's_mov_b32 s{r+2}, {n}\n s_mov_b32 s{r+3}, 0x00020000')
    a(f"""v_and_b32 v27, 15, v0
    v_lshrrev_b32 v32, 4, v0
    v_lshrrev_b32 v33, 1, v32
    v_and_b32 v34, 1, v32
    s_lshl_b32 s3, s{sA}, 11
    s_lshl_b32 s7, s{sB}, 8
    s_add_u32 s7, s7, s3
    v_lshl_add_u32 v35, v27, 4, s7
    v_lshl_add_u32 v35, v33, 10, v35
    v_lshl_add_u32 v{vZS}, v34, 9, v35
    s_lshl_b32 s7, s{sB}, 9
    s_add_u32 s7, s7, s3
    v_lshl_add_u32 v35, v27, 4, s7
    v_lshl_add_u32 v35, v34, 10, v35
    v_lshl_add_u32 v{vHS}, v33, 8, v35
    v_lshlrev_b32 v35, 4, v27
    v_lshl_add_u32 v{vSTA}, v32, 2, v35
    s_lshl_b32 s3, s{sR}, 12
    s_mul_i32 s7, s{sR}, 90112
    s_lshl_b32 s{sT+1}, s{sP0}, 17
    s_add_u32 s{sZST}, s{sT+1}, s3
    s_add_u32 s{sZST+1}, s{sZST}, {1<<17}
    s_add_u32 s{sZST+2}, s{sZST}, {2<<17}
    s_lshl_b32 s{sT+1}, s{sP0}, 12
    s_add_u32 s{sT+1}, s{sT+1}, s7
    s_add_u32 s{sHST}, s{sT+1}, {HH}
    s_add_u32 s{sHST+1}, s{sT+1}, {HH+4096}
    s_add_u32 s{sHST+2}, s{sT+1}, {HH+8192}""")
    a(f"""s_cmp_eq_u32 s{sNP}, 2
    s_cselect_b32 s{sZST+2}, {OOB}, s{sZST+2}
    s_cselect_b32 s{sHST+2}, {OOB}, s{sHST+2}
    s_cselect_b32 s{sVAL+1}, 0, 1.0
    s_lshl_b32 s{sT}, s{sG}, 1
    s_add_u32 s{sT}, s{sT}, s{sB}
    s_cmp_eq_u32 s{sT}, 15
    s_cselect_b32 s{sVAL}, 0, 1.0
    s_lshl_b32 s{sT+1}, s{sT}, 17
    s_add_u32 s{sT+1}, s{sT+1}, s3
    s_lshl_b32 s{sT+2}, s{sA}, 11
    s_add_u32 s{sT+1}, s{sT+1}, s{sT+2}
    s_add_u32 s{sPQST}, s{sT+1}, {PQ}
    s_lshl_b32 s{sT+1}, s{sR}, 1
    s_add_u32 s{sT+1}, s{sT+1}, s{sA}
    s_lshl_b32 s{sT+1}, s{sT+1}, 12
    s_add_u32 s{sSTLD}, s{sT+1}, {ST}
    s_lshl_b32 s{sT+1}, s{sT}, 8
    s_add_u32 s{sSTST}, s{sSTLD}, s{sT+1}""")
    sYST = sT+3
    a(f"""s_lshl_b32 s4, s{sR}, 3
    s_add_u32 s4, s4, s{sG}
    s_lshl_b32 s3, s4, 2
    s_add_u32 s3, s3, s{sW}
    s_lshl_b32 s3, s3, 10
    s_add_u32 s{sYST}, s3, {YY+4096}
    s_cmp_eq_u32 s{sW}, 0
    s_cselect_b32 s4, s4, {OOB}""")
    stamp(a, 'su')
    def clr_ops(M1, names):
        ops = []
        m = V(M1, 4)
        for nm in names:
            if nm == 's': ops.append(f'buffer_store_dword v{M1}, v{vSTA}, {srd(SWS)}, s{sSTST} offen sc1')
            if nm == 'z': ops += [f'buffer_store_dwordx4 {m}, v{vZS}, {srd(SWS)}, s{sZST+j} offen sc1' for j in range(3)]
            if nm == 'h': ops += [f'buffer_store_dwordx4 {m}, v{vHS}, {srd(SWS)}, s{sHST+j} offen sc1' for j in range(3)]
            if nm == 'y': ops.append(f'buffer_store_dwordx4 {m}, v{vL16}, {srd(SWS)}, s{sYST} offen sc1')
        return ops
    a(f"""v_xor_b32 v33, v24, v25
    v_and_b32 v34, 3, v25
    v_lshl_add_u32 v33, v34, 4, v33
    v_lshrrev_b32 v34, 2, v25
    v_lshlrev_b32 v34, 12, v34
    v_lshl_add_u32 v33, v33, 4, v34
    s_and_b32 s3, s{sG}, 1
    s_lshl_b32 s3, s3, 7
    s_lshl_b32 s7, s{sW}, 10
    s_add_u32 s3, s3, s7
    v_add_u32 v{vXW}, s3, v33
    v_xor_b32 v{vXW+1}, 0x80, v{vXW}
    s_add_u32 s{sM0O}, s7, {L_WO}
    s_lshl_b32 s5, s7, 2
    s_add_u32 s{sM0S}, s5, {L_STG}
    v_xor_b32 v33, v27, v32
    v_lshl_add_u32 v33, v32, 4, v33
    s_lshl_b32 s3, s{sA}, 11
    v_lshl_add_u32 v{vXR}, v33, 4, s3
    v_xor_b32 v{vXR+1}, 64, v{vXR}
    v_bfe_u32 v33, v0, 2, 2
    v_lshl_add_u32 v33, v32, 3, v33
    v_mul_u32_u24 v33, 192, v33
    v_and_b32 v34, 1, v32
    v_xor_b32 v34, s{sB}, v34
    v_lshl_add_u32 v33, v34, 5, v33
    v_and_b32 v34, 3, v0
    v_lshl_add_u32 v33, v34, 3, v33
    v_add_u32 v{vWR}, {L_RING}, v33
    v_add_u32 v{vWR+1}, {L_RING+4*12288}, v33
    s_lshl_b32 s3, s{sR}, 18
    s_add_u32 s3, s3, s7
    v_lshrrev_b32 v33, 1, v24
    v_xor_b32 v33, v33, v25
    v_lshl_add_u32 v33, v33, 4, s3
    v_lshl_add_u32 v{vSG}, v26, 12, v33
    v_xor_b32 v33, 64, v{vSG}
    v_add_u32 v{vSG+1}, {16*4096-1024}, v33
    v_add_u32 v{vSG+2}, {4*4096-2048}, v{vSG}
    v_add_u32 v{vSG+3}, {20*4096-3072}, v33
    v_and_b32 v33, 31, v0
    v_bfe_u32 v34, v0, 1, 3
    v_lshrrev_b32 v35, 5, v0
    v_xor_b32 v34, v34, v35
    v_lshlrev_b32 v34, 4, v34
    v_lshl_add_u32 v33, v33, 7, v34
    v_add_u32 v{vSR}, s{sM0S}, v33
    v_xor_b32 v{vSR+1}, 32, v{vSR}
    v_xor_b32 v{vSR+2}, 64, v{vSR}
    v_xor_b32 v{vSR+3}, 0x60, v{vSR}""")
    c0 = -2.0*math.sqrt(2.0/math.pi)*math.log2(math.e)
    a(f"""s_mov_b32 s{sGC}, {H(c0*0.044715)}
    s_mov_b32 s{sGC+1}, {H(c0)}
    s_mov_b32 s{sONE}, 0x3f803f80
    s_mov_b32 s{sLO}, 0x00003f80
    s_mov_b32 s{sHI}, 0x3f800000
    s_mov_b32 s{sCNT}, 0
    s_mov_b32 s{sMA}, 0xaaaaaaaa
    s_mov_b32 s{sMA+1}, 0xaaaaaaaa
    s_mov_b32 s{sMC}, 0xcccccccc
    s_mov_b32 s{sMC+1}, 0xcccccccc""")
    a(f"""s_add_u32 s{sT+1}, s{sP0}, s{sNP}
    s_sub_u32 s{sT+1}, s{sT+1}, 1
    s_lshl_b32 s{sT+1}, s{sT+1}, 17
    s_lshl_b32 s3, s{sW}, 15
    s_add_u32 s{sT+1}, s{sT+1}, s3
    s_lshl_b32 s6, s{sP0}, 17
    s_add_u32 s6, s6, s3
    s_lshl_b32 s{sT+2}, s{sG}, 7""")
    for i in range(8): a(f's_lshl_b32 s{sZO+i}, s{sSP+i}, 5\n s_add_u32 s{sZO+i}, s{sZO+i}, s6')
    M1 = 64
    for i in range(4): a(f'v_mov_b32 v{M1+i}, -1')
    a(f"""s_and_b32 s3, s{sG}, 1
    s_lshl_b32 s3, s3, 5
    s_lshl_b32 s7, s{sW}, 6
    s_add_u32 s3, s3, s7
    v_lshl_add_u32 v30, v24, 2, s3
    v_xor_b32 v26, 32, v30""")
    stamp(a, 'ad')
    for n in range(NX0, 16): x_issue(a, n)
    vR1A, vR1B = vXG, vXG+1
    a(f"""s_lshl_b32 s3, s{sA}, 7
    v_lshl_add_u32 v{vR1A}, v32, 4, s3
    v_lshl_add_u32 v{vR1B}, v27, 2, s3""")
    def W(k): return [(lambda a, p=p: w_issue(a, k, p)) for p in range(3)]
    def bgset(a, ops, gap, delay=0):
        a.bg = [o if isinstance(o, tuple) else (o, gap) for o in ops]; a.bg_i = 0; a.bg_next = a.t + delay; a.bg_on = True
    def bgend(a): a.bg_flush(); a.bg_on = False
    clr = [(lambda a, t=t: a.tok.__setitem__('clr', a.one(t))) for t in clr_ops(M1, cfg.get('ce', 'sz'))]
    ORD = {0: [0,1,8,9,2,4,6,3,5,7,10,12,14,11,13,15], 1: list(range(16)), 2: [0,1,8,9,2,3,10,11,4,5,12,13,6,7,14,15],
           3: [0,8,1,9,2,10,3,11,4,12,5,13,6,14,7,15]}[cfg.get('ord', 0)]
    NPK = cfg.get('npk', 4)
    SPSLOT = [int(c) for c in str(cfg.get('slots', 'x3333012301456230' if NPK == 4 else 'x3301230145623012' if NPK == 2 else 'x0123456012345601'))[1:]]
    AQ = lambda k, q: ((k % 8)*4+q)*8 + (k//8)*4
    def PK_(n):
        k = ORD[n]
        def mk(p):
            def f(a):
                b = a.in_bg; a.in_bg = True
                if k >= 8: a(f's_add_u32 s5, s{sSP+k%8}, 0x20000')
                a.tok['pk', n] = a.one(f'buffer_load_dwordx4 {A(AQ(k,p),4)}, v{vSG+p}, {srd(SWSP)}, s{5 if k >= 8 else sSP+k} offen offset:{1024*p}' + (' nt' if 'p' in NT else ''))
                a.in_bg = b; a.tok['pkn', n] = p
            return f
        return [mk(p) for p in range(4)]
    def XP(n):
        k = ORD[n]
        def mk(h):
            def f(a):
                assert a.tok['pkn', n] == 3 and a.tok.get('b7')
                a.wait(vm=a.tok['pk', n])
                if not a.tok.get('xpa'): a(f'v_add_u32 v{vXW+1}, s{sM0S}, v{vL16}'); a.tok['xpa'] = True
                for q in (2*h, 2*h+1): a(f'ds_write_b128 v{vXW+1}, {A(AQ(k,q),4)} offset:{SPSLOT[n]*16384+1024*q}')
                if h: a.tok['sdn', n] = 3; a.tok['sd', n] = 0
            return (f, 16)
        return [mk(0), mk(1)] + RD(n)
    vSR2 = [vWG, vWG+1, vWG+2, vXW]
    def SP(n):
        k = ORD[n]; prev = [j for j in range(n) if SPSLOT[j] == SPSLOT[n]]
        def mk(p):
            def f(a):
                def pre(a):
                    if p == 0 and prev:
                        assert a.tok['srn', prev[-1]] == 1
                        a.wait(lg=a.tok['sr', prev[-1]])
                    if k >= 8: a(f's_add_u32 s5, s{sSP+k%8}, 0x20000')
                assert a.tok.get('b11' if SPSLOT[n] >= 4 else 'b7')
                a.tok['sd', n] = a.dma((f's{sM0S}', SPSLOT[n]*16384), f'buffer_load_dwordx4 v{vSG+p}, {srd(SWSP)}, s{5 if k >= 8 else sSP+k} offen offset:{1024*p}' + (' nt' if 's' in NT or ('p' in NT and n < cfg.get('nown', 4)) else '') + ' lds', pre)
                a.tok['sdn', n] = p
            return f
        return [mk(p) for p in range(4)]
    def RD(n):
        k = ORD[n]
        def mk(h):
            def f(a):
                assert a.tok['sdn', n] == 3
                if n == 15: assert a.tok.get('r1done')
                a.wait(vm=a.tok['sd', n])
                for q in (2*h, 2*h+1):
                    r = ((k % 8)*4+q)*8 + (k//8)*4; sl = SPSLOT[n]
                    a.tok['sr', n] = a.one(f'ds_read_b128 {A(r,4)}, v{vSR+q if sl < 4 else vSR2[q]} offset:{(sl % 4)*16384}')
                a.tok['srn', n] = h
            return (f, 8)
        return [mk(0), mk(1)]
    assert ORD[15] == 15
    aR1A = (228, 236); aR1B = 244
    vOG = vXR; vPR = vXR+1
    NEARLY = cfg.get('nearly', 8)
    def wo_issue(a, k):
        a.tok['wo', k] = a.dma((f's{sM0O}', ((k+10) % 22)*4096), f'buffer_load_dwordx4 v{vOG}, {srd(SWOUT)}, s5 offen lds',
                               lambda a: a(f's_add_u32 s5, s{sT+2}, {KORD[k]*32768}'))
    WO = lambda k: [lambda a: wo_issue(a, k)]
    SL = WB
    def st_load(j):
        def f(a):
            assert a.tok.get('dbgok')
            a.tok['st'] = a.one(f'buffer_load_dwordx4 {V(SL+4*j,4)}, v{vL16}, {srd(SWS)}, s{sSTLD} offen offset:{1024*j} sc1')
        return f
    def st_loads(a):
        for j in range(4): st_load(j)(a)
    def dbg_load(a):
        a(f'v_lshlrev_b32 v{vXG}, 2, v0')
        a.tok['dbg'] = a.one(f'buffer_load_dword v{vXG+1}, v{vXG}, {srd(SDBG)}, 0 offen sc1')
    def dbg_chk(a):
        a.wait(vm=a.tok['dbg'])
        a.label('L_dbg_chk')
        a(f'v_and_b32 v{vXG+1}, 0x01010101, v{vXG+1}\n v_cmp_ne_u32 vcc, 0x01010101, v{vXG+1}\n s_cbranch_vccnz L_dbg_retry')
        a.label('L_dbg_ok'); a.tok['dbgok'] = True
    clr2 = [(lambda a, t=t: a(t)) for t in clr_ops(24, cfg.get('cl', 'hy'))]
    used = []
    def SCH(key, dflt):
        ops = []
        for t in str(cfg.get(key, dflt)).split('.'):
            if t in ('', '-'): continue
            used.append(t); c = t[0]; n = int(t[1:]) if len(t) > 1 else None
            ops += {'W': lambda: W(n), 'S': lambda: SP(n), 'R': lambda: RD(n), 'O': lambda: WO(n), 'C': lambda: clr2, 'E': lambda: clr if n is None else [clr[n]], 'P': lambda: PK_(n), 'X': lambda: XP(n),
                    'p': lambda: PK_(n//2)[2*(n%2):2*(n%2)+2], 'D': lambda: [dbg_load],
                    'K': lambda: [dbg_chk], 'T': lambda: [(st_load(j), 24) for j in range(4)], 'N': lambda: [lambda a: None]}[c]()
        return ops
    bgset(a, SCH('l', 'W0.W1.W2.W3.W4.W5.W6.W7.P0'), cfg.get('wgap', 56), cfg.get('w0', 20))
    stamp(a, 1)
    def red8(a, r):
        a(f'''v_add_f32_dpp v{r}, v{r}, v{r} quad_perm:[1,0,3,2] row_mask:0xf bank_mask:0xf
        v_add_f32_dpp v{r}, v{r}, v{r} quad_perm:[2,3,0,1] row_mask:0xf bank_mask:0xf
        v_add_f32_dpp v{r}, v{r}, v{r} row_half_mirror row_mask:0xf bank_mask:0xf''')
    for rs in range(2):
        a.cmt(f'LN rowset {rs}')
        X = XRAW + rs*32
        a('v_mov_b32 v35, 0\n v_mov_b32 v36, 0')
        for i in range(8):
            if i % 2 == 0: a.wait(vm=xt[rs, i+1])
            for k in range(4): a(f'v_dot2c_f32_bf16 v35, s{sONE}, v{X+4*i+k}')
        stamp(a, f'x{rs}')
        red8(a, 35)
        a(f'v_mul_f32 v35, {H(-1/512)}, v35')
        for i in range(9):
            if i < 8:
                for k in range(4):
                    t = 40 + (i % 2)*8 + 2*k
                    a(f'v_dot2_f32_bf16 v{t}, v{X+4*i+k}, s{sLO}, v35\n v_dot2_f32_bf16 v{t+1}, v{X+4*i+k}, s{sHI}, v35')
            if i > 0:
                j = i-1
                for k in range(4):
                    t = 40 + (j % 2)*8 + 2*k
                    a(f'v_cvt_pk_bf16_f32 v{X+4*j+k}, v{t}, v{t+1}')
                a(f'ds_write_b128 v{vXW+rs}, {V(X+4*j,4)} offset:{8192*j}')
        def sq_tail(a, k0, k1, rs=rs, X=X):
            for k in range(k0, k1): a(f'v_dot2c_f32_bf16 v36, v{X+k}, v{X+k}')
            if k1 < 32: return
            red8(a, 36)
            a(f"""v_mov_b32 v37, {H(1e-5)}
            v_fmac_f32 v37, {H(1/512)}, v36
            v_rsq_f32 v{28+rs}, v37""")
        SQ = cfg.get('sq', 16)
        sq_tail(a, 0, SQ if rs else 32)
    bgend(a)
    stamp(a, 2)
    def w_reads(k):
        ops = []
        sl = k % NSLOT; ar = vWR + (sl >= 4); base = (sl % 4)*12288
        for sg in range(2):
            if k < 8:
                for mt in range(2):
                    s_ = 2*k+sg
                    ops.append(f'ds_read_b128 {V(XF+(s_*2+mt)*4,4)}, v{vXR+sg} offset:{s_*4096+mt*1024}')
            for j in range(3):
                for u in range(2):
                    ops.append(f'ds_read_b64_tr_b16 {V(WB+(k%2)*24+(sg*3+j)*4+2*u,2)}, v{ar} offset:{base+sg*6144+u*768+j*64}')
        return ops
    SIG1 = cfg.get('sig1', 7)
    BAR = {2: 5, 5: 7, 7: None, 11: 15, 15: None}
    def run(a, f): (f[0] if isinstance(f, tuple) else f)(a)
    def gemm_iter(a, k, late=()):
        a.cmt(f'gemm iter {k}')
        a.wait(vm=max(a.tok['clr'] if k == SIG1 else 0, wt[BAR[k]] if BAR.get(k) is not None else 0), lg=a.tok['wr', k])
        if k in BAR: a('s_barrier'); a.tok[f'b{k}'] = True
        stamp(a, f'g{k}')
        fill = [(lambda a, t=t: a.tok.__setitem__(('wr', k+1), a.one(t))) for t in (w_reads(k+1) if k not in (7, 15) else [])]
        late = list(late)
        for sg in range(2):
            for j in range(3):
                for mt in range(2):
                    x = V(XF+(((2*k+sg) % 16)*2+mt)*4, 4); w = V(WB+(k%2)*24+(sg*3+j)*4, 4)
                    acc = V((ACC2 if k < 8 else ACC1)+(j*2+mt)*4, 4)
                    c = '0' if (k % 8 == 0 and sg == 0) else acc
                    a(f'v_mfma_f32_16x16x32_bf16 {acc}, {x}, {w}, {c}' if k < 8 else f'v_mfma_f32_16x16x32_bf16 {acc}, {w}, {x}, {c}')
                    if fill:
                        for _ in range(2):
                            if fill: fill.pop(0)(a)
                    elif late: run(a, late.pop(0))
        for f in late: run(a, f)
    def T2(text):
        L = [l.strip() for l in text.strip().split('\n')]
        return [(lambda a, t='\n'.join(L[i:i+2]): a(t)) for i in range(0, len(L), 2)]
    a.wait(vm=wt[2], lg=a.lg_n)
    a('s_barrier')
    for t in w_reads(0): a.tok['wr', 0] = a.one(t)
    if SQ < 32: sq_tail(a, SQ, 32)
    def dbg_store(a, val=1, t=24):
        a(f"""v_mov_b32 v{t}, {val}
        v_mov_b32 v{t+1}, 0
        buffer_store_byte v{t}, v{t+1}, {srd(SDBG)}, s4 offen sc1""")
    ZD = {0: 'P1', 1: 'E', 2: 'W8.p4', 3: 'W9.p5', 4: 'W10.p6', 5: 'W11.p7', 6: 'W12', 7: 'W13',
          8: 'R4.S7', 9: '' if 'cp2' in cfg else 'C', 10: 'R5.S8', 11: 'R6.S9', 12: 'S10.R7', 13: 'D.S11.R8', 14: 'S12.R9', 15: 'K.T'}
    misc1 = T2(f"""v_lshrrev_b32 v24, 3, v0
        v_bfe_u32 v25, v0, 4, 1
        s_lshl_b32 s3, s{sB}, 1
        v_add_u32 v25, s3, v25
        v_lshlrev_b32 v25, 1, v25
        v_and_b32 v30, 7, v0
        v_xor_b32 v25, v25, v30
        v_lshlrev_b32 v25, 4, v25
        s_lshl_b32 s3, s{sW}, 13
        v_lshl_add_u32 v25, v24, 10, v25
        v_add_u32 v{vOG}, s3, v25""")
    for k in range(8):
        late = SCH(f'i{k}', ZD[k])
        if k == 2: late = [lambda a: a('ds_write_b32 v30, v28\n ds_write_b32 v26, v29')] + late
        if k == 5:
            def r1r(a):
                for mt in range(2):
                    a(f'''ds_read_b128 {V(ACC1+4*mt,4)}, v{vR1A} offset:{64*mt}
                    ds_read_b128 {A(aR1A[mt],4)}, v{vR1A} offset:{64*mt}
                    ds_read_b32 a{aR1B+mt}, v{vR1B} offset:{64*mt}''')
            late = [r1r] + late
        if k == 7:
            late = [misc1[0], late[0]] + misc1[1:3] + [late[1]] + misc1[3:6] + late[2:]
        if SIG1 == k: late = [lambda a: dbg_store(a, 1, 24 if k < 7 else vXG)] + late
        gemm_iter(a, k, late)
    stamp(a, 3)
    GAP = cfg.get('gap', 56)
    bgset(a, SCH('e', 'W14.X0.W15.X1.S4.X2.S5.X3.S6'), cfg.get('egap', 52))
    def gelu_tile(a, acc, tmp, rop):
        for p in range(4): a(f'v_pk_mul_f32 {V(acc+2*p,2)}, {V(acc+2*p,2)}, {rop(p)}')
        for p in range(4): a(f'v_pk_mul_f32 {V(tmp+2*p,2)}, {V(acc+2*p,2)}, {V(acc+2*p,2)}')
        for p in range(4): a(f'v_pk_fma_f32 {V(tmp+2*p,2)}, {V(tmp+2*p,2)}, {S(sGC,2)}, {S(sGC,2)} op_sel:[0,0,1] op_sel_hi:[1,0,1]')
        for p in range(4): a(f'v_pk_mul_f32 {V(tmp+2*p,2)}, {V(tmp+2*p,2)}, {V(acc+2*p,2)}')
        for p in range(8): a(f'v_exp_f32 v{tmp+p}, v{tmp+p}')
        for p in range(4): a(f'v_pk_add_f32 {V(tmp+2*p,2)}, {V(tmp+2*p,2)}, 1.0 op_sel_hi:[1,0]')
        for p in range(8): a(f'v_rcp_f32 v{tmp+p}, v{tmp+p}')
        for p in range(4): a(f'v_pk_mul_f32 {V(acc+2*p,2)}, {V(acc+2*p,2)}, {V(tmp+2*p,2)}')
    TM = WB+24; SS = ACC1+8; QQ = ACC1+16
    def b8(a):
        on = a.bg_on; a.bg_on = False
        assert a.tok['clr'] <= wt[13]
        a.wait(vm=wt[13]); a('s_barrier')
        if SIG1 == 8: dbg_store(a, 1, vXG)
        for t in w_reads(8): a.tok['wr', 8] = a.one(t)
        a.bg_on = on
    for j in range(3):
        if j:
            for p in range(4): a(f'v_pk_mul_f32 {V(ACC1+2*p,2)}, {V(ACC1+2*p,2)}, {S(sVAL,2)} op_sel:[0,{j-1}] op_sel_hi:[1,{j-1}]')
        y = ACC2+8*j
        gelu_tile(a, y, TM, lambda p: V(ACC1+2*p, 2))
        for p in range(4):
            if j == 0: a(f'v_pk_mul_f32 {V(QQ+2*p,2)}, {V(y+2*p,2)}, {V(y+2*p,2)}')
            else: a(f'v_pk_fma_f32 {V(QQ+2*p,2)}, {V(y+2*p,2)}, {V(y+2*p,2)}, {V(QQ+2*p,2)}')
            if j == 1: a(f'v_pk_add_f32 {V(SS+2*p,2)}, {V(y+2*p,2)}, {V(ACC2+2*p,2)}')
            if j == 2: a(f'v_pk_add_f32 {V(SS+2*p,2)}, {V(y+2*p,2)}, {V(SS+2*p,2)}')
    if cfg.get('b8', 0) == 0: b8(a)
    for i in range(8): a(f'v_add_f32_dpp v{SS+i}, v{SS+i}, v{SS+i} row_ror:8 row_mask:0xf bank_mask:0x3')
    for i in range(8): a(f'v_add_f32_dpp v{SS+i}, v{QQ+i}, v{QQ+i} row_ror:8 row_mask:0xf bank_mask:0xc')
    for i in range(4): a(f'v_add_f32_dpp v{SS+i}, v{SS+i}, v{SS+i} row_half_mirror row_mask:0xf bank_mask:0x5')
    for i in range(4): a(f'v_add_f32_dpp v{SS+i}, v{SS+4+i}, v{SS+4+i} row_half_mirror row_mask:0xf bank_mask:0xa')
    for i in range(4): a(f'v_add_f32_dpp v{SS+i}, v{SS+i}, v{SS+i} quad_perm:[1,0,3,2] row_mask:0xf bank_mask:0xf')
    for i in range(4): a(f'v_add_f32_dpp v{SS+i}, v{SS+i}, v{SS+i} quad_perm:[2,3,0,1] row_mask:0xf bank_mask:0xf')
    a(f"""v_cndmask_b32 v{SS}, v{SS}, v{SS+1}, {S(sMA,2)}
    v_cndmask_b32 v{SS+2}, v{SS+2}, v{SS+3}, {S(sMA,2)}
    v_cndmask_b32 v26, v{SS}, v{SS+2}, {S(sMC,2)}""")
    left = a.bg[a.bg_i:]; a.bg_on = False
    if cfg.get('eflush', 1):
        for f in left: run(a, f)
        left = []
    a(f'buffer_store_dword v26, v{vSTA}, {srd(SWS)}, s{sSTST} offen sc1')
    if cfg.get('b8', 0) == 1: b8(a)
    for i in range(4): a(f'v_mov_b32 v{24+i}, -1')
    stamp(a, 4)
    vBS = 28
    misc2 = T2(f"""v_and_b32 v28, 12, v0
        v_and_b32 v29, 15, v0
        v_add_u32 v28, v28, v29
        v_lshlrev_b32 v30, 1, v28
        s_lshl_b32 s3, s{sR}, 7
        s_lshl_b32 s7, s{sA}, 6
        s_add_u32 s3, s3, s7
        buffer_load_short_d16_hi v{vBS}, v30, {srd(SBSP)}, s3 offen
        buffer_load_short_d16_hi v{vBS+1}, v30, {srd(SBSP)}, s3 offen offset:8""")
    misc3 = T2(f"""v_lshrrev_b32 v24, 2, v0
        v_lshlrev_b32 v24, 11, v24
        v_bfe_u32 v25, v0, 1, 1
        v_lshl_add_u32 v{vPR}, v25, 8, v24""")
    sr2 = T2('\n'.join(f'v_add_u32 v{vSR2[q]}, 0x10000, v{vSR+q}' for q in range(4)))
    r1b = lambda a: a(f'v_accvgpr_read_b32 v26, a{aR1B}\n v_accvgpr_read_b32 v27, a{aR1B+1}')
    ZX = {8: left, 11: [], 12: sr2, 13: misc3, 14: misc2, 15: [r1b]}
    for k in range(8, 16):
        x = ZX.get(k, []); y = SCH(f'i{k}', ZD[k]); late = []
        while x or y:
            if y: late.append(y.pop(0))
            if x: late.append(x.pop(0))
        gemm_iter(a, k, late)
    stamp(a, 5)
    bgset(a, SCH('q', 'S13.S14.R10.S15.R11.R12'), GAP)
    for j in range(3):
        if j: a(f'v_pk_mul_f32 v[26:27], v[26:27], {S(sVAL,2)} op_sel:[0,{j-1}] op_sel_hi:[1,{j-1}]')
        gelu_tile(a, ACC1+8*j, TM, lambda p: f'v[26:27] op_sel:[0,{p//2}] op_sel_hi:[1,{p//2}]')
    stamp(a, 6)
    a.bg_on = False
    a.wait(vm=a.tok['st'])
    a.label('L_st_chk')
    a(f"""v_pk_add_f32 {V(SL,2)}, {V(SL,2)}, {V(SL+4,2)}
    v_pk_add_f32 {V(SL+2,2)}, {V(SL+2,2)}, {V(SL+6,2)}
    v_pk_add_f32 {V(SL+8,2)}, {V(SL+8,2)}, {V(SL+12,2)}
    v_pk_add_f32 {V(SL+10,2)}, {V(SL+10,2)}, {V(SL+14,2)}
    v_pk_add_f32 {V(SL,2)}, {V(SL,2)}, {V(SL+8,2)}
    v_pk_add_f32 {V(SL+2,2)}, {V(SL+2,2)}, {V(SL+10,2)}
    v_permlane32_swap_b32 v{SL}, v{SL+2}
    v_permlane32_swap_b32 v{SL+1}, v{SL+3}
    v_pk_add_f32 {V(SL,2)}, {V(SL,2)}, {V(SL+2,2)}
    v_permlane16_swap_b32 v{SL}, v{SL+1}
    v_add_f32 v{SL}, v{SL}, v{SL+1}
    v_cmp_u_f32 vcc, v{SL}, v{SL}
    s_cbranch_vccnz L_st_retry""")
    a.label('L_st_ok')
    a.bg_on = bool(cfg.get('nbg', 1))
    RS = SL+8; NB = SL+16
    a(f"""v_mul_f32 v{SL}, {H(1/688)}, v{SL}
    v_mul_f32 v{SL+2}, v{SL}, v{SL}
    v_sub_f32_dpp v{SL+1}, v{SL}, v{SL+2} row_ror:8 row_mask:0xf bank_mask:0xf
    v_max_f32 v{SL+1}, 0, v{SL+1}
    v_add_f32 v{SL+1}, {H(1e-5)}, v{SL+1}
    v_rsq_f32 v{SL+1}, v{SL+1}
    v_mul_f32_e64 v{SL+2}, -v{SL}, v{SL+1}""")
    for i in range(8): a(f'v_mov_b32_dpp v{RS+i}, v{SL+1} row_newbcast:{i} row_mask:0xf bank_mask:0xf')
    for i in range(8): a(f'v_mov_b32_dpp v{NB+i}, v{SL+2} row_newbcast:{i} row_mask:0xf bank_mask:0xf')
    a.bg_on = False; left = a.bg[a.bg_i:]
    PK = SL+24
    for j in range(3):
        y = ACC2+8*j
        for p in range(4): a(f'v_pk_fma_f32 {V(y+2*p,2)}, {V(y+2*p,2)}, {V(RS+2*p,2)}, {V(NB+2*p,2)}')
        for p in range(4): a(f'v_cvt_pk_bf16_f32 v{PK+4*j+p}, v{y+2*p}, v{y+2*p+1}')
        a(f'buffer_store_dwordx4 {V(PK+4*j,4)}, v{vZS}, {srd(SWS)}, s{sZST+j} offen sc1')
    stamp(a, 7)
    D = cfg.get('depth', 10); RING = 128
    vZ = (vL16, vXG, vXG+1); zt = {}
    def zload(a, gi, reg):
        r, i = divmod(gi, 32)
        return a.one(f'buffer_load_dwordx4 {V(reg,4)}, v{vZ[r]}, {srd(SWS)}, s{sZO+i//4} offen offset:{(i%4)*1024} sc1')
    RG = lambda gi: RING + (gi % D)*4
    def probe(a): a.tok['pr'] = a.one(f'buffer_load_dword v30, v{vPR}, {srd(SWS)}, s{sT+1} offen sc1')
    bgset(a, left+SCH('d', 'R13.R14')+sum((WO(k) for k in range(NEARLY)), []), cfg.get('dgap', 56))
    DL = lambda pq, mt: ACC2 + (pq*2+mt)*4
    DH = lambda pq, mt: (48 if pq == 0 else 116) + mt*4
    ST_ = lambda sg, pq: 80 + (sg % 2)*16 + pq*8
    TPK = (112, 124)
    a(f"""v_and_b32 v24, 15, v0
    s_lshl_b32 s3, s{sT}, 4
    s_add_u32 s3, s3, 1
    v_add_u32 v24, s3, v24
    v_cvt_f32_u32 v24, v24
    v_mul_f32 v24, {H(1/512)}, v24
    s_lshl_b32 s3, s{sROT}, 6
    v_lshrrev_b32 v25, 4, v0
    v_lshl_add_u32 v25, v25, 3, s3
    v_cvt_f32_u32 v25, v25
    v_mul_f32 v25, v25, v24
    v_fract_f32 v88, v25
    v_mul_f32 v25, {H(32.0)}, v24""")
    for i in range(1, 8): a(f'v_add_f32 v{88+i}, v{87+i}, v24')
    for i in range(8): a(f'v_add_f32 v{104+i}, v{88+i}, v25')
    a('v_cos_f32 v25, v25')
    for i in range(8): a(f'v_cos_f32 v{80+i}, v{88+i}')
    a('v_add_f32 v25, v25, v25')
    cvt = lambda sg, pq: [f'v_cvt_pk_bf16_f32 v{TPK[pq]+i}, v{ST_(sg,pq)+2*i}, v{ST_(sg,pq)+2*i+1}' for i in range(4)]
    upd = lambda sg, pq: [f'v_fma_f32 v{ST_(sg,pq)+i}, v25, v{ST_(sg+1,pq)+i}, -v{ST_(sg,pq)+i}' for i in range(8)]
    for t in cvt(0, 0): a(t)
    PRPOS = cfg.get('prpos', 8)
    pf = [probe] + [(lambda a, gi=gi: zt.__setitem__(gi, zload(a, gi, RG(gi)))) for gi in range(D-1)]
    def start_pf(a):
        bgset(a, pf + a.bg[a.bg_i:], cfg.get('pgap', 40))
    for sg in range(8):
        if sg == PRPOS: start_pf(a)
        for pq in range(2):
            if sg == 0 and pq == 0: fl = [f'v_sin_f32 v{88+i}, v{88+i}' for i in range(8)] + cvt(0, 1)
            elif sg == 0: fl = [f'v_cos_f32 v{96+i}, v{104+i}' for i in range(8)] + cvt(1, 0)
            elif sg == 1 and pq == 0: fl = [f'v_sin_f32 v{104+i}, v{104+i}' for i in range(8)] + cvt(1, 1)
            elif pq == 0: fl = upd(sg, 1) + cvt(sg, 1)
            elif sg < 7: fl = upd(sg+1, 0) + cvt(sg+1, 0)
            else: fl = [f'v_accvgpr_read_b32 v{96+i}, a{aR1A[i//4]+i%4}' for i in range(8)] + [f'v_cndmask_b32 v24, -1.0, 1.0, {S(sMA,2)}']
            for hf in range(2):
                for mt in range(2):
                    acc = V((DH if hf else DL)(pq, mt), 4)
                    a(f'v_mfma_f32_16x16x32_bf16 {acc}, {V(XF+((sg+8*hf)*2+mt)*4,4)}, {V(TPK[pq],4)}, {acc if sg else 0}')
                    for _ in range(4):
                        if fl:
                            t = fl.pop(0); tk = a.one(t)
                            if t.startswith('ds_'): a.tok['r1'] = tk
    a.tok['r1done'] = True
    if PRPOS == 8: start_pf(a)
    for pq in range(2):
        for p in range(4): a(f'v_pk_fma_f32 {V(DL(pq,0)+2*p,2)}, {V(DH(pq,0)+2*p,2)}, v[24:25], {V(DL(pq,0)+2*p,2)} op_sel_hi:[1,0,1]')
        for p in range(4): a(f'v_pk_mul_f32 {V(DL(pq,0)+2*p,2)}, {V(DL(pq,0)+2*p,2)}, {V(96+2*p,2)}')
        for p in range(4): a(f'v_cvt_pk_bf16_f32 v{WB+4*pq+p}, v{DL(pq,0)+2*p}, v{DL(pq,0)+2*p+1}')
    a.bg_flush(len(pf)); a.bg_on = False
    for pq in range(2): a.tok['pqs'] = a.one(f'buffer_store_dwordx4 {V(WB+4*pq,4)}, v{vL16}, {srd(SWS)}, s{sPQST} offen offset:{1024*pq} sc1')
    stamp(a, 8)
    bgend(a)
    for k in range(16):
        if f'R{k}' not in used and f'X{k}' not in used:
            for f in RD(k): run(a, f)
    assert all(a.tok['srn', k] == 1 for k in range(16)) and len([u for u in used if u != 'N']) == len(set(used) - {'N'})
    assert 'E' in used or all(f'E{i}' in used for i in range(len(clr)))
    assert all(t in used for t in ('D', 'K', 'T', 'W14', 'W15')) and (('C' in used) != ('cp2' in cfg))
    stamp(a, 9)
    a.wait(vm=a.tok['pr'])
    a.label('L_pr_chk')
    a('v_cmp_eq_u32 vcc, -1, v30\n s_cbranch_vccnz L_pr_retry')
    a.label('L_pr_ok')
    stamp(a, 10)
    vRW = vXW; vRR = vXW+1
    a(f's_cmp_eq_u32 s{sNP}, 2\n s_cbranch_scc1 L_pathB')
    b = a.fork()
    slow = []
    from gen2 import tail
    env = dict(globals()); env.update(locals())
    tail(a, 3, env)
    b.label('L_pathB')
    tail(b, 2, env)
    r = Asm(); r.out = a.out; r.tok['dbgok'] = True
    r.label('L_dbg_retry')
    r(f'buffer_load_dword v{vXG+1}, v{vXG}, {srd(SDBG)}, 0 offen sc1\n s_waitcnt vmcnt(0)')
    retry(r, 'L_dbg_chk', 'L_dbg_ok')
    r.label('L_st_retry')
    r(f's_cmp_gt_u32 s{sCNT}, {LIMIT}\n s_cbranch_scc1 L_st_ok\n s_add_u32 s{sCNT}, s{sCNT}, 1')
    st_loads(r); r('s_waitcnt vmcnt(0)\n s_branch L_st_chk')
    r.label('L_pr_retry')
    r(f's_cmp_gt_u32 s{sCNT}, {LIMIT}\n s_cbranch_scc1 L_pr_ok\n s_add_u32 s{sCNT}, s{sCNT}, 1')
    probe(r); r('s_waitcnt vmcnt(0)\n v_cmp_eq_u32 vcc, -1, v30\n s_cbranch_vccnz L_pr_retry')
    for gi in range(D-1): zload(r, gi, RG(gi))
    r('s_waitcnt vmcnt(0)\n s_branch L_pr_ok')
    for f in slow: f(r)
    r.label('L_end'); r('s_endpgm')
    r.raw('L_codeend:')
    hdr = open('parallel_sum__spectral_fnet__mixer_gmlp__prompt.s.ref').read().split('; @launch')[0] if cfg.get('hdr', True) else ''
    txt = hdr + f'''; @launch grid=(256,1,1) block=(256,1,1) lds=163840
.amdgcn_target "amdgcn-amd-amdhsa--gfx950"
.text
.globl {KN}
.p2align 8
.type {KN},@function
{KN}:
''' + '\n'.join(a.out) + f'''
.section .rodata,"a"
.p2align 6
.amdhsa_kernel {KN}
  .amdhsa_next_free_vgpr 512
  .amdhsa_next_free_sgpr 102
  .amdhsa_accum_offset 256
  .amdhsa_group_segment_fixed_size 0
  .amdhsa_kernarg_size 104
  .amdhsa_user_sgpr_count 2
  .amdhsa_user_sgpr_kernarg_segment_ptr 1
  .amdhsa_system_sgpr_workgroup_id_x 1
.end_amdhsa_kernel
'''
    return txt
if __name__ == '__main__':
    cfg = {}
    for kv in sys.argv[2:]:
        k, v = kv.split('='); cfg[k] = int(v) if v.lstrip('-').isdigit() else v
    open(sys.argv[1], 'w').write(gen(cfg))
```

```python
from asmlib import *
def tail(a, NP, env):
    globals().update({k: v for k, v in env.items() if not k.startswith('__') and k not in ('a', 'tail')})
    P = 'A' if NP == 3 else 'B'
    zt = dict(env['zt'])
    FL = []
    def F(text):
        for l in text.strip().split('\n'):
            l = l.strip()
            if l.startswith(('s_cselect', 'v_cndmask')): FL[-1] += '\n' + l
            else: FL.append(l)
    F(f'''v_add_u32 v{vZ[1]}, 0x20000, v{vL16}
    v_add_u32 v{vZ[2]}, 0x40000, v{vL16}
    s_lshl_b32 s3, s{sW}, 13
    s_add_u32 s3, s3, {L_RED}
    v_add_u32 v{vRW}, s3, v{vL16}
    s_lshl_b32 s3, s{sW}, 11
    s_add_u32 s3, s3, {L_RED}
    v_lshrrev_b32 v40, 4, v0
    v_lshl_add_u32 v40, v40, 8, s3
    v_add_u32 v{vRR}, v40, v{vL16}''')
    if NP == 2:
        F(f'''v_and_b32 v32, 31, v0
        v_cvt_f32_u32 v32, v32
        v_lshrrev_b32 v33, 5, v0
        s_lshl_b32 s3, s{sB}, 10
        v_add_u32 v36, s3, v{vL16}
        s_lshl_b32 s3, s{sW}, 12
        v_add_u32 v37, s3, v{vL16}
        s_lshl_b32 s3, s{sW}, 11
        v_add_u32 v38, s3, v{vL16}''')
        AR, CO, SI, PKD = 80, 88, 96, 104
        def args(kf, n0, steps):
            F(f'v_mul_f32 v34, {H(kf)}, v32\n {n0}\n v_cvt_f32_u32 v35, v35')
            for i, st in enumerate(steps):
                if st == 0: F(f'v_mul_f32 v{AR+i}, v35, v34')
                else: F(f'v_add_f32 v39, {H(float(st))}, v35\n v_mul_f32 v{AR+i}, v39, v34')
        args(1/32, f's_lshl_b32 s3, s{sB}, 4\n v_lshl_add_u32 v35, v33, 3, s3', range(8))
        for i in range(8): F(f'v_cos_f32 v{CO+i}, v{AR+i}')
        for i in range(8): F(f'v_sin_f32 v{SI+i}, v{AR+i}')
        for i in range(8): F(f'v_cvt_pk_bf16_f32 v{PKD+i}, v{CO+2*i}, v{CO+2*i+1}')
        for i in range(4): F(f'v_xor_b32 v{PKD+8+i}, 0x80008000, v{PKD+4+i}')
        for q in range(3): F(f'ds_write_b128 v36, {V(PKD+4*q,4)} offset:{2048*q}')
        args(1/2048, f's_lshl_b32 s3, s{sW}, 4\n v_lshl_add_u32 v35, v33, 2, s3', [0,1,2,3,8,9,10,11])
        for i in range(8): F(f'v_cos_f32 v{CO+i}, v{AR+i}')
        for i in range(8): F(f'v_sin_f32 v{SI+i}, v{AR+i}')
        for j in range(2):
            F(f'ds_write_b128 v37, {V(CO+4*j,4)} offset:{6144+j*2048}\n ds_write_b128 v37, {V(SI+4*j,4)} offset:{6144+j*2048+1024}')
        args(1/64, f's_lshl_b32 s3, s{sA}, 5\n s_add_u32 s3, s3, s{sB}\n v_lshl_add_u32 v35, v33, 2, s3', [0,2,8,10,16,18,24,26])
        for i in range(8): F(f'v_cos_f32 v{40+i}, v{AR+i}')
        for i in range(8): F(f'v_sin_f32_e64 v{48+i}, -v{AR+i}')
        for i in range(8): F(f'v_cvt_pk_bf16_f32 v{116+i}, v{40+2*i}, v{41+2*i}')
        for q in range(2): F(f'ds_write_b128 v38, {V(116+4*q,4)} offset:{22528+1024*q}')
    FL0 = FL; FL = []
    vX3, vO3, vY3 = vWG, vWG+1, vWG+2; vOR = vSG; vPQG, vPQW = vWR, vWR+1; vPQR, vYS = vZS, vSTA
    sX3, sHB, sYB, sYS, sYT, sPQL, sSEL = sWO, sWO+1, sWO+2, sWO+3, sWO+4, sWO+5, sWO+6
    F(f'''v_and_b32 v40, 12, v0
    v_and_b32 v41, 15, v0
    v_add_u32 v40, v40, v41
    s_lshl_b32 s3, s{sA}, 5
    s_lshl_b32 s7, s{sB}, 2
    s_add_u32 s3, s3, s7
    v_add_u32 v40, s3, v40
    v_lshrrev_b32 v41, 4, v0
    v_lshlrev_b32 v42, 10, v40
    v_lshl_add_u32 v{vX3}, v41, 3, v42
    v_and_b32 v43, 1, v41
    v_lshl_add_u32 v42, v43, 5, v42
    v_lshrrev_b32 v44, 1, v41
    v_lshl_add_u32 v{vO3}, v44, 4, v42
    s_lshl_b32 s{sX3}, s{sR}, 16
    s_add_u32 s{sX3}, s{sX3}, s{sT+2}
    s_mul_i32 s{sHB}, s{sR}, 90112
    s_lshl_b32 s3, s{sW}, 10
    s_add_u32 s{sHB}, s{sHB}, s3
    s_add_u32 s{sHB}, s{sHB}, {HH}
    s_lshl_b32 s3, s{sG}, 4
    s_sub_u32 s7, 124, s3
    s_cmp_ge_u32 s{sG}, 4
    s_cselect_b32 s3, s7, s3
    s_cselect_b32 s7, -1, 0
    s_cselect_b32 s{sYT}, 0, 0xffffc000
    s_xor_b32 s{sYS}, s7, 0x10000
    s_sub_u32 s{sYS}, s{sYS}, s7
    s_lshl_b32 s3, s3, 14
    s_add_u32 s{sYB}, s3, {YY}
    s_lshl_b32 s3, s{sR}, 6
    v_add_u32 v40, s3, v40
    v_xor_b32 v40, s7, v40
    v_subrev_u32 v40, s7, v40
    v_and_b32 v40, 0x7ff, v40
    v_xor_b32 v42, s7, v41
    v_and_b32 v42, 3, v42
    v_lshlrev_b32 v42, 14, v42
    v_lshrrev_b32 v44, 6, v40
    v_lshl_add_u32 v42, v44, 9, v42
    v_and_b32 v44, 31, v40
    v_lshl_add_u32 v42, v44, 4, v42
    v_bfe_u32 v44, v40, 5, 1
    v_lshl_add_u32 v{vY3}, v44, 3, v42
    v_bfe_u32 v40, v0, 2, 2
    v_lshl_add_u32 v42, v41, 3, v40
    v_lshlrev_b32 v42, 7, v42
    v_lshrrev_b32 v44, 1, v40
    v_lshl_add_u32 v44, v43, 1, v44
    v_lshl_add_u32 v42, v44, 5, v42
    v_and_b32 v44, 3, v0
    v_lshl_add_u32 v42, v44, 3, v42
    v_add_u32 v{vOR}, {L_WO+40960}, v42
    v_xor_b32 v{vOR+1}, 32, v{vOR}
    v_xor_b32 v{vOR+2}, 64, v{vOR}
    v_xor_b32 v{vOR+3}, 0x60, v{vOR}''')
    if NP == 3:
        F(f'''s_and_b32 s{sSEL}, s7, 0x04040000
        s_xor_b32 s{sSEL}, s{sSEL}, 0x01000c0c
        s_xor_b32 s{sSEL+1}, s{sSEL}, 0x04040000''')
    if NP == 2:
        F(f'''s_and_b32 s3, s{sR}, 3
        s_lshl_b32 s3, s3, 6
        v_xor_b32 v42, s{sW}, v44
        v_lshl_add_u32 v42, v42, 4, s3
        v_lshrrev_b32 v32, 2, v0
        v_lshl_add_u32 v{vPQG}, v32, 8, v42
        s_sub_u32 s3, s{sG}, 6
        s_lshl_b32 s3, s3, 3
        s_lshr_b32 s7, s{sR}, 2
        s_add_u32 s3, s3, s7
        s_lshl_b32 s3, s3, 17
        s_lshl_b32 s7, s{sW}, 12
        s_add_u32 s3, s3, s7
        s_add_u32 s{sPQL}, s3, {PQ}
        s_lshl_b32 s3, s{sW}, 10
        s_add_u32 s3, s3, {L_RED}
        v_add_u32 v{vPQW}, s3, v{vL16}
        v_lshrrev_b32 v32, 5, v0
        v_lshl_add_u32 v42, v32, 3, v40
        v_lshlrev_b32 v42, 10, v42
        v_lshrrev_b32 v33, 1, v44
        v_lshl_add_u32 v33, v43, 1, v33
        v_lshl_add_u32 v42, v33, 6, v42
        v_xor_b32 v33, s{sW}, v40
        v_lshl_add_u32 v42, v33, 4, v42
        v_and_b32 v33, 1, v44
        v_lshl_add_u32 v42, v33, 3, v42
        v_add_u32 v{vPQR}, {L_RED}, v42
        v_and_b32 v33, 31, v0
        v_lshlrev_b32 v33, 4, v33
        v_lshl_add_u32 v{vYS}, v32, 10, v33
        s_mov_b32 s{sSEL}, 0x05040100
        s_mov_b32 s{sSEL+1}, 0x07060302
        s_sub_u32 s3, s{sG}, 6
        s_lshl_b32 s3, s3, 5
        s_add_u32 s3, s3, s{sR}
        s_lshl_b32 s3, s3, 2
        s_add_u32 s3, s3, s{sW}
        s_lshl_b32 s3, s3, 12
        s_add_u32 s{sYST}, s3, {YY}''')
        vY0 = vY3
    else:
        vY0 = vWR
        F(f'''s_cmp_eq_u32 s{sG}, 0
        s_cselect_b32 s3, 16, 0
        v_mov_b32 v{vY0}, {OOB}
        v_cmp_le_u32 vcc, s3, v0
        v_cndmask_b32 v{vY0}, v{vY0}, v{vY3}, vcc''')
    FL1 = FL
    if NP == 3: FL0 += FL1; FL1 = []
    G = 32*NP
    ACC = lambda r: 224 if (NP-1-r) % 2 == 0 else 192
    a.wait(lg=a.lg_n)
    if NP == 2: a('s_barrier')
    TP = 80; HP = 112
    def red_ops(r, pk):
        W = [(lambda a, q=q: a.tok.__setitem__('rw', a.one(f'ds_write_b128 v{vRW}, {V(ACC(r)+4*q,4)} offset:{1024*q}'))) for q in range(8)]
        def bar(a): a.wait(lg=a.tok['rw']); a('s_barrier')
        Rd = [(lambda a, q=q: a.tok.__setitem__(('rr', q), a.one(f'ds_read_b128 {V(TP+4*q,4)}, v{vRR} offset:{(q//2)*8192+(q%2)*256}'))) for q in range(8)]
        C = []
        def op(t): C.append(lambda a: a(t))
        def add8(d, x, y):
            if pk:
                for p in range(4): op(f'v_pk_add_f32 {V(d+2*p,2)}, {V(x+2*p,2)}, {V(y+2*p,2)}')
            else:
                for p in range(8): op(f'v_add_f32 v{d+p}, v{x+p}, v{y+p}')
        C.append(lambda a: a.wait(lg=a.tok['rr', 3])); add8(TP, TP, TP+8)
        if pk:
            for p in range(4): op(f'v_pk_add_f32 {V(TP+2*p,2)}, {V(TP+2*p,2)}, {V(vBS,2)} op_sel:[0,{p//2}] op_sel_hi:[1,{p//2}]')
        else:
            for p in range(8): op(f'v_add_f32 v{TP+p}, v{TP+p}, v{vBS+p//4}')
        C.append(lambda a: a.wait(lg=a.tok['rr', 7])); add8(TP+16, TP+16, TP+24); add8(TP, TP, TP+16)
        if pk:
            for p in range(4): op(f'v_pk_mul_f32 {V(TP+2*p,2)}, {V(TP+2*p,2)}, {V(ACC1+8*r+2*p,2)}')
        else:
            for p in range(8): op(f'v_mul_f32 v{TP+p}, v{TP+p}, v{ACC1+8*r+p}')
        for p in range(4): op(f'v_cvt_pk_bf16_f32 v{HP+p}, v{TP+2*p}, v{TP+2*p+1}')
        op(f'v_permlane16_swap_b32 v{HP}, v{HP+2}'); op(f'v_permlane16_swap_b32 v{HP+1}, v{HP+3}')
        op(f'buffer_store_dwordx4 {V(HP,4)}, v{vHS}, {srd(SWS)}, s{sHST+r} offen sc1')
        return W, bar, Rd, C
    PQR = [32, 36, 40, 44, 48, 52, 116, 120]
    def pq_load(a, i):
        a(f's_add_u32 s5, s{sPQL}, {i*16384}')
        a.tok['pq'] = a.one(f'buffer_load_dwordx4 {V(PQR[i],4)}, v{vPQG}, {srd(SWS)}, s5 offen sc1')
    wol = list(range(NEARLY, 22))
    for r in range(NP):
        a.cmt(f'P2 round {r}')
        sched = {}
        def at(g, f): sched.setdefault(g, []).append(f)
        if r > 0:
            W, bar, Rd, C = red_ops(r-1, False)
            rb = cfg.get('rbar', 24)
            assert cfg.get('rw0', 4)+cfg.get('rws', 2)*7 < rb and cfg.get('rc', 10) >= 4 and rb+cfg.get('rc', 10)+len(C)//2 < 61
            for q, f in enumerate(W): at(cfg.get('rw0', 4)+cfg.get('rws', 2)*q, f)
            at(rb, bar)
            for q, f in enumerate(Rd): at(rb+q, f)
            for q, f in enumerate(C): at(rb+cfg.get('rc', 10)+q//2, f)
        if r: at(61, lambda a: (a.wait(lg=a.lg_n), a('s_barrier')))
        else:
            def sig2(a):
                assert a.vm_done >= a.tok['pqs']
                a('s_barrier'); dbg_store(a, 3)
            s2 = 2*D
            if 'cp2' in cfg:
                c0, cs = cfg['cp2'], cfg.get('cp2s', 2)
                at(c0, lambda a: [a(f'v_mov_b32 v{ACC(1)+i}, -1') for i in range(4)])
                for q, t in enumerate(clr_ops(ACC(1), cfg.get('cl', 'hy'))):
                    at(c0+1+q*cs, lambda a, t=t: a.tok.__setitem__('pqs', a.one(t))); s2 = (c0+1+q*cs)//2*2 + 2*D + 2
            at(s2, sig2)
        fl = FL0 if r == 0 else FL1 if r == 1 else []
        ng = 62 if r == 0 else 2*(32-D+1)-2
        for q, t in enumerate(fl): at(q*ng//len(fl), lambda a, t=t: a(t))
        if r == NP-1:
            def d2l(a):
                a(fladdr(25))
                a.tok['dbg'] = a.one(f'buffer_load_dword v30, v25, {srd(SWS)}, 0 offen sc1')
            def d2c(a):
                a.wait(vm=a.tok['dbg'])
                a.label(f'L_d2{P}_chk')
                a(f'v_and_b32 v30, 0x02020202, v30\n v_cmp_ne_u32 vcc, 0x02020202, v30\n s_cbranch_vccnz L_d2{P}_retry')
                a.label(f'L_d2{P}_ok')
            def d2r(s):
                s.label(f'L_d2{P}_retry')
                d2l(s); s('s_waitcnt vmcnt(0)')
                retry(s, f'L_d2{P}_chk', f'L_d2{P}_ok')
            slow.append(d2r)
            at(1, d2l); at(2*D+1, d2c)
            assert 2*D+1 < 2*(32-D+1)
        MX = 26 + r % 2
        for i in range(32):
            gi = r*32+i
            a.wait(vm=zt[gi])
            if i == 1: a(f'v_max_u32 v{MX}, v{RG(gi-1)}, v{RG(gi)}')
            elif i % 2: a(f'v_max3_u32 v{MX}, v{RG(gi-1)}, v{RG(gi)}, v{MX}')
            for tt in range(2):
                acc = V(ACC(r)+16*tt, 16)
                a(f'v_mfma_f32_32x32x16_bf16 {acc}, {V(RG(gi),4)}, {A(i*8+4*tt,4)}, {acc if i else 0}')
                if tt == 0:
                    nx = gi+D-1
                    if nx < G: zt[nx] = zload(a, nx, RG(nx))
                    elif NP == 2 and nx-G < 8: pq_load(a, nx-G)
                    elif NP == 3 and wol: wo_issue(a, wol.pop(0))
                elif NP == 3 and gi+D-1 >= G and len(wol) > 31-i and cfg.get('wo2', 1): wo_issue(a, wol.pop(0))
                for f in sched.get(2*i+tt, []): f(a)
        a(f'v_cmp_eq_u32 vcc, -1, v{MX}\n s_cbranch_vccnz L_slow{P}{r}')
        a.label(f'L_ret{P}{r}')
        stamp(a, 11+r)
        def mk_slow(r=r, MX=MX):
            def f(s):
                s.label(f'L_slow{P}{r}')
                s(f's_cmp_gt_u32 s{sCNT}, {LIMIT}\n s_cbranch_scc1 L_ret{P}{r}\n s_add_u32 s{sCNT}, s{sCNT}, 1\n v_mov_b32 v{MX}, 0')
                for bb in range(4):
                    for q in range(8): zload(s, r*32+bb*8+q, TP+4*q)
                    s('s_waitcnt vmcnt(0)')
                    for q in range(4): s(f'v_max3_u32 v{MX}, v{TP+8*q}, v{TP+8*q+4}, v{MX}')
                    for q in range(8):
                        i = bb*8+q
                        for tt in range(2):
                            acc = V(ACC(r)+16*tt, 16)
                            s(f'v_mfma_f32_32x32x16_bf16 {acc}, {V(TP+4*q,4)}, {A(i*8+4*tt,4)}, {acc if i else 0}')
                s(f'v_cmp_eq_u32 vcc, -1, v{MX}\n s_cbranch_vccnz L_slow{P}{r}\n s_nop 7\n s_nop 7\n s_branch L_ret{P}{r}')
            return f
        slow.append(mk_slow())
    if NP == 2: stamp(a, 13)
    HF = 128; A3 = 32; XR = 48; YR = 56
    HR = lambda k, n=4: A(192+4*k, n) if NP == 2 and k < 16 else V(HF+4*k, n)
    XD = lambda m: A(184+2*m, 2) if NP == 2 else V(XR+2*m, 2)
    OR = lambda k: (88 if NP == 2 else 0) + (k % 6)*16
    def hload(a, k):
        b = a.in_bg; a.in_bg = True
        a(f's_add_u32 s3, s{sHB}, {KORD[k]*4096}')
        a.tok['h', k] = a.one(f'buffer_load_dwordx4 {HR(k)}, v{vL16}, {srd(SWS)}, s3 offen sc1')
        a.in_bg = b
    K0 = [0, 8, 16, 22]
    HL = lambda s: [(lambda a, k=k: hload(a, k)) for k in range(K0[s], K0[s+1])]
    XL = [(lambda a, m=m: a.tok.__setitem__('x', a.one(f'buffer_load_dwordx2 {XD(m)}, v{vX3}, {srd(SX)}, s{sX3} offen offset:{32*m}'))) for m in range(4)]
    def o_reads(k):
        pos = (k+10) % 22; ops = []
        if pos == 0: ops.append(lambda a: [a(f'v_subrev_u32 v{vOR+m}, 40960, v{vOR+m}') for m in range(4)])
        base = 10 if k < 12 else 0
        for m in range(4):
            for u in range(2):
                ops.append(lambda a, m=m, u=u: a.tok.__setitem__(('or', k), a.one(f'ds_read_b64_tr_b16 {A(OR(k)+4*m+2*u,2)}, v{vOR+m} offset:{(pos-base)*4096+u*512}')))
        return ops
    def wo_bar(a, k):
        if k >= NEARLY and not a.tok.get(('wob', k)):
            a.wait(vm=a.tok['wo', k]); a('s_barrier')
            for kk in range(22):
                if ('wo', kk) in a.tok and a.tok['wo', kk] <= a.vm_done: a.tok['wob', kk] = True
    W, bar, Rd, C = red_ops(NP-1, True)
    L = [(lambda a, k=k: wo_issue(a, k)) for k in wol] + HL(0)
    n1 = cfg.get('tl1', 4) if NP == 3 else cfg.get('bl1', 4); n2 = cfg.get('tl2', 4) if NP == 3 else cfg.get('bl2', 2)
    for q, f in enumerate(W):
        f(a)
        if q >= 8-n1 and L: L.pop(0)(a)
    bar(a)
    for f in Rd: f(a)
    for q in range(n2):
        if L: L.pop(0)(a)
    bgset(a, L, cfg.get('tgap', 48) if NP == 3 else cfg.get('bgap', 64), 20)
    for f in C[:-1]: f(a)
    a.bg_on = False; L = a.bg[a.bg_i:]
    C[-1](a)
    stamp(a, 14)
    if NP == 3:
        for f in L: run(a, f)
        pend = HL(1) + XL
    else:
        a.cmt('FFT')
        bgset(a, L + XL, cfg.get('bgap', 64), 20)
        B1, B2, A1, TW, D1, A2 = 0, 24, 56, 192, 128, 80
        for q in range(6): a(f'ds_read_b128 {A(B1+4*q,4)}, v{vL16} offset:{1024*q}')
        for q in range(8): a(f'ds_read_b128 {A(B2+4*q,4)}, v{vL16} offset:{22528+1024*q}')
        a.wait(vm=a.tok['pq'])
        a('s_barrier')
        for i in range(8): t = a.one(f'ds_write_b128 v{vPQW}, {V(PQR[i],4)} offset:{4096*i}')
        a(f'''s_mul_i32 s7, s{sA}, 43008
        s_lshl_b32 s6, s{sB}, 12
        s_add_u32 s7, s7, s6
        s_add_u32 s7, s7, 22528
        v_add_u32 v{vPQG}, s7, v{vL16}
        v_subrev_u32 v{vPQW}, {L_RED-22528}, v{vPQW}''')
        a.wait(lg=t)
        a('s_barrier')
        at1 = {}
        for tile in range(2):
            for ka in range(2):
                for pq in range(2):
                    for u in range(2):
                        at1[tile, ka] = a.one(f'ds_read_b64_tr_b16 {A(A1+((tile*2+ka)*2+pq)*4+2*u,2)}, v{vPQR} offset:{(16*ka+4*u)*1024+tile*512+pq*256}')
        twt = {}
        for tile in range(2):
            U = V(D1+32*tile, 16); Vv = V(D1+32*tile+16, 16)
            for ka in range(2):
                a.wait(lg=at1[tile, ka])
                Pf = A(A1+((tile*2+ka)*2)*4, 4); Qf = A(A1+((tile*2+ka)*2+1)*4, 4)
                cc, ss, ns = A(B1+4*ka, 4), A(B1+8+4*ka, 4), A(B1+16+4*ka, 4)
                for n, (acc, x, y) in enumerate(((U, Pf, cc), (Vv, Pf, ss), (U, Qf, ns), (Vv, Qf, cc))):
                    a(f'v_mfma_f32_32x32x16_bf16 {acc}, {x}, {y}, {acc if (ka or n > 1) else 0}')
                    q = (tile*2+ka)*4+n
                    twt[q] = a.one(f'ds_read_b128 {V(TW+4*q,4)}, v{vL16} offset:{6144+1024*q}')
        E, O = 32, 48
        for tile in range(2):
            a.wait(lg=twt[tile*8+7])
            if tile == cfg.get('bh1', 1): bgset(a, a.bg[a.bg_i:] + HL(1), cfg.get('bgap2', 40))
            U = D1+32*tile; Vv = U+16
            for j in range(4):
                tc = TW+((tile*4+j)*2)*4; ts = tc+4
                for p in range(2):
                    a(f'v_pk_mul_f32 {V(112+4*p,2)}, {V(Vv+4*j+2*p,2)}, {V(ts+2*p,2)}')
                    a(f'v_pk_mul_f32 {V(114+4*p,2)}, {V(Vv+4*j+2*p,2)}, {V(tc+2*p,2)}')
                for p in range(2):
                    a(f'v_pk_fma_f32 {V(Vv+4*j+2*p,2)}, {V(U+4*j+2*p,2)}, {V(ts+2*p,2)}, {V(114+4*p,2)}')
                    a(f'v_pk_fma_f32 {V(U+4*j+2*p,2)}, {V(U+4*j+2*p,2)}, {V(tc+2*p,2)}, {V(112+4*p,2)} neg_lo:[0,0,1] neg_hi:[0,0,1]')
                for pi in range(2):
                    for cp, X in enumerate((U, Vv)):
                        a(f'v_cvt_pk_bf16_f32 v{A2+((tile*2+pi)*2+cp)*4+j}, v{X+4*j+pi}, v{X+4*j+pi+2}')
            for cp in range(2):
                for pi in range(2):
                    acc = V(O if pi else E, 16); q = ((tile*2+pi)*2+cp)*4
                    a(f'v_mfma_f32_32x32x16_bf16 {acc}, {A(B2+q,4)}, {V(A2+q,4)}, {acc if (tile or cp) else 0}')
        for hf in range(2):
            for p in range(8):
                a(f'v_pk_add_f32 {V(D1+16*hf+2*p,2)}, {V(E+2*p,2)}, {V(O+2*p,2)}' + (' neg_lo:[0,1] neg_hi:[0,1]' if hf else ''))
            for p in range(8): a(f'v_cvt_pk_bf16_f32 v{64+8*hf+p}, v{D1+16*hf+2*p}, v{D1+16*hf+2*p+1}')
            for q in range(2): t = a.one(f'ds_write_b128 v{vPQG}, {V(64+8*hf+4*q,4)} offset:{(2*hf+q)*1024}')
        bgend(a)
        a.wait(lg=t)
        assert NEARLY < 22
        wo_bar(a, 21)
        for q, o in enumerate((0, 4096, 43008, 47104)): yt = a.one(f'ds_read_b128 {V(80+4*q,4)}, v{vPQW} offset:{o}')
        for k in range(2):
            for f in o_reads(k): f(a)
        a.wait(lg=yt)
        for t in range(4):
            for hi in range(2):
                for q in range(2): a(f'v_perm_b32 v{96+4*t+2*hi+q}, v{84+8*q+t}, v{80+8*q+t}, s{sSEL+hi}')
            a(f'buffer_store_dwordx4 {V(96+4*t,4)}, v{vYS}, {srd(SWS)}, s{sYST} offen offset:{(t//2)*2048+(t%2)*512} sc1')
        pend = []
    stamp(a, 15)
    def yloads(a):
        a(f's_mov_b32 s7, s{sYB}')
        for m in range(4):
            if NP == 3: a(f's_add_u32 s6, s7, s{sYT}')
            a.tok['y'] = a.one(f'buffer_load_dwordx2 {V(YR+2*m,2)}, v{vY3}, {srd(SWS)}, s7 offen sc1')
            if NP == 3: a.tok['y'] = a.one(f'buffer_load_dword v{YR+8+m}, v{vY3 if m else vY0}, {srd(SWS)}, s6 offen offset:4 sc1')
            if m < 3: a(f's_add_u32 s7, s7, s{sYS}')
    def mf3(a, k, m):
        a(f'v_mfma_f32_16x16x32_bf16 {V(A3+4*m,4)}, {A(OR(k)+4*m,4)}, {HR(k)}, {V(A3+4*m,4) if k else 0}')
    def hcheck(a, s, first_wait=True):
        ks = list(range(K0[s], K0[s+1]))
        a.wait(vm=a.tok['h', ks[-1]])
        a.label(f'L_h{P}{s}_chk')
        if HR(ks[0], 1)[0] == 'a':
            for k in ks: a(f'v_accvgpr_read_b32 v{HF+4*k}, {HR(k,1)}')
        a(f'v_max_u32 v24, v{HF+4*ks[0]}, v{HF+4*ks[1]}')
        for q in range(1, len(ks)//2): a(f'v_max3_u32 v24, v{HF+4*ks[2*q]}, v{HF+4*ks[2*q+1]}, v24')
        a(f'v_cmp_eq_u32 vcc, -1, v24\n s_cbranch_vccnz L_h{P}{s}_retry')
        a.label(f'L_h{P}{s}_ok')
        def f(r):
            r.label(f'L_h{P}{s}_retry')
            r(f's_cmp_gt_u32 s{sCNT}, {LIMIT}\n s_cbranch_scc1 L_h{P}{s}_ok\n s_add_u32 s{sCNT}, s{sCNT}, 1')
            for k in ks: hload(r, k)
            r(f's_waitcnt vmcnt(0)\n s_branch L_h{P}{s}_chk')
        slow.append(f)
    if NP == 3:
        wo_bar(a, 1)
        for k in range(2):
            for f in o_reads(k): f(a)
    hcheck(a, 0)
    XU = 80
    rdq = list(range(2, 22))
    for k in range(16):
        if k == 8:
            while pend: pend.pop(0)(a)
            hcheck(a, 1)
        if k == cfg.get('h2pos' if NP == 3 else 'h2b', 12):
            for f in HL(2): f(a)
        if k == cfg.get('ypos' if NP == 3 else 'yb', 14): yloads(a)
        nk = rdq.pop(0)
        if nk >= NEARLY: wo_bar(a, 21)
        ops = o_reads(nk)
        a.wait(lg=a.tok['or', k])
        for m in range(4):
            mf3(a, k, m)
            if m % 2 and pend: pend.pop(0)(a)
            for _ in range(2 if m else len(ops)-6): ops.pop(0)(a)
    for nk in rdq:
        for f in o_reads(nk): f(a)
    a.wait(vm=a.tok['x'])
    if NP == 2:
        for q in range(8): a(f'v_accvgpr_read_b32 v{XR+q}, a{184+q}')
    for m in range(4):
        for p in range(2):
            a(f'v_lshlrev_b32 v{XU+4*m+2*p}, 16, v{XR+2*m+p}\n v_and_b32 v{XU+4*m+2*p+1}, 0xffff0000, v{XR+2*m+p}')
    for p in range(8): a(f'v_pk_add_f32 {V(A3+2*p,2)}, {V(A3+2*p,2)}, {V(XU+2*p,2)}')
    stamp(a, 16)
    a.wait(lg=a.lg_n)
    hcheck(a, 2)
    stamp(a, 17)
    for k in range(16, 22):
        for m in range(4): mf3(a, k, m)
    a.wait(vm=a.tok['y'])
    a.label(f'L_y{P}_chk')
    a(f'v_max_u32 v24, v{YR}, v{YR+2}\n v_max3_u32 v24, v{YR+4}, v{YR+6}, v24')
    if NP == 3: a(f'v_max3_u32 v24, v{YR+8}, v{YR+9}, v24\n v_max3_u32 v24, v{YR+10}, v{YR+11}, v24')
    a(f'v_cmp_eq_u32 vcc, -1, v24\n s_cbranch_vccnz L_y{P}_retry')
    a.label(f'L_y{P}_ok')
    def yr(r):
        r.label(f'L_y{P}_retry')
        r(f's_cmp_gt_u32 s{sCNT}, {LIMIT}\n s_cbranch_scc1 L_y{P}_ok\n s_add_u32 s{sCNT}, s{sCNT}, 1')
        yloads(r); r(f's_waitcnt vmcnt(0)\n s_branch L_y{P}_chk')
    slow.append(yr)
    for m in range(4):
        g0, g1 = YR+2*m, YR+2*m+1
        a(f'v_and_b32 v{XU+4*m}, 0xffff0000, v{YR+8+m if NP == 3 else g1}\n v_and_b32 v{XU+4*m+2}, 0xffff0000, v{g0}')
        if NP == 3: a(f'v_perm_b32 v{XU+4*m+1}, v{g1}, v{g0}, s{sSEL}\n v_perm_b32 v{XU+4*m+3}, v{g1}, v{g0}, s{sSEL+1}')
        else: a(f'v_lshlrev_b32 v{XU+4*m+1}, 16, v{g1}\n v_lshlrev_b32 v{XU+4*m+3}, 16, v{g0}')
    for p in range(8): a(f'v_pk_add_f32 {V(A3+2*p,2)}, {V(A3+2*p,2)}, {V(XU+2*p,2)}')
    for p in range(8): a(f'v_cvt_pk_bf16_f32 v{72+p}, v{A3+2*p}, v{A3+2*p+1}')
    for io in range(2):
        a(f'v_permlane16_swap_b32 v{72+4*io}, v{74+4*io}\n v_permlane16_swap_b32 v{73+4*io}, v{75+4*io}')
        a(f'buffer_store_dwordx4 {V(72+4*io,4)}, v{vO3}, {srd(SOUT)}, s{sX3} offen offset:{64*io} ' + str(cfg.get('ost', '')).replace('_', ' '))
    if stamps:
        stamp(a, 18)
        a.waitall(); stamp(a, 19)
        a(f'''s_waitcnt lgkmcnt(0)
        v_writelane_b32 v{vST}, s100, 19
        v_writelane_b32 v{vST}, s{sCNT}, 20
        s_lshl_b32 s3, s2, 2
        s_add_u32 s3, s3, s{sW}
        s_lshl_b32 s3, s3, 8
        s_add_u32 s3, s3, {STAMP}
        v_lshlrev_b32 v24, 2, v0
        buffer_store_dword v{vST}, v24, {srd(SWS)}, s3 offen''')
    if 'calib' in cfg:
        cw = cfg.get('calwg', -1)
        a(f'''v_readlane_b32 s4, v{vST}, {cfg['calib']}
        s_add_u32 s4, s4, 6000''')
        if cw >= 0: a(f's_cmp_eq_u32 s2, {cw}\n s_cbranch_scc0 L_end')
        a.label(f'L_cal{P}')
        a(f'''s_memrealtime s[6:7]
        s_waitcnt lgkmcnt(0)
        s_sub_u32 s6, s6, s4
        s_cmp_lt_i32 s6, 0
        s_cbranch_scc1 L_cal{P}''')
    a('s_endpgm')
```

```python
import sys, math, struct
from asmlib import *
KN = "parallel_sum__spectral_fnet__mixer_gmlp__prompt_kernel"
def f2u(x): return struct.unpack('<I', struct.pack('<f', x))[0]
def H(x): return hex(f2u(x))
Z2 = 0; HH = 0x2C0000; PQ = 0x580000; YY = 0x780000; ST = 0x881000; FLG = 0x8d0000; STAMP = 0x1000000
OOB = 0x40000000
L_STG = 0; L_WO = 73728; L_RING = 65536; L_MISC = 0; L_RED = 32768
NSLOT = 8
SX, SWIN, SWSP, SWOUT, SWS, SOUT, SDBG, SBSP = 8, 12, 16, 20, 24, 28, 32, 36
sR, sG, sW, sA, sB, sP0, sNP, sROT = 40, 41, 42, 43, 44, 45, 46, 47
sXO = 48; sZO = 48; sWO = 56; sSP = 64
sGC = 72; sONE = 74; sLO = 75; sHI = 76; sZST = 77; sHST = 80; sPQST = 83; sSTST = 84; sSTLD = 85
sVAL = 86; sM0W = 88; sM0S = 89; sM0O = 90; sCNT = 91; sMA = 92; sMC = 94; sT = 96
vL16 = 1; vXG = 2; vXW = 4; vXR = 6; vWG = 8; vWR = 11; vSG = 13; vSR = 17; vZS = 21; vHS = 22; vSTA = 23
vTMP = 24; ACC2 = 32; ACC1 = 56; WB = 80; XF = 128; XRAW = 192
LIMIT = 40000
STAGES = [[0,3,6,9,12,15,18,20],[1,4,7,10,13,16,19,21],[2,5,8,11,14,17]]
KORD = STAGES[0]+STAGES[1]+STAGES[2]
def srd(r): return S(r, 4)

PRE = {'a': dict(npk=0, l='W0.W1.W2.W3.W4.W5.W6.W7.G', wgap=64, i0='E0.E1', i1='E2.E3', i2='H.W8', i3='W9', i4='W10', i5='W11', e='W14.W15.S0.S1.S2',
                 i8='S3', i10='', i11='S4', i12='S5.R0', i13='D.S6.R1', i14='R2.S7', i15='R3.K.T', q='S8.R4.S9.R5.S10.R6.S11.R7', d='S12.R8.S13.R9.S14.R10.S15'),
       'b': dict(npk=4, l='E.W0.W1.W2.W3.W4.W5.W6.W7.G', wgap=56, sig1=2, i0='P0', i1='H.P1', i2='p4', i3='', i4='', i5='W8', i6='W9.W10', i7='W11.W12',
                 e='W13.X0.W14.X1.W15.S4.S5', slots='x3333012456012345', i8='p5.P3', i9='C', i10='R4', i11='R5', i12='S6', i13='D.S7', i14='S8', i15='K.T.X2',
                 q='S9.X3.S10.R6.S11.R7.S12.R8', d='S13.R9.S14.R10.S15.R11', rw0=2, rws=1, rbar=14, rc=8),
       }
def gen(cfg):
    cfg = dict(PRE.get(cfg.get('pre', 'a'), {}), **cfg)
    a = Asm()
    stamps = cfg.get('stamps', False)
    vST = 31
    fladdr = lambda r: f'v_mul_u32_u24 v{r}, 260, v0\n v_and_b32 v{r}, 0x3e04, v{r}\n v_or_b32 v{r}, {FLG}, v{r}'
    class St: n = 0
    SETS = {0: list(range(20)),
            1: [0,'xi','ad',1,'x0','x1',2,'g0','g2','g4','g6',3,4,'g10','g12','g14',5,6,18,19]}
    SET = SETS[cfg.get('set', 0)]
    def stamp(a, k):
        if not stamps or k not in SET: return
        k = SET.index(k)
        b = a.in_bg; a.in_bg = True
        if k > 0:
            if cfg.get('set', 0): a.raw('    s_waitcnt lgkmcnt(0)'); a.lg_done = a.lg_n
            a(f'v_writelane_b32 v{vST}, s100, {k-1}')
        a('s_memtime s[100:101]' if stamps == 2 else 's_memrealtime s[100:101]')
        a.in_bg = b
    def retry(a, back, out):
        a(f's_add_u32 s{sCNT}, s{sCNT}, 1\n s_cmp_gt_u32 s{sCNT}, {LIMIT}\n s_cbranch_scc1 {out}\n s_branch {back}')
    a('s_cmp_ge_u32 s2, 256\n s_cbranch_scc1 L_end')
    for r, off in ((SX,0),(SWIN,48),(SWS,96),(SWSP,56),(SWOUT,72),(SDBG,88),(SBSP,64),(SOUT,80)):
        a(f's_load_dwordx2 {S(r,2)}, s[0:1], {off}')
    stamp(a, 0)
    def code_pf(a):
        a(f"""s_getpc_b64 s[4:5]
        s_lshl_b32 s6, s2, 9
        s_and_b32 s6, s6, 0xf000
        v_lshl_add_u32 v27, v0, 4, s6
        v_min_u32 v27, L_codeend-{KN}-1024, v27
        global_load_dwordx4 v[124:127], v27, s[4:5]""")
    if cfg.get('pf0', 1): code_pf(a)
    a(f"""v_lshrrev_b32 v25, 6, v0
    s_lshr_b32 s3, s2, 3
    v_readfirstlane_b32 s{sW}, v25""")
    if cfg.get('map', '2d') == 'row':
        a(f"""s_and_b32 s{sR}, s2, 7
        s_lshl_b32 s{sR}, s{sR}, 2
        s_and_b32 s6, s3, 3
        s_add_u32 s{sR}, s{sR}, s6
        s_lshr_b32 s{sG}, s2, 5
        s_lshl_b32 s6, s6, 1
        s_add_u32 s{sROT}, s{sG}, s6""")
    else:
        a(f"""s_and_b32 s{sR}, s2, 3
        s_lshl_b32 s{sR}, s{sR}, 3
        s_and_b32 s6, s3, 7
        s_add_u32 s{sR}, s{sR}, s6
        s_lshr_b32 s7, s3, 3
        s_xor_b32 s7, s7, {3 if cfg.get('bf', 1) else 0}
        s_and_b32 s{sG}, s2, 4
        s_add_u32 s{sG}, s{sG}, s7
        s_lshl_b32 s7, s7, 1
        s_add_u32 s{sROT}, s7, s6""")
    a(f"""s_lshr_b32 s{sA}, s{sW}, 1
    s_and_b32 s{sB}, s{sW}, 1
    s_mov_b32 s{SX+2}, 2097152
    s_mov_b32 s{SX+3}, 0x00020000
    v_bfe_u32 v24, v0, 3, 3
    v_and_b32 v25, 7, v0
    s_lshl_b32 s5, s{sR}, 1
    s_add_u32 s5, s5, s{sA}
    s_lshl_b32 s5, s5, 1
    s_and_b32 s6, s{sG}, 1
    s_add_u32 s5, s5, s6
    s_lshl_b32 s5, s5, 2
    s_add_u32 s5, s5, s{sB}
    s_lshl_b32 s5, s5, 12
    v_and_b32 v26, 4, v24
    v_add_u32 v26, v26, v24
    v_lshl_add_u32 v27, v26, 10, s5
    v_lshl_add_u32 v{vXG}, v25, 4, v27
    v_xor_b32 v{vXG+1}, 0x4000, v{vXG}
    s_lshl_b32 s7, s{sROT}, 7
    s_movk_i32 s6, 0x380""")
    for i in range(8):
        a(f's_and_b32 s{sSP+i}, s7, s6')
        if i < 7: a(f's_addk_i32 s7, 128')
    a('s_waitcnt lgkmcnt(0)')
    stamp(a, 'ka')
    if 'probe' in cfg:
        pb = cfg['probe']; rr = SWS if pb[0] in 'ws' else SWSP
        a(f's_mov_b32 s{rr+2}, {0x10000000 if rr == SWS else 8388608}\n s_mov_b32 s{rr+3}, 0x00020000\n s_lshl_b32 s5, s2, 15\n v_lshlrev_b32 v28, 4, v0')
        if rr == SWS: a(f's_add_u32 s5, s5, {cfg.get("po", 32) << 20}')
        for i in range(8):
            a(f'buffer_{"store" if pb[0] == "s" else "load"}_dwordx4 {V(64+4*i,4)}, v28, {srd(rr)}, s5 offen' + (' sc1' if pb[0] == 's' else '') + (' nt' if 'n' in pb else '') + '\n s_add_u32 s5, s5, 4096')
        a.waitall(); stamp(a, 'xi')
    xt = {}; NT = str(cfg.get('nt', ''))
    def x_issue(a, n):
        rs, i = divmod(n, 8)
        xt[rs, i] = a.one(f'buffer_load_dwordx4 {V(XRAW+rs*32+i*4,4)}, v{vXG+rs}, {srd(SX)}, s{sSP+i} offen' + (' nt' if 'x' in NT else ''))
    NX0 = cfg.get('nx0', 10)
    for n in range(NX0): x_issue(a, n)
    a(f"""s_or_b32 s5, s2, s{sW}
    s_cselect_b32 s{sCNT}, {OOB}, 0
    s_mov_b32 s{SWS+2}, 0x10000000
    s_mov_b32 s{SWS+3}, 0x00020000
    {fladdr(28)}
    v_mov_b32 v29, 0""")
    a.tok['lead'] = a.one(f'buffer_store_dword v29, v28, {srd(SWS)}, s{sCNT} offen sc1')
    if not cfg.get('pf0', 1): code_pf(a)
    a(f"""v_and_b32 v0, 63, v0
    v_lshlrev_b32 v{vL16}, 4, v0""")
    if cfg.get('xw'): a.wait(vm=xt[0, cfg['xw']-1])
    if 'probe' not in cfg: stamp(a, 'xi')
    a(f"""s_mul_i32 s{sP0}, s{sG}, 3
    s_min_u32 s{sP0}, s{sP0}, 20
    s_cmp_ge_u32 s{sG}, 6
    s_cselect_b32 s{sNP}, 2, 3""")
    for i in range(8): a(f's_mul_i32 s{sWO+i}, s{sSP+i}, 1376')
    a(f"""s_mul_i32 s3, s{sW}, {16*2752}
    s_lshl_b32 s7, s{sP0}, 6
    s_add_u32 s3, s3, s7
    s_add_u32 s3, s3, 1376
    s_movk_i32 s7, 2752""")
    for p in range(3):
        a(f"""v_add_u32 v32, {64*p}, v0
        v_mul_u32_u24 v33, 171, v32
        v_lshrrev_b32 v33, 11, v33
        v_mul_u32_u24 v34, 12, v33
        v_sub_u32 v32, v32, v34
        v_lshrrev_b32 v34, 2, v33
        v_and_b32 v34, 2, v34
        v_xor_b32 v32, v32, v34
        v_lshl_add_u32 v32, v32, 4, s3
        v_mad_u32_u24 v{vWG+p}, v33, s7, v32""")
        if p < 2: a(f's_sub_u32 s3, s3, 1024')
    a(f"""s_mul_i32 s{sM0W}, s{sW}, 3072
    s_add_u32 s{sM0W}, s{sM0W}, {L_RING}""")
    wt = {}
    def w_issue(a, k, p):
        if k == 8 : a(f'v_subrev_u32 v{vWG+p}, 1376, v{vWG+p}')
        a.tok['wn', k] = p
        if k >= 8: assert a.tok.get('b2' if k < 11 else 'b5' if k < 14 else 'b7') and a.tok['wn', k-1] == 2
        wt[k] = a.dma((f's{sM0W}', (k % NSLOT)*12288), f'buffer_load_dwordx4 v{vWG+p}, {srd(SWIN)}, s{sWO+k%8} offen offset:{1024*p}' + (' nt' if 'w' in NT else '') + ' lds')
    for r, n in ((SWIN,1409024),(SWSP,8388608),(SWOUT,704512),(SOUT,2097152),(SDBG,256),(SBSP,4096)):
        a(f's_mov_b32 s{r+2}, {n}\n s_mov_b32 s{r+3}, 0x00020000')
    a(f"""v_and_b32 v27, 15, v0
    v_lshrrev_b32 v32, 4, v0
    v_lshrrev_b32 v33, 1, v32
    v_and_b32 v34, 1, v32
    s_lshl_b32 s3, s{sA}, 11
    s_lshl_b32 s7, s{sB}, 8
    s_add_u32 s7, s7, s3
    v_lshl_add_u32 v35, v27, 4, s7
    v_lshl_add_u32 v35, v33, 10, v35
    v_lshl_add_u32 v{vZS}, v34, 9, v35
    s_lshl_b32 s7, s{sB}, 9
    s_add_u32 s7, s7, s3
    v_lshl_add_u32 v35, v27, 4, s7
    v_lshl_add_u32 v35, v34, 10, v35
    v_lshl_add_u32 v{vHS}, v33, 8, v35
    v_lshlrev_b32 v35, 4, v27
    v_lshl_add_u32 v{vSTA}, v32, 2, v35
    s_lshl_b32 s3, s{sR}, 12
    s_mul_i32 s7, s{sR}, 90112
    s_lshl_b32 s{sT+1}, s{sP0}, 17
    s_add_u32 s{sZST}, s{sT+1}, s3
    s_add_u32 s{sZST+1}, s{sZST}, {1<<17}
    s_add_u32 s{sZST+2}, s{sZST}, {2<<17}
    s_lshl_b32 s{sT+1}, s{sP0}, 12
    s_add_u32 s{sT+1}, s{sT+1}, s7
    s_add_u32 s{sHST}, s{sT+1}, {HH}
    s_add_u32 s{sHST+1}, s{sT+1}, {HH+4096}
    s_add_u32 s{sHST+2}, s{sT+1}, {HH+8192}""")
    a(f"""s_cmp_eq_u32 s{sNP}, 2
    s_cselect_b32 s{sZST+2}, {OOB}, s{sZST+2}
    s_cselect_b32 s{sHST+2}, {OOB}, s{sHST+2}
    s_cselect_b32 s{sVAL+1}, 0, 1.0
    s_lshl_b32 s{sT}, s{sG}, 1
    s_add_u32 s{sT}, s{sT}, s{sB}
    s_cmp_eq_u32 s{sT}, 15
    s_cselect_b32 s{sVAL}, 0, 1.0
    s_lshl_b32 s{sT+1}, s{sT}, 17
    s_add_u32 s{sT+1}, s{sT+1}, s3
    s_lshl_b32 s{sT+2}, s{sA}, 11
    s_add_u32 s{sT+1}, s{sT+1}, s{sT+2}
    s_add_u32 s{sPQST}, s{sT+1}, {PQ}
    s_lshl_b32 s{sT+1}, s{sR}, 1
    s_add_u32 s{sT+1}, s{sT+1}, s{sA}
    s_lshl_b32 s{sT+1}, s{sT+1}, 12
    s_add_u32 s{sSTLD}, s{sT+1}, {ST}
    s_lshl_b32 s{sT+1}, s{sT}, 8
    s_add_u32 s{sSTST}, s{sSTLD}, s{sT+1}""")
    sYST = sT+3
    a(f"""s_lshl_b32 s4, s{sR}, 3
    s_add_u32 s4, s4, s{sG}
    s_lshl_b32 s3, s4, 2
    s_add_u32 s3, s3, s{sW}
    s_lshl_b32 s3, s3, 10
    s_add_u32 s{sYST}, s3, {YY}
    s_lshl_b32 s4, s{sR}, 9
    s_add_u32 s4, s4, s{sG}
    s_cmp_eq_u32 s{sW}, 0
    s_cselect_b32 s4, s4, {OOB}""")
    stamp(a, 'su')
    def clr_ops(M1, names):
        ops = []
        m = V(M1, 4)
        for nm in names:
            if nm == 's': ops.append(f'buffer_store_dword v{M1}, v{vSTA}, {srd(SWS)}, s{sSTST} offen sc1')
            if nm == 'z': ops += [f'buffer_store_dwordx4 {m}, v{vZS}, {srd(SWS)}, s{sZST+j} offen sc1' for j in range(3)]
            if nm == 'h': ops += [f'buffer_store_dwordx4 {m}, v{vHS}, {srd(SWS)}, s{sHST+j} offen sc1' for j in range(3)]
            if nm == 'y': ops.append(f'buffer_store_dwordx4 {m}, v{vL16}, {srd(SWS)}, s{sYST} offen sc1')
        return ops
    a(f"""v_xor_b32 v33, v24, v25
    v_and_b32 v34, 3, v25
    v_lshl_add_u32 v33, v34, 4, v33
    v_lshrrev_b32 v34, 2, v25
    v_lshlrev_b32 v34, 12, v34
    v_lshl_add_u32 v33, v33, 4, v34
    s_and_b32 s3, s{sG}, 1
    s_lshl_b32 s3, s3, 7
    s_lshl_b32 s7, s{sW}, 10
    s_add_u32 s3, s3, s7
    v_add_u32 v{vXW}, s3, v33
    v_xor_b32 v{vXW+1}, 0x80, v{vXW}
    s_add_u32 s{sM0O}, s7, {L_WO}
    s_lshl_b32 s5, s7, 2
    s_add_u32 s{sM0S}, s5, {L_STG}
    v_xor_b32 v33, v27, v32
    v_lshl_add_u32 v33, v32, 4, v33
    s_lshl_b32 s3, s{sA}, 11
    v_lshl_add_u32 v{vXR}, v33, 4, s3
    v_xor_b32 v{vXR+1}, 64, v{vXR}
    v_bfe_u32 v33, v0, 2, 2
    v_lshl_add_u32 v33, v32, 3, v33
    v_mul_u32_u24 v33, 192, v33
    v_and_b32 v34, 1, v32
    v_xor_b32 v34, s{sB}, v34
    v_lshl_add_u32 v33, v34, 5, v33
    v_and_b32 v34, 3, v0
    v_lshl_add_u32 v33, v34, 3, v33
    v_add_u32 v{vWR}, {L_RING}, v33
    v_add_u32 v{vWR+1}, {L_RING+4*12288}, v33
    s_lshl_b32 s3, s{sR}, 18
    s_add_u32 s3, s3, s7
    v_lshrrev_b32 v33, 1, v24
    v_xor_b32 v33, v33, v25
    v_lshl_add_u32 v33, v33, 4, s3
    v_lshl_add_u32 v{vSG}, v26, 12, v33
    v_xor_b32 v33, 64, v{vSG}
    v_add_u32 v{vSG+1}, {16*4096-1024}, v33
    v_add_u32 v{vSG+2}, {4*4096-2048}, v{vSG}
    v_add_u32 v{vSG+3}, {20*4096-3072}, v33
    v_and_b32 v33, 31, v0
    v_bfe_u32 v34, v0, 1, 3
    v_lshrrev_b32 v35, 5, v0
    v_xor_b32 v34, v34, v35
    v_lshlrev_b32 v34, 4, v34
    v_lshl_add_u32 v33, v33, 7, v34
    v_add_u32 v{vSR}, s{sM0S}, v33
    v_xor_b32 v{vSR+1}, 32, v{vSR}
    v_xor_b32 v{vSR+2}, 64, v{vSR}
    v_xor_b32 v{vSR+3}, 0x60, v{vSR}""")
    c0 = -2.0*math.sqrt(2.0/math.pi)*math.log2(math.e)
    a(f"""s_mov_b32 s{sGC}, {H(c0*0.044715)}
    s_mov_b32 s{sGC+1}, {H(c0)}
    s_mov_b32 s{sONE}, 0x3f803f80
    s_mov_b32 s{sLO}, 0x00003f80
    s_mov_b32 s{sHI}, 0x3f800000
    s_mov_b32 s{sMA}, 0xaaaaaaaa
    s_mov_b32 s{sMA+1}, 0xaaaaaaaa
    s_mov_b32 s{sMC}, 0xcccccccc
    s_mov_b32 s{sMC+1}, 0xcccccccc""")
    a(f"""s_add_u32 s{sT+1}, s{sP0}, s{sNP}
    s_sub_u32 s{sT+1}, s{sT+1}, 1
    s_lshl_b32 s{sT+1}, s{sT+1}, 17
    s_lshl_b32 s3, s{sW}, 15
    s_add_u32 s{sT+1}, s{sT+1}, s3
    s_lshl_b32 s6, s{sP0}, 17
    s_add_u32 s6, s6, s3
    s_lshl_b32 s{sT+2}, s{sG}, 7""")
    for i in range(8): a(f's_lshl_b32 s{sZO+i}, s{sSP+i}, 5\n s_add_u32 s{sZO+i}, s{sZO+i}, s6')
    M1 = 64
    for i in range(4): a(f'v_mov_b32 v{M1+i}, -1')
    a(f"""s_and_b32 s3, s{sG}, 1
    s_lshl_b32 s3, s3, 5
    s_lshl_b32 s7, s{sW}, 6
    s_add_u32 s3, s3, s7
    v_lshl_add_u32 v30, v24, 2, s3
    v_xor_b32 v26, 32, v30""")
    stamp(a, 'ad')
    for n in range(NX0, 16): x_issue(a, n)
    vR1A, vR1B = vXG, vXG+1
    a(f"""s_lshl_b32 s3, s{sA}, 7
    v_lshl_add_u32 v{vR1A}, v32, 4, s3
    v_lshl_add_u32 v{vR1B}, v27, 2, s3""")
    def W(k): return [(lambda a, p=p: w_issue(a, k, p)) for p in range(3)]
    def bgset(a, ops, gap, delay=0):
        a.bg = [o if isinstance(o, tuple) else (o, gap) for o in ops]; a.bg_i = 0; a.bg_next = a.t + delay; a.bg_on = True
    def bgend(a): a.bg_flush(); a.bg_on = False
    clr = [(lambda a, t=t: a.tok.__setitem__('clr', a.one(t))) for t in clr_ops(M1, cfg.get('ce', 'sz'))]
    ORD = {0: [0,1,8,9,2,4,6,3,5,7,10,12,14,11,13,15], 1: list(range(16)), 2: [0,1,8,9,2,3,10,11,4,5,12,13,6,7,14,15],
           3: [0,8,1,9,2,10,3,11,4,12,5,13,6,14,7,15]}[cfg.get('ord', 0)]
    NPK = cfg.get('npk', 4)
    SPSLOT = [int(c) for c in str(cfg.get('slots', 'x3333012301456230' if NPK == 4 else 'x3301230145623012' if NPK == 2 else 'x0123456012345601'))[1:]]
    AQ = lambda k, q: ((k % 8)*4+q)*8 + (k//8)*4
    def PK_(n):
        k = ORD[n]
        def mk(p):
            def f(a):
                b = a.in_bg; a.in_bg = True
                if k >= 8: a(f's_add_u32 s5, s{sSP+k%8}, 0x20000')
                a.tok['pk', n] = a.one(f'buffer_load_dwordx4 {A(AQ(k,p),4)}, v{vSG+p}, {srd(SWSP)}, s{5 if k >= 8 else sSP+k} offen offset:{1024*p}' + (' nt' if 'p' in NT else ''))
                a.in_bg = b; a.tok['pkn', n] = p
            return f
        return [mk(p) for p in range(4)]
    def XP(n):
        k = ORD[n]
        def mk(h):
            def f(a):
                assert a.tok['pkn', n] == 3 and a.tok.get('b7')
                a.wait(vm=a.tok['pk', n])
                if not a.tok.get('xpa'): a(f'v_add_u32 v{vXW+1}, s{sM0S}, v{vL16}'); a.tok['xpa'] = True
                for q in (2*h, 2*h+1): a(f'ds_write_b128 v{vXW+1}, {A(AQ(k,q),4)} offset:{SPSLOT[n]*16384+1024*q}')
                if h: a.tok['sdn', n] = 3; a.tok['sd', n] = 0
            return (f, 16)
        return [mk(0), mk(1)] + RD(n)
    vSR2 = [vWG, vWG+1, vWG+2, vXW]
    def SP(n):
        k = ORD[n]; prev = [j for j in range(n) if SPSLOT[j] == SPSLOT[n]]
        def mk(p):
            def f(a):
                def pre(a):
                    if p == 0 and prev:
                        assert a.tok['srn', prev[-1]] == 1
                        a.wait(lg=a.tok['sr', prev[-1]])
                    if k >= 8: a(f's_add_u32 s5, s{sSP+k%8}, 0x20000')
                assert a.tok.get('b11' if SPSLOT[n] >= 4 else 'b7')
                a.tok['sd', n] = a.dma((f's{sM0S}', SPSLOT[n]*16384), f'buffer_load_dwordx4 v{vSG+p}, {srd(SWSP)}, s{5 if k >= 8 else sSP+k} offen offset:{1024*p}' + (' nt' if 's' in NT or ('p' in NT and n < cfg.get('nown', 4)) else '') + ' lds', pre)
                a.tok['sdn', n] = p
            return f
        return [mk(p) for p in range(4)]
    def RD(n):
        k = ORD[n]
        def mk(h):
            def f(a):
                assert a.tok['sdn', n] == 3
                if n == 15: assert a.tok.get('r1done')
                a.wait(vm=a.tok['sd', n])
                for q in (2*h, 2*h+1):
                    r = ((k % 8)*4+q)*8 + (k//8)*4; sl = SPSLOT[n]
                    a.tok['sr', n] = a.one(f'ds_read_b128 {A(r,4)}, v{vSR+q if sl < 4 else vSR2[q]} offset:{(sl % 4)*16384}')
                a.tok['srn', n] = h
            return (f, 8)
        return [mk(0), mk(1)]
    assert ORD[15] == 15
    aR1A = (228, 236); aR1B = 244
    vOG = vXR; vPR = vXR+1
    NEARLY = cfg.get('nearly', 12)
    def wo_issue(a, k):
        a.tok['wo', k] = a.dma((f's{sM0O}', ((k+10) % 22)*4096), f'buffer_load_dwordx4 v{vOG}, {srd(SWOUT)}, s5 offen lds',
                               lambda a: a(f's_add_u32 s5, s{sT+2}, {KORD[k]*32768}'))
    WO = lambda k: [lambda a: wo_issue(a, k)]
    SL = WB
    def st_load(j):
        def f(a):
            assert a.tok.get('dbgok')
            a.tok['st'] = a.one(f'buffer_load_dwordx4 {V(SL+4*j,4)}, v{vL16}, {srd(SWS)}, s{sSTLD} offen offset:{1024*j} sc1')
        return f
    def st_loads(a):
        for j in range(4): st_load(j)(a)
    def dbg_load(a):
        a(fladdr(vXG))
        a.tok['dbg'] = a.one(f'buffer_load_dword v{vXG+1}, v{vXG}, {srd(SWS)}, 0 offen sc1')
    def dbg_chk(a):
        a.wait(vm=a.tok['dbg'])
        a.label('L_dbg_chk')
        a(f'v_and_b32 v{vXG+1}, 0x01010101, v{vXG+1}\n v_cmp_ne_u32 vcc, 0x01010101, v{vXG+1}\n s_cbranch_vccnz L_dbg_retry')
        a.label('L_dbg_ok'); a.tok['dbgok'] = True
    def rdy_load(a): a.tok['rdy'] = a.one(f'buffer_load_dword v27, off, {srd(SDBG)}, 0 sc1')
    def rdy_chk(a):
        a.wait(vm=a.tok['rdy'])
        a.label('L_rdy_chk')
        a('v_cmp_ne_u32 vcc, 1, v27\n s_cbranch_vccnz L_rdy_retry')
        a.label('L_rdy_ok'); a.tok['rdyok'] = True
    clr2 = [(lambda a, t=t: a(t)) for t in clr_ops(24, cfg.get('cl', 'hy'))]
    used = []
    def SCH(key, dflt):
        ops = []
        for t in str(cfg.get(key, dflt)).split('.'):
            if t in ('', '-'): continue
            used.append(t); c = t[0]; n = int(t[1:]) if len(t) > 1 else None
            ops += {'W': lambda: W(n), 'S': lambda: SP(n), 'R': lambda: RD(n), 'O': lambda: WO(n), 'C': lambda: clr2, 'E': lambda: clr if n is None else [clr[n]], 'P': lambda: PK_(n), 'X': lambda: XP(n),
                    'p': lambda: PK_(n//2)[2*(n%2):2*(n%2)+2], 'D': lambda: [dbg_load],
                    'K': lambda: [dbg_chk], 'G': lambda: [rdy_load], 'H': lambda: [rdy_chk], 'T': lambda: [(st_load(j), 24) for j in range(4)], 'N': lambda: [lambda a: None]}[c]()
        return ops
    bgset(a, SCH('l', 'W0.W1.W2.W3.W4.W5.W6.W7.P0'), cfg.get('wgap', 56), cfg.get('w0', 20))
    stamp(a, 1)
    def red8(a, r):
        a(f'''v_add_f32_dpp v{r}, v{r}, v{r} quad_perm:[1,0,3,2] row_mask:0xf bank_mask:0xf
        v_add_f32_dpp v{r}, v{r}, v{r} quad_perm:[2,3,0,1] row_mask:0xf bank_mask:0xf
        v_add_f32_dpp v{r}, v{r}, v{r} row_half_mirror row_mask:0xf bank_mask:0xf''')
    for rs in range(2):
        a.cmt(f'LN rowset {rs}')
        X = XRAW + rs*32
        a('v_mov_b32 v35, 0\n v_mov_b32 v36, 0')
        for i in range(8):
            if i % 2 == 0: a.wait(vm=xt[rs, i+1])
            for k in range(4): a(f'v_dot2c_f32_bf16 v35, s{sONE}, v{X+4*i+k}')
        stamp(a, f'x{rs}')
        red8(a, 35)
        a(f'v_mul_f32 v35, {H(-1/512)}, v35')
        if rs == 0:
            a.wait(vm=a.tok['lead'])
            b = a.in_bg; a.in_bg = True
            a(f'v_mov_b32 v29, 1\n buffer_store_dword v29, off, {srd(SDBG)}, s{sCNT} sc1\n s_mov_b32 s{sCNT}, 0'); a.in_bg = b
        for i in range(9):
            if i < 8:
                for k in range(4):
                    t = 40 + (i % 2)*8 + 2*k
                    a(f'v_dot2_f32_bf16 v{t}, v{X+4*i+k}, s{sLO}, v35\n v_dot2_f32_bf16 v{t+1}, v{X+4*i+k}, s{sHI}, v35')
            if i > 0:
                j = i-1
                for k in range(4):
                    t = 40 + (j % 2)*8 + 2*k
                    a(f'v_cvt_pk_bf16_f32 v{X+4*j+k}, v{t}, v{t+1}')
                a(f'ds_write_b128 v{vXW+rs}, {V(X+4*j,4)} offset:{8192*j}')
        def sq_tail(a, k0, k1, rs=rs, X=X):
            for k in range(k0, k1): a(f'v_dot2c_f32_bf16 v36, v{X+k}, v{X+k}')
            if k1 < 32: return
            red8(a, 36)
            a(f"""v_mov_b32 v37, {H(1e-5)}
            v_fmac_f32 v37, {H(1/512)}, v36
            v_rsq_f32 v{28+rs}, v37""")
        SQ = cfg.get('sq', 16)
        sq_tail(a, 0, SQ if rs else 32)
    bgend(a)
    stamp(a, 2)
    def w_reads(k):
        ops = []
        sl = k % NSLOT; ar = vWR + (sl >= 4); base = (sl % 4)*12288
        for sg in range(2):
            if k < 8:
                for mt in range(2):
                    s_ = 2*k+sg
                    ops.append(f'ds_read_b128 {V(XF+(s_*2+mt)*4,4)}, v{vXR+sg} offset:{s_*4096+mt*1024}')
            for j in range(3):
                for u in range(2):
                    ops.append(f'ds_read_b64_tr_b16 {V(WB+(k%2)*24+(sg*3+j)*4+2*u,2)}, v{ar} offset:{base+sg*6144+u*768+j*64}')
        return ops
    SIG1 = cfg.get('sig1', 7)
    BAR = {2: 5, 5: 7, 7: None, 11: 15, 15: None}
    def run(a, f): (f[0] if isinstance(f, tuple) else f)(a)
    def gemm_iter(a, k, late=()):
        a.cmt(f'gemm iter {k}')
        if BAR.get(k) is not None: assert a.tok['wn', BAR[k]] == 2
        a.wait(vm=max(a.tok['clr'] if k == SIG1 else 0, wt[BAR[k]] if BAR.get(k) is not None else 0), lg=a.tok['wr', k])
        if k in BAR: a('s_barrier'); a.tok[f'b{k}'] = True
        stamp(a, f'g{k}')
        fill = [(lambda a, t=t: a.tok.__setitem__(('wr', k+1), a.one(t))) for t in (w_reads(k+1) if k not in (7, 15) else [])]
        late = list(late)
        for sg in range(2):
            for j in range(3):
                for mt in range(2):
                    x = V(XF+(((2*k+sg) % 16)*2+mt)*4, 4); w = V(WB+(k%2)*24+(sg*3+j)*4, 4)
                    acc = V((ACC2 if k < 8 else ACC1)+(j*2+mt)*4, 4)
                    c = '0' if (k % 8 == 0 and sg == 0) else acc
                    a(f'v_mfma_f32_16x16x32_bf16 {acc}, {x}, {w}, {c}' if k < 8 else f'v_mfma_f32_16x16x32_bf16 {acc}, {w}, {x}, {c}')
                    if fill:
                        for _ in range(2):
                            if fill: fill.pop(0)(a)
                    elif late: run(a, late.pop(0))
        for f in late: run(a, f)
    def T2(text):
        L = [l.strip() for l in text.strip().split('\n')]
        return [(lambda a, t='\n'.join(L[i:i+2]): a(t)) for i in range(0, len(L), 2)]
    a.wait(vm=wt[2], lg=a.lg_n)
    a('s_barrier')
    for t in w_reads(0): a.tok['wr', 0] = a.one(t)
    if SQ < 32: sq_tail(a, SQ, 32)
    def dbg_store(a, val=1, t=24):
        assert a.tok.get('rdyok')
        a(f"""v_mov_b32 v{t}, {val}
        v_mov_b32 v{t+1}, {FLG}
        buffer_store_byte v{t}, v{t+1}, {srd(SWS)}, s4 offen sc1""")
    ZD = {0: 'P1', 1: 'E', 2: 'W8.p4', 3: 'W9.p5', 4: 'W10.p6', 5: 'W11.p7', 6: 'W12', 7: 'W13',
          8: 'R4.S7', 9: '' if 'cp2' in cfg else 'C', 10: 'R5.S8', 11: 'R6.S9', 12: 'S10.R7', 13: 'D.S11.R8', 14: 'S12.R9', 15: 'K.T'}
    misc1 = T2(f"""v_lshrrev_b32 v24, 3, v0
        v_bfe_u32 v25, v0, 4, 1
        s_lshl_b32 s3, s{sB}, 1
        v_add_u32 v25, s3, v25
        v_lshlrev_b32 v25, 1, v25
        v_and_b32 v30, 7, v0
        v_xor_b32 v25, v25, v30
        v_lshlrev_b32 v25, 4, v25
        s_lshl_b32 s3, s{sW}, 13
        v_lshl_add_u32 v25, v24, 10, v25
        v_add_u32 v{vOG}, s3, v25""")
    for k in range(8):
        late = SCH(f'i{k}', ZD[k])
        if k == 2: late = [lambda a: a('ds_write_b32 v30, v28\n ds_write_b32 v26, v29')] + late
        if k == 5:
            def r1r(a):
                for mt in range(2):
                    a(f'''ds_read_b128 {V(ACC1+4*mt,4)}, v{vR1A} offset:{64*mt}
                    ds_read_b128 {A(aR1A[mt],4)}, v{vR1A} offset:{64*mt}
                    ds_read_b32 a{aR1B+mt}, v{vR1B} offset:{64*mt}''')
            late = [r1r] + late
        if k == 7:
            x = list(misc1); y = late; late = []
            while x or y:
                if x: late.append(x.pop(0))
                if y: late.append(y.pop(0))
        if SIG1 == k: late = [lambda a: dbg_store(a, 1, 24 if k < 7 else vXG)] + late
        gemm_iter(a, k, late)
    stamp(a, 3)
    GAP = cfg.get('gap', 56)
    bgset(a, SCH('e', 'W14.X0.W15.X1.S4.X2.S5.X3.S6'), cfg.get('egap', 52))
    def gelu_tile(a, acc, tmp, rop):
        for p in range(4): a(f'v_pk_mul_f32 {V(acc+2*p,2)}, {V(acc+2*p,2)}, {rop(p)}')
        for p in range(4): a(f'v_pk_mul_f32 {V(tmp+2*p,2)}, {V(acc+2*p,2)}, {V(acc+2*p,2)}')
        for p in range(4): a(f'v_pk_fma_f32 {V(tmp+2*p,2)}, {V(tmp+2*p,2)}, {S(sGC,2)}, {S(sGC,2)} op_sel:[0,0,1] op_sel_hi:[1,0,1]')
        for p in range(4): a(f'v_pk_mul_f32 {V(tmp+2*p,2)}, {V(tmp+2*p,2)}, {V(acc+2*p,2)}')
        for p in range(8): a(f'v_exp_f32 v{tmp+p}, v{tmp+p}')
        for p in range(4): a(f'v_pk_add_f32 {V(tmp+2*p,2)}, {V(tmp+2*p,2)}, 1.0 op_sel_hi:[1,0]')
        for p in range(8): a(f'v_rcp_f32 v{tmp+p}, v{tmp+p}')
        for p in range(4): a(f'v_pk_mul_f32 {V(acc+2*p,2)}, {V(acc+2*p,2)}, {V(tmp+2*p,2)}')
    TM = WB+24; SS = ACC1+8; QQ = ACC1+16
    def b8(a):
        on = a.bg_on; a.bg_on = False
        while a.tok.get(('wn', 13)) != 2: a.bg_step()
        a.wait(vm=wt[13]); a('s_barrier')
        if SIG1 == 8: assert a.tok['clr'] <= a.vm_done; dbg_store(a, 1, vXG)
        for t in w_reads(8): a.tok['wr', 8] = a.one(t)
        a.bg_on = on
    for j in range(3):
        if j:
            for p in range(4): a(f'v_pk_mul_f32 {V(ACC1+2*p,2)}, {V(ACC1+2*p,2)}, {S(sVAL,2)} op_sel:[0,{j-1}] op_sel_hi:[1,{j-1}]')
        y = ACC2+8*j
        gelu_tile(a, y, TM, lambda p: V(ACC1+2*p, 2))
        for p in range(4):
            if j == 0: a(f'v_pk_mul_f32 {V(QQ+2*p,2)}, {V(y+2*p,2)}, {V(y+2*p,2)}')
            else: a(f'v_pk_fma_f32 {V(QQ+2*p,2)}, {V(y+2*p,2)}, {V(y+2*p,2)}, {V(QQ+2*p,2)}')
            if j == 1: a(f'v_pk_add_f32 {V(SS+2*p,2)}, {V(y+2*p,2)}, {V(ACC2+2*p,2)}')
            if j == 2: a(f'v_pk_add_f32 {V(SS+2*p,2)}, {V(y+2*p,2)}, {V(SS+2*p,2)}')
    if cfg.get('b8', 0) == 0: b8(a)
    for i in range(8): a(f'v_add_f32_dpp v{SS+i}, v{SS+i}, v{SS+i} row_ror:8 row_mask:0xf bank_mask:0x3')
    for i in range(8): a(f'v_add_f32_dpp v{SS+i}, v{QQ+i}, v{QQ+i} row_ror:8 row_mask:0xf bank_mask:0xc')
    for i in range(4): a(f'v_add_f32_dpp v{SS+i}, v{SS+i}, v{SS+i} row_half_mirror row_mask:0xf bank_mask:0x5')
    for i in range(4): a(f'v_add_f32_dpp v{SS+i}, v{SS+4+i}, v{SS+4+i} row_half_mirror row_mask:0xf bank_mask:0xa')
    for i in range(4): a(f'v_add_f32_dpp v{SS+i}, v{SS+i}, v{SS+i} quad_perm:[1,0,3,2] row_mask:0xf bank_mask:0xf')
    for i in range(4): a(f'v_add_f32_dpp v{SS+i}, v{SS+i}, v{SS+i} quad_perm:[2,3,0,1] row_mask:0xf bank_mask:0xf')
    a(f"""v_cndmask_b32 v{SS}, v{SS}, v{SS+1}, {S(sMA,2)}
    v_cndmask_b32 v{SS+2}, v{SS+2}, v{SS+3}, {S(sMA,2)}
    v_cndmask_b32 v26, v{SS}, v{SS+2}, {S(sMC,2)}""")
    left = a.bg[a.bg_i:]; a.bg_on = False
    if cfg.get('eflush', 1):
        for f in left: run(a, f)
        left = []
    a(f'buffer_store_dword v26, v{vSTA}, {srd(SWS)}, s{sSTST} offen sc1')
    if cfg.get('b8', 0) == 1: b8(a)
    for i in range(4): a(f'v_mov_b32 v{24+i}, -1')
    stamp(a, 4)
    vBS = 28
    misc2 = T2(f"""v_and_b32 v28, 12, v0
        v_and_b32 v29, 15, v0
        v_add_u32 v28, v28, v29
        v_lshlrev_b32 v30, 1, v28
        s_lshl_b32 s3, s{sR}, 7
        s_lshl_b32 s7, s{sA}, 6
        s_add_u32 s3, s3, s7
        buffer_load_short_d16_hi v{vBS}, v30, {srd(SBSP)}, s3 offen
        buffer_load_short_d16_hi v{vBS+1}, v30, {srd(SBSP)}, s3 offen offset:8""")
    misc3 = T2(f"""v_lshrrev_b32 v24, 2, v0
        v_lshlrev_b32 v24, 11, v24
        v_bfe_u32 v25, v0, 1, 1
        v_lshl_add_u32 v{vPR}, v25, 8, v24""")
    sr2 = T2('\n'.join(f'v_add_u32 v{vSR2[q]}, 0x10000, v{vSR+q}' for q in range(4)))
    r1b = lambda a: a(f'v_accvgpr_read_b32 v26, a{aR1B}\n v_accvgpr_read_b32 v27, a{aR1B+1}')
    ZX = {8: left, 11: [], 12: sr2, 13: misc3, 14: misc2, 15: [r1b]}
    for k in range(8, 16):
        x = ZX.get(k, []); y = SCH(f'i{k}', ZD[k]); late = []
        while x or y:
            if y: late.append(y.pop(0))
            if x: late.append(x.pop(0))
        gemm_iter(a, k, late)
    stamp(a, 5)
    bgset(a, SCH('q', 'S13.S14.R10.S15.R11.R12'), GAP)
    for j in range(3):
        if j: a(f'v_pk_mul_f32 v[26:27], v[26:27], {S(sVAL,2)} op_sel:[0,{j-1}] op_sel_hi:[1,{j-1}]')
        gelu_tile(a, ACC1+8*j, TM, lambda p: f'v[26:27] op_sel:[0,{p//2}] op_sel_hi:[1,{p//2}]')
    stamp(a, 6)
    a.bg_on = False
    a.wait(vm=a.tok['st'])
    a.label('L_st_chk')
    a(f"""v_pk_add_f32 {V(SL,2)}, {V(SL,2)}, {V(SL+4,2)}
    v_pk_add_f32 {V(SL+2,2)}, {V(SL+2,2)}, {V(SL+6,2)}
    v_pk_add_f32 {V(SL+8,2)}, {V(SL+8,2)}, {V(SL+12,2)}
    v_pk_add_f32 {V(SL+10,2)}, {V(SL+10,2)}, {V(SL+14,2)}
    v_pk_add_f32 {V(SL,2)}, {V(SL,2)}, {V(SL+8,2)}
    v_pk_add_f32 {V(SL+2,2)}, {V(SL+2,2)}, {V(SL+10,2)}
    v_permlane32_swap_b32 v{SL}, v{SL+2}
    v_permlane32_swap_b32 v{SL+1}, v{SL+3}
    v_pk_add_f32 {V(SL,2)}, {V(SL,2)}, {V(SL+2,2)}
    v_permlane16_swap_b32 v{SL}, v{SL+1}
    v_add_f32 v{SL}, v{SL}, v{SL+1}
    v_cmp_u_f32 vcc, v{SL}, v{SL}
    s_cbranch_vccnz L_st_retry""")
    a.label('L_st_ok')
    a.bg_on = bool(cfg.get('nbg', 1))
    RS = SL+8; NB = SL+16
    a(f"""v_mul_f32 v{SL}, {H(1/688)}, v{SL}
    v_mul_f32 v{SL+2}, v{SL}, v{SL}
    v_sub_f32_dpp v{SL+1}, v{SL}, v{SL+2} row_ror:8 row_mask:0xf bank_mask:0xf
    v_max_f32 v{SL+1}, 0, v{SL+1}
    v_add_f32 v{SL+1}, {H(1e-5)}, v{SL+1}
    v_rsq_f32 v{SL+1}, v{SL+1}
    v_mul_f32_e64 v{SL+2}, -v{SL}, v{SL+1}""")
    for i in range(8): a(f'v_mov_b32_dpp v{RS+i}, v{SL+1} row_newbcast:{i} row_mask:0xf bank_mask:0xf')
    for i in range(8): a(f'v_mov_b32_dpp v{NB+i}, v{SL+2} row_newbcast:{i} row_mask:0xf bank_mask:0xf')
    a.bg_on = False; left = a.bg[a.bg_i:]
    PK = SL+24
    for j in range(3):
        y = ACC2+8*j
        for p in range(4): a(f'v_pk_fma_f32 {V(y+2*p,2)}, {V(y+2*p,2)}, {V(RS+2*p,2)}, {V(NB+2*p,2)}')
        for p in range(4): a(f'v_cvt_pk_bf16_f32 v{PK+4*j+p}, v{y+2*p}, v{y+2*p+1}')
        a(f'buffer_store_dwordx4 {V(PK+4*j,4)}, v{vZS}, {srd(SWS)}, s{sZST+j} offen sc1')
    stamp(a, 7)
    D = cfg.get('depth', 10); RING = 128
    vZ = (vL16, vXG, vXG+1); zt = {}
    def zload(a, gi, reg):
        r, i = divmod(gi, 32)
        return a.one(f'buffer_load_dwordx4 {V(reg,4)}, v{vZ[r]}, {srd(SWS)}, s{sZO+i//4} offen offset:{(i%4)*1024} sc1')
    RG = lambda gi: RING + (gi % D)*4
    def probe(a): a.tok['pr'] = a.one(f'buffer_load_dword v30, v{vPR}, {srd(SWS)}, s{sT+1} offen sc1')
    bgset(a, left+SCH('d', 'R13.R14')+sum((WO(k) for k in range(NEARLY)), []), cfg.get('dgap', 56))
    DL = lambda pq, mt: ACC2 + (pq*2+mt)*4
    DH = lambda pq, mt: (48 if pq == 0 else 116) + mt*4
    ST_ = lambda sg, pq: 80 + (sg % 2)*16 + pq*8
    TPK = (112, 124)
    a(f"""v_and_b32 v24, 15, v0
    s_lshl_b32 s3, s{sT}, 4
    s_add_u32 s3, s3, 1
    v_add_u32 v24, s3, v24
    v_cvt_f32_u32 v24, v24
    v_mul_f32 v24, {H(1/512)}, v24
    s_lshl_b32 s3, s{sROT}, 6
    v_lshrrev_b32 v25, 4, v0
    v_lshl_add_u32 v25, v25, 3, s3
    v_cvt_f32_u32 v25, v25
    v_mul_f32 v25, v25, v24
    v_fract_f32 v88, v25
    v_mul_f32 v25, {H(32.0)}, v24""")
    for i in range(1, 8): a(f'v_add_f32 v{88+i}, v{87+i}, v24')
    for i in range(8): a(f'v_add_f32 v{104+i}, v{88+i}, v25')
    a('v_cos_f32 v25, v25')
    for i in range(8): a(f'v_cos_f32 v{80+i}, v{88+i}')
    a('v_add_f32 v25, v25, v25')
    cvt = lambda sg, pq: [f'v_cvt_pk_bf16_f32 v{TPK[pq]+i}, v{ST_(sg,pq)+2*i}, v{ST_(sg,pq)+2*i+1}' for i in range(4)]
    upd = lambda sg, pq: [f'v_fma_f32 v{ST_(sg,pq)+i}, v25, v{ST_(sg+1,pq)+i}, -v{ST_(sg,pq)+i}' for i in range(8)]
    for t in cvt(0, 0): a(t)
    PRPOS = cfg.get('prpos', 8)
    pf = [probe] + [(lambda a, gi=gi: zt.__setitem__(gi, zload(a, gi, RG(gi)))) for gi in range(D-1)]
    def start_pf(a):
        bgset(a, pf + a.bg[a.bg_i:], cfg.get('pgap', 40))
    for sg in range(8):
        if sg == PRPOS: start_pf(a)
        for pq in range(2):
            if sg == 0 and pq == 0: fl = [f'v_sin_f32 v{88+i}, v{88+i}' for i in range(8)] + cvt(0, 1)
            elif sg == 0: fl = [f'v_cos_f32 v{96+i}, v{104+i}' for i in range(8)] + cvt(1, 0)
            elif sg == 1 and pq == 0: fl = [f'v_sin_f32 v{104+i}, v{104+i}' for i in range(8)] + cvt(1, 1)
            elif pq == 0: fl = upd(sg, 1) + cvt(sg, 1)
            elif sg < 7: fl = upd(sg+1, 0) + cvt(sg+1, 0)
            else: fl = [f'v_accvgpr_read_b32 v{96+i}, a{aR1A[i//4]+i%4}' for i in range(8)] + [f'v_cndmask_b32 v24, -1.0, 1.0, {S(sMA,2)}']
            for hf in range(2):
                for mt in range(2):
                    acc = V((DH if hf else DL)(pq, mt), 4)
                    a(f'v_mfma_f32_16x16x32_bf16 {acc}, {V(XF+((sg+8*hf)*2+mt)*4,4)}, {V(TPK[pq],4)}, {acc if sg else 0}')
                    for _ in range(4):
                        if fl:
                            t = fl.pop(0); tk = a.one(t)
                            if t.startswith('ds_'): a.tok['r1'] = tk
    a.tok['r1done'] = True
    if PRPOS == 8: start_pf(a)
    for pq in range(2):
        for p in range(4): a(f'v_pk_fma_f32 {V(DL(pq,0)+2*p,2)}, {V(DH(pq,0)+2*p,2)}, v[24:25], {V(DL(pq,0)+2*p,2)} op_sel_hi:[1,0,1]')
        for p in range(4): a(f'v_pk_mul_f32 {V(DL(pq,0)+2*p,2)}, {V(DL(pq,0)+2*p,2)}, {V(96+2*p,2)}')
        for p in range(4): a(f'v_cvt_pk_bf16_f32 v{WB+4*pq+p}, v{DL(pq,0)+2*p}, v{DL(pq,0)+2*p+1}')
    a.bg_flush(len(pf)); a.bg_on = False
    for pq in range(2): a.tok['pqs'] = a.one(f'buffer_store_dwordx4 {V(WB+4*pq,4)}, v{vL16}, {srd(SWS)}, s{sPQST} offen offset:{1024*pq} sc1')
    stamp(a, 8)
    bgend(a)
    for k in range(16):
        if f'R{k}' not in used and f'X{k}' not in used:
            for f in RD(k): run(a, f)
    assert all(a.tok['srn', k] == 1 for k in range(16)) and len([u for u in used if u != 'N']) == len(set(used) - {'N'})
    assert 'E' in used or all(f'E{i}' in used for i in range(len(clr)))
    assert all(t in used for t in ('D', 'K', 'T', 'W14', 'W15')) and (('C' in used) != ('cp2' in cfg))
    stamp(a, 9)
    a.wait(vm=a.tok['pr'])
    a.label('L_pr_chk')
    a('v_cmp_eq_u32 vcc, -1, v30\n s_cbranch_vccnz L_pr_retry')
    a.label('L_pr_ok')
    stamp(a, 10)
    vRW = vXW; vRR = vXW+1
    a(f's_cmp_eq_u32 s{sNP}, 2\n s_cbranch_scc1 L_pathB')
    b = a.fork()
    slow = []
    from gen2 import tail
    env = dict(globals()); env.update(locals())
    tail(a, 3, env)
    b.label('L_pathB')
    tail(b, 2, env)
    r = Asm(); r.out = a.out; r.tok['dbgok'] = True
    r.label('L_dbg_retry')
    dbg_load(r); r('s_waitcnt vmcnt(0)')
    retry(r, 'L_dbg_chk', 'L_dbg_ok')
    r.label('L_rdy_retry')
    rdy_load(r); r('s_waitcnt vmcnt(0)')
    retry(r, 'L_rdy_chk', 'L_rdy_ok')
    r.label('L_st_retry')
    r(f's_cmp_gt_u32 s{sCNT}, {LIMIT}\n s_cbranch_scc1 L_st_ok\n s_add_u32 s{sCNT}, s{sCNT}, 1')
    st_loads(r); r('s_waitcnt vmcnt(0)\n s_branch L_st_chk')
    r.label('L_pr_retry')
    r(f's_cmp_gt_u32 s{sCNT}, {LIMIT}\n s_cbranch_scc1 L_pr_ok\n s_add_u32 s{sCNT}, s{sCNT}, 1')
    probe(r); r('s_waitcnt vmcnt(0)\n v_cmp_eq_u32 vcc, -1, v30\n s_cbranch_vccnz L_pr_retry')
    for gi in range(D-1): zload(r, gi, RG(gi))
    r('s_waitcnt vmcnt(0)\n s_branch L_pr_ok')
    for f in slow: f(r)
    r.label('L_end'); r('s_endpgm')
    r.raw('L_codeend:')
    hdr = open('parallel_sum__spectral_fnet__mixer_gmlp__prompt.s.ref').read().split('; @launch')[0] if cfg.get('hdr', True) else ''
    txt = hdr + f'''; @launch grid=(256,1,1) block=(256,1,1) lds=163840
.amdgcn_target "amdgcn-amd-amdhsa--gfx950"
.text
.globl {KN}
.p2align 8
.type {KN},@function
{KN}:
''' + '\n'.join(a.out) + f'''
.section .rodata,"a"
.p2align 6
.amdhsa_kernel {KN}
  .amdhsa_next_free_vgpr 512
  .amdhsa_next_free_sgpr 102
  .amdhsa_accum_offset 256
  .amdhsa_group_segment_fixed_size 0
  .amdhsa_kernarg_size 104
  .amdhsa_user_sgpr_count 2
  .amdhsa_user_sgpr_kernarg_segment_ptr 1
  .amdhsa_system_sgpr_workgroup_id_x 1
.end_amdhsa_kernel
'''
    return txt
if __name__ == '__main__':
    cfg = {}
    for kv in sys.argv[2:]:
        k, v = kv.split('='); cfg[k] = int(v) if v.lstrip('-').isdigit() else v
    open(sys.argv[1], 'w').write(gen(cfg))
```

```python
import sys, math, struct
from asmlib import *
KN = "parallel_sum__spectral_fnet__mixer_gmlp__prompt_kernel"
def f2u(x): return struct.unpack('<I', struct.pack('<f', x))[0]
def H(x): return hex(f2u(x))
Z2 = 0; HH = 0x2C0000; PQ = 0x580000; YY = 0x780000; ST = 0x881000; FLG = 0x8d0000; STAMP = 0x1000000
OOB = 0x40000000
L_STG = 0; L_WO = 73728; L_RING = 65536; L_MISC = 0; L_RED = 32768
NSLOT = 8
SX, SWIN, SWSP, SWOUT, SWS, SOUT, SDBG, SBSP = 8, 12, 16, 20, 24, 28, 32, 36
sR, sG, sW, sA, sB, sP0, sNP, sROT = 40, 41, 42, 43, 44, 45, 46, 47
sXO = 48; sZO = 48; sWO = 56; sSP = 64
sGC = 72; sONE = 74; sLO = 75; sHI = 76; sZST = 77; sHST = 80; sPQST = 83; sSTST = 84; sSTLD = 85
sVAL = 86; sM0W = 88; sM0S = 89; sM0O = 90; sCNT = 91; sMA = 92; sMC = 94; sT = 96
vL16 = 1; vXG = 2; vXW = 4; vXR = 6; vWG = 8; vWR = 11; vSG = 13; vSR = 17; vZS = 21; vHS = 22; vSTA = 23
vTMP = 24; ACC2 = 32; ACC1 = 56; WB = 80; XF = 128; XRAW = 192
LIMIT = 40000
STAGES = [[0,3,6,9,12,15,18,20],[1,4,7,10,13,16,19,21],[2,5,8,11,14,17]]
KORD = STAGES[0]+STAGES[1]+STAGES[2]
def srd(r): return S(r, 4)

PRE = {'a': dict(npk=0, l='W0.W1.W2.W3.W4.W5.W6.W7.G', wgap=64, i0='E0.E1', i1='E2.E3', i2='H.W8', i3='W9', i4='W10', i5='W11', e='W14.W15.S0.S1.S2',
                 i8='S3', i10='', i11='S4', i12='S5.R0', i13='D.S6.R1', i14='R2.S7', i15='R3.K.T', q='S8.R4.S9.R5.S10.R6.S11.R7', d='S12.R8.S13.R9.S14.R10.S15'),
       'b': dict(npk=4, l='E.W0.W1.W2.W3.W4.W5.W6.W7.G', wgap=56, sig1=2, i0='P0', i1='H.P1', i2='p4', i3='', i4='', i5='W8', i6='W9.W10', i7='W11.W12',
                 e='W13.X0.W14.X1.W15.S4.S5', slots='x3333012456012345', i8='p5.P3', i9='C', i10='R4', i11='R5', i12='S6', i13='D.S7', i14='S8', i15='K.T.X2',
                 q='S9.X3.S10.R6.S11.R7.S12.R8', d='S13.R9.S14.R10.S15.R11', rw0=2, rws=1, rbar=14, rc=8),
       }
def gen(cfg):
    cfg = dict(PRE.get(cfg.get('pre', 'a'), {}), **cfg)
    a = Asm()
    stamps = cfg.get('stamps', False)
    vST = 31
    fladdr = lambda r: f'v_mul_u32_u24 v{r}, 260, v0\n v_and_b32 v{r}, 0x3e04, v{r}\n v_or_b32 v{r}, {FLG}, v{r}'
    class St: n = 0
    SETS = {0: list(range(20)),
            1: [0,'xi','ad',1,'x0','x1',2,'g0','g2','g4','g6',3,4,'g10','g12','g14',5,6,18,19], 2: [0, 19]}
    SET = SETS[cfg.get('set', 0)]
    def stamp(a, k):
        if not stamps or k not in SET: return
        k = SET.index(k)
        b = a.in_bg; a.in_bg = True
        if k > 0:
            if cfg.get('set', 0): a.raw('    s_waitcnt lgkmcnt(0)'); a.lg_done = a.lg_n
            a(f'v_writelane_b32 v{vST}, s100, {k-1}')
        a('s_memtime s[100:101]' if stamps == 2 else 's_memrealtime s[100:101]')
        a.in_bg = b
    def retry(a, back, out):
        a(f's_add_u32 s{sCNT}, s{sCNT}, 1\n s_cmp_gt_u32 s{sCNT}, {LIMIT}\n s_cbranch_scc1 {out}\n s_branch {back}')
    a('s_cmp_ge_u32 s2, 256\n s_cbranch_scc1 L_end')
    for r, off in ((SX,0),(SWIN,48),(SWS,96),(SWSP,56),(SWOUT,72),(SDBG,88),(SBSP,64),(SOUT,80)):
        a(f's_load_dwordx2 {S(r,2)}, s[0:1], {off}')
    stamp(a, 0)
    def code_pf(a):
        a(f"""s_getpc_b64 s[4:5]
        s_lshl_b32 s6, s2, 9
        s_and_b32 s6, s6, 0xf000
        v_lshl_add_u32 v27, v0, 4, s6
        v_min_u32 v27, L_codeend-{KN}-1024, v27
        global_load_dwordx4 v[124:127], v27, s[4:5]""")
    if cfg.get('pf0', 1): code_pf(a)
    a(f"""v_lshrrev_b32 v25, 6, v0
    s_lshr_b32 s3, s2, 3
    v_readfirstlane_b32 s{sW}, v25""")
    if cfg.get('map', '2d') == 'row':
        a(f"""s_and_b32 s{sR}, s2, 7
        s_lshl_b32 s{sR}, s{sR}, 2
        s_and_b32 s6, s3, 3
        s_add_u32 s{sR}, s{sR}, s6
        s_lshr_b32 s{sG}, s2, 5
        s_lshl_b32 s6, s6, 1
        s_add_u32 s{sROT}, s{sG}, s6""")
    else:
        a(f"""s_and_b32 s{sR}, s2, 3
        s_lshl_b32 s{sR}, s{sR}, 3
        s_and_b32 s6, s3, 7
        s_add_u32 s{sR}, s{sR}, s6
        s_lshr_b32 s7, s3, 3
        s_xor_b32 s7, s7, {3 if cfg.get('bf', 1) else 0}
        s_and_b32 s{sG}, s2, 4
        s_add_u32 s{sG}, s{sG}, s7
        s_lshl_b32 s7, s7, 1
        s_add_u32 s{sROT}, s7, s6""")
    a(f"""s_lshr_b32 s{sA}, s{sW}, 1
    s_and_b32 s{sB}, s{sW}, 1
    s_mov_b32 s{SX+2}, 2097152
    s_mov_b32 s{SX+3}, 0x00020000
    v_bfe_u32 v24, v0, 3, 3
    v_and_b32 v25, 7, v0
    s_lshl_b32 s5, s{sR}, 1
    s_add_u32 s5, s5, s{sA}
    s_lshl_b32 s5, s5, 1
    s_and_b32 s6, s{sG}, 1
    s_add_u32 s5, s5, s6
    s_lshl_b32 s5, s5, 2
    s_add_u32 s5, s5, s{sB}
    s_lshl_b32 s5, s5, 12
    v_and_b32 v26, 4, v24
    v_add_u32 v26, v26, v24
    v_lshl_add_u32 v27, v26, 10, s5
    v_lshl_add_u32 v{vXG}, v25, 4, v27
    v_xor_b32 v{vXG+1}, 0x4000, v{vXG}
    s_lshl_b32 s7, s{sROT}, 7
    s_movk_i32 s6, 0x380""")
    for i in range(8):
        a(f's_and_b32 s{sSP+i}, s7, s6')
        if i < 7: a(f's_addk_i32 s7, 128')
    a('s_waitcnt lgkmcnt(0)')
    stamp(a, 'ka')
    if 'probe' in cfg:
        pb = cfg['probe']; rr = SWS if pb[0] in 'ws' else SWSP
        a(f's_mov_b32 s{rr+2}, {0x10000000 if rr == SWS else 8388608}\n s_mov_b32 s{rr+3}, 0x00020000\n s_lshl_b32 s5, s2, 15\n v_lshlrev_b32 v28, 4, v0')
        if rr == SWS: a(f's_add_u32 s5, s5, {cfg.get("po", 32) << 20}')
        for i in range(8):
            a(f'buffer_{"store" if pb[0] == "s" else "load"}_dwordx4 {V(64+4*i,4)}, v28, {srd(rr)}, s5 offen' + (' sc1' if pb[0] == 's' else '') + (' nt' if 'n' in pb else '') + '\n s_add_u32 s5, s5, 4096')
        a.waitall(); stamp(a, 'xi')
    xt = {}; NT = str(cfg.get('nt', ''))
    def x_issue(a, n):
        rs, i = divmod(n, 8)
        xt[rs, i] = a.one(f'buffer_load_dwordx4 {V(XRAW+rs*32+i*4,4)}, v{vXG+rs}, {srd(SX)}, s{sSP+i} offen' + (' nt' if 'x' in NT else ''))
    NX0 = cfg.get('nx0', 10)
    for n in range(NX0): x_issue(a, n)
    a(f"""s_or_b32 s5, s2, s{sW}
    s_cselect_b32 s{sCNT}, {OOB}, 0
    s_mov_b32 s{SWS+2}, 0x10000000
    s_mov_b32 s{SWS+3}, 0x00020000
    {fladdr(28)}
    v_mov_b32 v29, 0""")
    a.tok['lead'] = a.one(f'buffer_store_dword v29, v28, {srd(SWS)}, s{sCNT} offen sc1')
    if not cfg.get('pf0', 1): code_pf(a)
    a(f"""v_and_b32 v0, 63, v0
    v_lshlrev_b32 v{vL16}, 4, v0""")
    if cfg.get('xw'): a.wait(vm=xt[0, cfg['xw']-1])
    if 'probe' not in cfg: stamp(a, 'xi')
    a(f"""s_mul_i32 s{sP0}, s{sG}, 3
    s_min_u32 s{sP0}, s{sP0}, 20
    s_cmp_ge_u32 s{sG}, 6
    s_cselect_b32 s{sNP}, 2, 3""")
    for i in range(8): a(f's_mul_i32 s{sWO+i}, s{sSP+i}, 1376')
    a(f"""s_mul_i32 s3, s{sW}, {16*2752}
    s_lshl_b32 s7, s{sP0}, 6
    s_add_u32 s3, s3, s7
    s_add_u32 s3, s3, 1376
    s_movk_i32 s7, 2752""")
    for p in range(3):
        a(f"""v_add_u32 v32, {64*p}, v0
        v_mul_u32_u24 v33, 171, v32
        v_lshrrev_b32 v33, 11, v33
        v_mul_u32_u24 v34, 12, v33
        v_sub_u32 v32, v32, v34
        v_lshrrev_b32 v34, 2, v33
        v_and_b32 v34, 2, v34
        v_xor_b32 v32, v32, v34
        v_lshl_add_u32 v32, v32, 4, s3
        v_mad_u32_u24 v{vWG+p}, v33, s7, v32""")
        if p < 2: a(f's_sub_u32 s3, s3, 1024')
    a(f"""s_mul_i32 s{sM0W}, s{sW}, 3072
    s_add_u32 s{sM0W}, s{sM0W}, {L_RING}""")
    wt = {}
    def w_issue(a, k, p):
        if k == 8 : a(f'v_subrev_u32 v{vWG+p}, 1376, v{vWG+p}')
        a.tok['wn', k] = p
        assert k == 0 or a.tok['wn', k-1] == 2
        if k >= 8: assert a.tok.get('b2' if k < 11 else 'b5' if k < 14 else 'b7') and a.tok['wn', k-1] == 2
        wt[k] = a.dma((f's{sM0W}', (k % NSLOT)*12288), f'buffer_load_dwordx4 v{vWG+p}, {srd(SWIN)}, s{sWO+k%8} offen offset:{1024*p}' + (' nt' if 'w' in NT else '') + ' lds')
    for r, n in ((SWIN,1409024),(SWSP,8388608),(SWOUT,704512),(SOUT,2097152),(SDBG,256),(SBSP,4096)):
        a(f's_mov_b32 s{r+2}, {n}\n s_mov_b32 s{r+3}, 0x00020000')
    a(f"""v_and_b32 v27, 15, v0
    v_lshrrev_b32 v32, 4, v0
    v_lshrrev_b32 v33, 1, v32
    v_and_b32 v34, 1, v32
    s_lshl_b32 s3, s{sA}, 11
    s_lshl_b32 s7, s{sB}, 8
    s_add_u32 s7, s7, s3
    v_lshl_add_u32 v35, v27, 4, s7
    v_lshl_add_u32 v35, v33, 10, v35
    v_lshl_add_u32 v{vZS}, v34, 9, v35
    s_lshl_b32 s7, s{sB}, 9
    s_add_u32 s7, s7, s3
    v_lshl_add_u32 v35, v27, 4, s7
    v_lshl_add_u32 v35, v34, 10, v35
    v_lshl_add_u32 v{vHS}, v33, 8, v35
    v_lshlrev_b32 v35, 4, v27
    v_lshl_add_u32 v{vSTA}, v32, 2, v35
    s_lshl_b32 s3, s{sR}, 12
    s_mul_i32 s7, s{sR}, 90112
    s_lshl_b32 s{sT+1}, s{sP0}, 17
    s_add_u32 s{sZST}, s{sT+1}, s3
    s_add_u32 s{sZST+1}, s{sZST}, {1<<17}
    s_add_u32 s{sZST+2}, s{sZST}, {2<<17}
    s_lshl_b32 s{sT+1}, s{sP0}, 12
    s_add_u32 s{sT+1}, s{sT+1}, s7
    s_add_u32 s{sHST}, s{sT+1}, {HH}
    s_add_u32 s{sHST+1}, s{sT+1}, {HH+4096}
    s_add_u32 s{sHST+2}, s{sT+1}, {HH+8192}""")
    a(f"""s_cmp_eq_u32 s{sNP}, 2
    s_cselect_b32 s{sZST+2}, {OOB}, s{sZST+2}
    s_cselect_b32 s{sHST+2}, {OOB}, s{sHST+2}
    s_cselect_b32 s{sVAL+1}, 0, 1.0
    s_lshl_b32 s{sT}, s{sG}, 1
    s_add_u32 s{sT}, s{sT}, s{sB}
    s_cmp_eq_u32 s{sT}, 15
    s_cselect_b32 s{sVAL}, 0, 1.0
    s_lshl_b32 s{sT+1}, s{sT}, 17
    s_add_u32 s{sT+1}, s{sT+1}, s3
    s_lshl_b32 s{sT+2}, s{sA}, 11
    s_add_u32 s{sT+1}, s{sT+1}, s{sT+2}
    s_add_u32 s{sPQST}, s{sT+1}, {PQ}
    s_lshl_b32 s{sT+1}, s{sR}, 1
    s_add_u32 s{sT+1}, s{sT+1}, s{sA}
    s_lshl_b32 s{sT+1}, s{sT+1}, 12
    s_add_u32 s{sSTLD}, s{sT+1}, {ST}
    s_lshl_b32 s{sT+1}, s{sT}, 8
    s_add_u32 s{sSTST}, s{sSTLD}, s{sT+1}""")
    sYST = sT+3
    a(f"""s_lshl_b32 s4, s{sR}, 3
    s_add_u32 s4, s4, s{sG}
    s_lshl_b32 s3, s4, 2
    s_add_u32 s3, s3, s{sW}
    s_lshl_b32 s3, s3, 10
    s_add_u32 s{sYST}, s3, {YY}
    s_lshl_b32 s4, s{sR}, 9
    s_add_u32 s4, s4, s{sG}
    s_cmp_eq_u32 s{sW}, 0
    s_cselect_b32 s4, s4, {OOB}""")
    stamp(a, 'su')
    def clr_ops(M1, names):
        ops = []
        m = V(M1, 4)
        for nm in names:
            if nm == 's': ops.append(f'buffer_store_dword v{M1}, v{vSTA}, {srd(SWS)}, s{sSTST} offen sc1')
            if nm == 'z': ops += [f'buffer_store_dwordx4 {m}, v{vZS}, {srd(SWS)}, s{sZST+j} offen sc1' for j in range(3)]
            if nm == 'h': ops += [f'buffer_store_dwordx4 {m}, v{vHS}, {srd(SWS)}, s{sHST+j} offen sc1' for j in range(3)]
            if nm == 'y': ops.append(f'buffer_store_dwordx4 {m}, v{vL16}, {srd(SWS)}, s{sYST} offen sc1')
        return ops
    a(f"""v_xor_b32 v33, v24, v25
    v_and_b32 v34, 3, v25
    v_lshl_add_u32 v33, v34, 4, v33
    v_lshrrev_b32 v34, 2, v25
    v_lshlrev_b32 v34, 12, v34
    v_lshl_add_u32 v33, v33, 4, v34
    s_and_b32 s3, s{sG}, 1
    s_lshl_b32 s3, s3, 7
    s_lshl_b32 s7, s{sW}, 10
    s_add_u32 s3, s3, s7
    v_add_u32 v{vXW}, s3, v33
    v_xor_b32 v{vXW+1}, 0x80, v{vXW}
    s_add_u32 s{sM0O}, s7, {L_WO}
    s_lshl_b32 s5, s7, 2
    s_add_u32 s{sM0S}, s5, {L_STG}
    v_xor_b32 v33, v27, v32
    v_lshl_add_u32 v33, v32, 4, v33
    s_lshl_b32 s3, s{sA}, 11
    v_lshl_add_u32 v{vXR}, v33, 4, s3
    v_xor_b32 v{vXR+1}, 64, v{vXR}
    v_bfe_u32 v33, v0, 2, 2
    v_lshl_add_u32 v33, v32, 3, v33
    v_mul_u32_u24 v33, 192, v33
    v_and_b32 v34, 1, v32
    v_xor_b32 v34, s{sB}, v34
    v_lshl_add_u32 v33, v34, 5, v33
    v_and_b32 v34, 3, v0
    v_lshl_add_u32 v33, v34, 3, v33
    v_add_u32 v{vWR}, {L_RING}, v33
    v_add_u32 v{vWR+1}, {L_RING+4*12288}, v33
    s_lshl_b32 s3, s{sR}, 18
    s_add_u32 s3, s3, s7
    v_lshrrev_b32 v33, 1, v24
    v_xor_b32 v33, v33, v25
    v_lshl_add_u32 v33, v33, 4, s3
    v_lshl_add_u32 v{vSG}, v26, 12, v33
    v_xor_b32 v33, 64, v{vSG}
    v_add_u32 v{vSG+1}, {16*4096-1024}, v33
    v_add_u32 v{vSG+2}, {4*4096-2048}, v{vSG}
    v_add_u32 v{vSG+3}, {20*4096-3072}, v33
    v_and_b32 v33, 31, v0
    v_bfe_u32 v34, v0, 1, 3
    v_lshrrev_b32 v35, 5, v0
    v_xor_b32 v34, v34, v35
    v_lshlrev_b32 v34, 4, v34
    v_lshl_add_u32 v33, v33, 7, v34
    v_add_u32 v{vSR}, s{sM0S}, v33
    v_xor_b32 v{vSR+1}, 32, v{vSR}
    v_xor_b32 v{vSR+2}, 64, v{vSR}
    v_xor_b32 v{vSR+3}, 0x60, v{vSR}""")
    c0 = -2.0*math.sqrt(2.0/math.pi)*math.log2(math.e)
    a(f"""s_mov_b32 s{sGC}, {H(c0*0.044715)}
    s_mov_b32 s{sGC+1}, {H(c0)}
    s_mov_b32 s{sONE}, 0x3f803f80
    s_mov_b32 s{sLO}, 0x00003f80
    s_mov_b32 s{sHI}, 0x3f800000
    s_mov_b32 s{sMA}, 0xaaaaaaaa
    s_mov_b32 s{sMA+1}, 0xaaaaaaaa
    s_mov_b32 s{sMC}, 0xcccccccc
    s_mov_b32 s{sMC+1}, 0xcccccccc""")
    a(f"""s_add_u32 s{sT+1}, s{sP0}, s{sNP}
    s_sub_u32 s{sT+1}, s{sT+1}, 1
    s_lshl_b32 s{sT+1}, s{sT+1}, 17
    s_lshl_b32 s3, s{sW}, 15
    s_add_u32 s{sT+1}, s{sT+1}, s3
    s_lshl_b32 s6, s{sP0}, 17
    s_add_u32 s6, s6, s3
    s_lshl_b32 s{sT+2}, s{sG}, 7""")
    for i in range(8): a(f's_lshl_b32 s{sZO+i}, s{sSP+i}, 5\n s_add_u32 s{sZO+i}, s{sZO+i}, s6')
    M1 = 64
    for i in range(4): a(f'v_mov_b32 v{M1+i}, -1')
    a(f"""s_and_b32 s3, s{sG}, 1
    s_lshl_b32 s3, s3, 5
    s_lshl_b32 s7, s{sW}, 6
    s_add_u32 s3, s3, s7
    v_lshl_add_u32 v30, v24, 2, s3
    v_xor_b32 v26, 32, v30""")
    stamp(a, 'ad')
    for n in range(NX0, 16): x_issue(a, n)
    vR1A, vR1B = vXG, vXG+1
    a(f"""s_lshl_b32 s3, s{sA}, 7
    v_lshl_add_u32 v{vR1A}, v32, 4, s3
    v_lshl_add_u32 v{vR1B}, v27, 2, s3""")
    def W(k): return [(lambda a, p=p: w_issue(a, k, p)) for p in range(3)]
    def bgset(a, ops, gap, delay=0):
        a.bg = [o if isinstance(o, tuple) else (o, gap) for o in ops]; a.bg_i = 0; a.bg_next = a.t + delay; a.bg_on = True
    def bgend(a): a.bg_flush(); a.bg_on = False
    def c1(a, t):
        assert not a.tok.get('clrw'); a.tok['clr'] = a.one(t)
    clr = [(lambda a, t=t: c1(a, t)) for t in clr_ops(M1, cfg.get('ce', 'sz'))]
    ORD = {0: [0,1,8,9,2,4,6,3,5,7,10,12,14,11,13,15], 1: list(range(16)), 2: [0,1,8,9,2,3,10,11,4,5,12,13,6,7,14,15],
           3: [0,8,1,9,2,10,3,11,4,12,5,13,6,14,7,15]}[cfg.get('ord', 0)]
    NPK = cfg.get('npk', 4)
    SPSLOT = [int(c) for c in str(cfg.get('slots', 'x3333012301456230' if NPK == 4 else 'x3301230145623012' if NPK == 2 else 'x0123456012345601'))[1:]]
    AQ = lambda k, q: ((k % 8)*4+q)*8 + (k//8)*4
    def PK_(n):
        k = ORD[n]
        def mk(p):
            def f(a):
                b = a.in_bg; a.in_bg = True
                if k >= 8: a(f's_add_u32 s5, s{sSP+k%8}, 0x20000')
                a.tok['pk', n] = a.one(f'buffer_load_dwordx4 {A(AQ(k,p),4)}, v{vSG+p}, {srd(SWSP)}, s{5 if k >= 8 else sSP+k} offen offset:{1024*p}' + (' nt' if 'p' in NT else ''))
                a.in_bg = b; a.tok['pkn', n] = p
            return f
        return [mk(p) for p in range(4)]
    def XP(n):
        k = ORD[n]
        def mk(h):
            def f(a):
                assert a.tok['pkn', n] == 3 and a.tok.get('b7')
                a.wait(vm=a.tok['pk', n])
                if not a.tok.get('xpa'): a(f'v_add_u32 v{vXW+1}, s{sM0S}, v{vL16}'); a.tok['xpa'] = True
                for q in (2*h, 2*h+1): a(f'ds_write_b128 v{vXW+1}, {A(AQ(k,q),4)} offset:{SPSLOT[n]*16384+1024*q}')
                if h: a.tok['sdn', n] = 3; a.tok['sd', n] = 0
            return (f, 16)
        return [mk(0), mk(1)] + RD(n)
    vSR2 = [vWG, vWG+1, vWG+2, vXW]
    def SP(n):
        k = ORD[n]; prev = [j for j in range(n) if SPSLOT[j] == SPSLOT[n]]
        def mk(p):
            def f(a):
                def pre(a):
                    if p == 0 and prev:
                        assert a.tok['srn', prev[-1]] == 1
                        a.wait(lg=a.tok['sr', prev[-1]])
                    if k >= 8: a(f's_add_u32 s5, s{sSP+k%8}, 0x20000')
                assert a.tok.get('b11' if SPSLOT[n] >= 4 else 'b7')
                a.tok['sd', n] = a.dma((f's{sM0S}', SPSLOT[n]*16384), f'buffer_load_dwordx4 v{vSG+p}, {srd(SWSP)}, s{5 if k >= 8 else sSP+k} offen offset:{1024*p}' + (' nt' if 's' in NT or ('p' in NT and n < cfg.get('nown', 4)) else '') + ' lds', pre)
                a.tok['sdn', n] = p
            return f
        return [mk(p) for p in range(4)]
    def RD(n):
        k = ORD[n]
        def mk(h):
            def f(a):
                assert a.tok['sdn', n] == 3
                if n == 15: assert a.tok.get('r1done')
                assert SPSLOT[n] < 4 or a.tok.get('sr2')
                a.wait(vm=a.tok['sd', n])
                for q in (2*h, 2*h+1):
                    r = ((k % 8)*4+q)*8 + (k//8)*4; sl = SPSLOT[n]
                    a.tok['sr', n] = a.one(f'ds_read_b128 {A(r,4)}, v{vSR+q if sl < 4 else vSR2[q]} offset:{(sl % 4)*16384}')
                a.tok['srn', n] = h
            return (f, 8)
        return [mk(0), mk(1)]
    assert ORD[15] == 15
    aR1A = (228, 236); aR1B = 244
    vOG = vXR; vPR = vXR+1
    NEARLY = cfg.get('nearly', 12)
    def wo_issue(a, k):
        a.tok['wo', k] = a.dma((f's{sM0O}', ((k+10) % 22)*4096), f'buffer_load_dwordx4 v{vOG}, {srd(SWOUT)}, s5 offen lds',
                               lambda a: a(f's_add_u32 s5, s{sT+2}, {KORD[k]*32768}'))
    WO = lambda k: [lambda a: wo_issue(a, k)]
    SL = WB
    def st_load(j):
        def f(a):
            assert a.tok.get('dbgok') and a.tok.get('stok')
            a.tok['stn'] = a.tok.get('stn', 0) + 1
            a.tok['st'] = a.one(f'buffer_load_dwordx4 {V(SL+4*j,4)}, v{vL16}, {srd(SWS)}, s{sSTLD} offen offset:{1024*j} sc1')
        return f
    def st_loads(a):
        for j in range(4): st_load(j)(a)
    def dbg_load(a):
        assert a.tok.get('sig1')
        a(fladdr(vXG))
        a.tok['dbg'] = a.one(f'buffer_load_dword v{vXG+1}, v{vXG}, {srd(SWS)}, 0 offen sc1')
    def dbg_chk(a):
        a.wait(vm=a.tok['dbg'])
        a.label('L_dbg_chk')
        a(f'v_and_b32 v{vXG+1}, 0x01010101, v{vXG+1}\n v_cmp_ne_u32 vcc, 0x01010101, v{vXG+1}\n s_cbranch_vccnz L_dbg_retry')
        a.label('L_dbg_ok'); a.tok['dbgok'] = True
    def rdy_load(a): a.tok['rdy'] = a.one(f'buffer_load_dword v27, off, {srd(SDBG)}, 0 sc1')
    def rdy_chk(a):
        a.wait(vm=a.tok['rdy'])
        a.label('L_rdy_chk')
        a('v_cmp_ne_u32 vcc, 1, v27\n s_cbranch_vccnz L_rdy_retry')
        a.label('L_rdy_ok'); a.tok['rdyok'] = True
    def c2(a, t):
        assert a.tok.get('c2ok'); a(t)
    clr2 = [(lambda a, t=t: c2(a, t)) for t in clr_ops(24, cfg.get('cl', 'hy'))]
    used = []
    def SCH(key, dflt):
        ops = []
        for t in str(cfg.get(key, dflt)).split('.'):
            if t in ('', '-'): continue
            used.append(t); c = t[0]; n = int(t[1:]) if len(t) > 1 else None
            ops += {'W': lambda: W(n), 'S': lambda: SP(n), 'R': lambda: RD(n), 'O': lambda: WO(n), 'C': lambda: clr2 if n is None else [clr2[n]], 'E': lambda: clr if n is None else [clr[n]], 'P': lambda: PK_(n), 'X': lambda: XP(n),
                    'p': lambda: PK_(n//2)[2*(n%2):2*(n%2)+2], 'D': lambda: [dbg_load],
                    'K': lambda: [dbg_chk], 'G': lambda: [rdy_load], 'H': lambda: [rdy_chk], 'T': lambda: [(st_load(j), 24) for j in range(4)], 'N': lambda: [lambda a: None]}[c]()
        return ops
    bgset(a, SCH('l', 'W0.W1.W2.W3.W4.W5.W6.W7.P0'), cfg.get('wgap', 56), cfg.get('w0', 20))
    stamp(a, 1)
    def red8(a, r):
        a(f'''v_add_f32_dpp v{r}, v{r}, v{r} quad_perm:[1,0,3,2] row_mask:0xf bank_mask:0xf
        v_add_f32_dpp v{r}, v{r}, v{r} quad_perm:[2,3,0,1] row_mask:0xf bank_mask:0xf
        v_add_f32_dpp v{r}, v{r}, v{r} row_half_mirror row_mask:0xf bank_mask:0xf''')
    for rs in range(2):
        a.cmt(f'LN rowset {rs}')
        X = XRAW + rs*32
        a('v_mov_b32 v35, 0\n v_mov_b32 v36, 0')
        for i in range(8):
            if i % 2 == 0: a.wait(vm=xt[rs, i+1])
            for k in range(4): a(f'v_dot2c_f32_bf16 v35, s{sONE}, v{X+4*i+k}')
        stamp(a, f'x{rs}')
        red8(a, 35)
        a(f'v_mul_f32 v35, {H(-1/512)}, v35')
        if rs == 0:
            a.wait(vm=a.tok['lead'])
            b = a.in_bg; a.in_bg = True
            a(f'v_mov_b32 v29, 1\n buffer_store_dword v29, off, {srd(SDBG)}, s{sCNT} sc1\n s_mov_b32 s{sCNT}, 0'); a.in_bg = b
        for i in range(9):
            if i < 8:
                for k in range(4):
                    t = 40 + (i % 2)*8 + 2*k
                    a(f'v_dot2_f32_bf16 v{t}, v{X+4*i+k}, s{sLO}, v35\n v_dot2_f32_bf16 v{t+1}, v{X+4*i+k}, s{sHI}, v35')
            if i > 0:
                j = i-1
                for k in range(4):
                    t = 40 + (j % 2)*8 + 2*k
                    a(f'v_cvt_pk_bf16_f32 v{X+4*j+k}, v{t}, v{t+1}')
                a(f'ds_write_b128 v{vXW+rs}, {V(X+4*j,4)} offset:{8192*j}')
        def sq_tail(a, k0, k1, rs=rs, X=X):
            for k in range(k0, k1): a(f'v_dot2c_f32_bf16 v36, v{X+k}, v{X+k}')
            if k1 < 32: return
            red8(a, 36)
            a(f"""v_mov_b32 v37, {H(1e-5)}
            v_fmac_f32 v37, {H(1/512)}, v36
            v_rsq_f32 v{28+rs}, v37""")
        SQ = cfg.get('sq', 16)
        sq_tail(a, 0, SQ if rs else 32)
    bgend(a)
    stamp(a, 2)
    def w_reads(k):
        ops = []
        sl = k % NSLOT; ar = vWR + (sl >= 4); base = (sl % 4)*12288
        for sg in range(2):
            if k < 8:
                for mt in range(2):
                    s_ = 2*k+sg
                    ops.append(f'ds_read_b128 {V(XF+(s_*2+mt)*4,4)}, v{vXR+sg} offset:{s_*4096+mt*1024}')
            for j in range(3):
                for u in range(2):
                    ops.append(f'ds_read_b64_tr_b16 {V(WB+(k%2)*24+(sg*3+j)*4+2*u,2)}, v{ar} offset:{base+sg*6144+u*768+j*64}')
        return ops
    SIG1 = cfg.get('sig1', 7)
    BAR = {2: 5, 5: 7, 7: None, 11: 15, 15: None}
    def run(a, f): (f[0] if isinstance(f, tuple) else f)(a)
    def gemm_iter(a, k, late=()):
        a.cmt(f'gemm iter {k}')
        if BAR.get(k) is not None: assert a.tok['wn', BAR[k]] == 2
        a.wait(vm=max(a.tok['clr'] if k == SIG1 else 0, wt[BAR[k]] if BAR.get(k) is not None else 0), lg=a.tok['wr', k])
        if k == SIG1: a.tok['clrw'] = True; assert k in BAR
        if k in BAR: a('s_barrier'); a.tok[f'b{k}'] = True
        stamp(a, f'g{k}')
        fill = [(lambda a, t=t: a.tok.__setitem__(('wr', k+1), a.one(t))) for t in (w_reads(k+1) if k not in (7, 15) else [])]
        late = list(late)
        for sg in range(2):
            for j in range(3):
                for mt in range(2):
                    x = V(XF+(((2*k+sg) % 16)*2+mt)*4, 4); w = V(WB+(k%2)*24+(sg*3+j)*4, 4)
                    acc = V((ACC2 if k < 8 else ACC1)+(j*2+mt)*4, 4)
                    c = '0' if (k % 8 == 0 and sg == 0) else acc
                    a(f'v_mfma_f32_16x16x32_bf16 {acc}, {x}, {w}, {c}' if k < 8 else f'v_mfma_f32_16x16x32_bf16 {acc}, {w}, {x}, {c}')
                    if fill:
                        for _ in range(2):
                            if fill: fill.pop(0)(a)
                    elif late: run(a, late.pop(0))
        for f in late: run(a, f)
    def T2(text):
        L = [l.strip() for l in text.strip().split('\n')]
        return [(lambda a, t='\n'.join(L[i:i+2]): a(t)) for i in range(0, len(L), 2)]
    a.wait(vm=wt[2], lg=a.lg_n)
    a('s_barrier')
    for t in w_reads(0): a.tok['wr', 0] = a.one(t)
    if SQ < 32: sq_tail(a, SQ, 32)
    def dbg_store(a, val=1, t=24):
        assert a.tok.get('rdyok')
        a(f"""v_mov_b32 v{t}, {val}
        v_mov_b32 v{t+1}, {FLG}
        buffer_store_byte v{t}, v{t+1}, {srd(SWS)}, s4 offen sc1""")
    ZD = {0: 'P1', 1: 'E', 2: 'W8.p4', 3: 'W9.p5', 4: 'W10.p6', 5: 'W11.p7', 6: 'W12', 7: 'W13',
          8: 'R4.S7', 9: '' if 'cp2' in cfg else 'C', 10: 'R5.S8', 11: 'R6.S9', 12: 'S10.R7', 13: 'D.S11.R8', 14: 'S12.R9', 15: 'K.T'}
    misc1 = T2(f"""v_lshrrev_b32 v24, 3, v0
        v_bfe_u32 v25, v0, 4, 1
        s_lshl_b32 s3, s{sB}, 1
        v_add_u32 v25, s3, v25
        v_lshlrev_b32 v25, 1, v25
        v_and_b32 v30, 7, v0
        v_xor_b32 v25, v25, v30
        v_lshlrev_b32 v25, 4, v25
        s_lshl_b32 s3, s{sW}, 13
        v_lshl_add_u32 v25, v24, 10, v25
        v_add_u32 v{vOG}, s3, v25""")
    for k in range(8):
        late = SCH(f'i{k}', ZD[k])
        if k == 2: late = [lambda a: a('ds_write_b32 v30, v28\n ds_write_b32 v26, v29')] + late
        if k == 5:
            def r1r(a):
                for mt in range(2):
                    a(f'''ds_read_b128 {V(ACC1+4*mt,4)}, v{vR1A} offset:{64*mt}
                    ds_read_b128 {A(aR1A[mt],4)}, v{vR1A} offset:{64*mt}
                    ds_read_b32 a{aR1B+mt}, v{vR1B} offset:{64*mt}''')
            late = [r1r] + late
        if k == 7:
            x = list(misc1); y = late; late = []
            while x or y:
                if x: late.append(x.pop(0))
                if y: late.append(y.pop(0))
        if SIG1 == k: late = [lambda a: dbg_store(a, 1, 24 if k < 7 else vXG)] + late
        gemm_iter(a, k, late)
    a.tok['clrw'] = True
    stamp(a, 3)
    GAP = cfg.get('gap', 56)
    bgset(a, SCH('e', 'W14.X0.W15.X1.S4.X2.S5.X3.S6'), cfg.get('egap', 52))
    def gelu_tile(a, acc, tmp, rop):
        for p in range(4): a(f'v_pk_mul_f32 {V(acc+2*p,2)}, {V(acc+2*p,2)}, {rop(p)}')
        for p in range(4): a(f'v_pk_mul_f32 {V(tmp+2*p,2)}, {V(acc+2*p,2)}, {V(acc+2*p,2)}')
        for p in range(4): a(f'v_pk_fma_f32 {V(tmp+2*p,2)}, {V(tmp+2*p,2)}, {S(sGC,2)}, {S(sGC,2)} op_sel:[0,0,1] op_sel_hi:[1,0,1]')
        for p in range(4): a(f'v_pk_mul_f32 {V(tmp+2*p,2)}, {V(tmp+2*p,2)}, {V(acc+2*p,2)}')
        for p in range(8): a(f'v_exp_f32 v{tmp+p}, v{tmp+p}')
        for p in range(4): a(f'v_pk_add_f32 {V(tmp+2*p,2)}, {V(tmp+2*p,2)}, 1.0 op_sel_hi:[1,0]')
        for p in range(8): a(f'v_rcp_f32 v{tmp+p}, v{tmp+p}')
        for p in range(4): a(f'v_pk_mul_f32 {V(acc+2*p,2)}, {V(acc+2*p,2)}, {V(tmp+2*p,2)}')
    TM = WB+24; SS = ACC1+8; QQ = ACC1+16
    def b8(a):
        on = a.bg_on; a.bg_on = False
        while a.tok.get(('wn', 13)) != 2: a.bg_step()
        a.wait(vm=wt[13]); a('s_barrier')
        if SIG1 == 8: assert a.tok['clr'] <= a.vm_done; dbg_store(a, 1, vXG)
        for t in w_reads(8): a.tok['wr', 8] = a.one(t)
        a.bg_on = on
    for j in range(3):
        if j:
            for p in range(4): a(f'v_pk_mul_f32 {V(ACC1+2*p,2)}, {V(ACC1+2*p,2)}, {S(sVAL,2)} op_sel:[0,{j-1}] op_sel_hi:[1,{j-1}]')
        y = ACC2+8*j
        gelu_tile(a, y, TM, lambda p: V(ACC1+2*p, 2))
        for p in range(4):
            if j == 0: a(f'v_pk_mul_f32 {V(QQ+2*p,2)}, {V(y+2*p,2)}, {V(y+2*p,2)}')
            else: a(f'v_pk_fma_f32 {V(QQ+2*p,2)}, {V(y+2*p,2)}, {V(y+2*p,2)}, {V(QQ+2*p,2)}')
            if j == 1: a(f'v_pk_add_f32 {V(SS+2*p,2)}, {V(y+2*p,2)}, {V(ACC2+2*p,2)}')
            if j == 2: a(f'v_pk_add_f32 {V(SS+2*p,2)}, {V(y+2*p,2)}, {V(SS+2*p,2)}')
    if cfg.get('b8', 0) == 0: b8(a)
    for i in range(8): a(f'v_add_f32_dpp v{SS+i}, v{SS+i}, v{SS+i} row_ror:8 row_mask:0xf bank_mask:0x3')
    for i in range(8): a(f'v_add_f32_dpp v{SS+i}, v{QQ+i}, v{QQ+i} row_ror:8 row_mask:0xf bank_mask:0xc')
    for i in range(4): a(f'v_add_f32_dpp v{SS+i}, v{SS+i}, v{SS+i} row_half_mirror row_mask:0xf bank_mask:0x5')
    for i in range(4): a(f'v_add_f32_dpp v{SS+i}, v{SS+4+i}, v{SS+4+i} row_half_mirror row_mask:0xf bank_mask:0xa')
    for i in range(4): a(f'v_add_f32_dpp v{SS+i}, v{SS+i}, v{SS+i} quad_perm:[1,0,3,2] row_mask:0xf bank_mask:0xf')
    for i in range(4): a(f'v_add_f32_dpp v{SS+i}, v{SS+i}, v{SS+i} quad_perm:[2,3,0,1] row_mask:0xf bank_mask:0xf')
    a(f"""v_cndmask_b32 v{SS}, v{SS}, v{SS+1}, {S(sMA,2)}
    v_cndmask_b32 v{SS+2}, v{SS+2}, v{SS+3}, {S(sMA,2)}
    v_cndmask_b32 v26, v{SS}, v{SS+2}, {S(sMC,2)}""")
    left = a.bg[a.bg_i:]; a.bg_on = False
    if cfg.get('eflush', 1):
        for f in left: run(a, f)
        left = []
    a(f'buffer_store_dword v26, v{vSTA}, {srd(SWS)}, s{sSTST} offen sc1')
    if cfg.get('b8', 0) == 1: b8(a)
    for i in range(4): a(f'v_mov_b32 v{24+i}, -1')
    a.tok['c2ok'] = a.tok['sig1'] = True
    stamp(a, 4)
    vBS = 28
    misc2 = T2(f"""v_and_b32 v28, 12, v0
        v_and_b32 v29, 15, v0
        v_add_u32 v28, v28, v29
        v_lshlrev_b32 v30, 1, v28
        s_lshl_b32 s3, s{sR}, 7
        s_lshl_b32 s7, s{sA}, 6
        s_add_u32 s3, s3, s7
        buffer_load_short_d16_hi v{vBS}, v30, {srd(SBSP)}, s3 offen
        buffer_load_short_d16_hi v{vBS+1}, v30, {srd(SBSP)}, s3 offen offset:8""")
    misc3 = T2(f"""v_lshrrev_b32 v24, 2, v0
        v_lshlrev_b32 v24, 11, v24
        v_bfe_u32 v25, v0, 1, 1
        v_lshl_add_u32 v{vPR}, v25, 8, v24""")
    sr2 = T2('\n'.join(f'v_add_u32 v{vSR2[q]}, 0x10000, v{vSR+q}' for q in range(4)))
    r1b = lambda a: a(f'v_accvgpr_read_b32 v26, a{aR1B}\n v_accvgpr_read_b32 v27, a{aR1B+1}')
    ZX = {8: left, 11: [], 12: sr2, 13: misc3, 14: misc2, 15: [r1b]}
    for k in range(8, 16):
        x = ZX.get(k, []); y = SCH(f'i{k}', ZD[k]); late = []
        if k == 13: a.tok['c2ok'] = False; a.tok['sr2'] = True
        if k == 15: a.tok['stok'] = True
        while x or y:
            if y: late.append(y.pop(0))
            if x: late.append(x.pop(0))
        gemm_iter(a, k, late)
    stamp(a, 5)
    bgset(a, SCH('q', 'S13.S14.R10.S15.R11.R12'), GAP)
    for j in range(3):
        if j: a(f'v_pk_mul_f32 v[26:27], v[26:27], {S(sVAL,2)} op_sel:[0,{j-1}] op_sel_hi:[1,{j-1}]')
        gelu_tile(a, ACC1+8*j, TM, lambda p: f'v[26:27] op_sel:[0,{p//2}] op_sel_hi:[1,{p//2}]')
    stamp(a, 6)
    a.bg_on = False
    while a.tok.get('stn') != 4: assert a.bg_i < len(a.bg); a.bg_step()
    a.wait(vm=a.tok['st'])
    a.label('L_st_chk')
    a(f"""v_pk_add_f32 {V(SL,2)}, {V(SL,2)}, {V(SL+4,2)}
    v_pk_add_f32 {V(SL+2,2)}, {V(SL+2,2)}, {V(SL+6,2)}
    v_pk_add_f32 {V(SL+8,2)}, {V(SL+8,2)}, {V(SL+12,2)}
    v_pk_add_f32 {V(SL+10,2)}, {V(SL+10,2)}, {V(SL+14,2)}
    v_pk_add_f32 {V(SL,2)}, {V(SL,2)}, {V(SL+8,2)}
    v_pk_add_f32 {V(SL+2,2)}, {V(SL+2,2)}, {V(SL+10,2)}
    v_permlane32_swap_b32 v{SL}, v{SL+2}
    v_permlane32_swap_b32 v{SL+1}, v{SL+3}
    v_pk_add_f32 {V(SL,2)}, {V(SL,2)}, {V(SL+2,2)}
    v_permlane16_swap_b32 v{SL}, v{SL+1}
    v_add_f32 v{SL}, v{SL}, v{SL+1}
    v_cmp_u_f32 vcc, v{SL}, v{SL}
    s_cbranch_vccnz L_st_retry""")
    a.label('L_st_ok')
    a.bg_on = bool(cfg.get('nbg', 1))
    RS = SL+8; NB = SL+16
    a(f"""v_mul_f32 v{SL}, {H(1/688)}, v{SL}
    v_mul_f32 v{SL+2}, v{SL}, v{SL}
    v_sub_f32_dpp v{SL+1}, v{SL}, v{SL+2} row_ror:8 row_mask:0xf bank_mask:0xf
    v_max_f32 v{SL+1}, 0, v{SL+1}
    v_add_f32 v{SL+1}, {H(1e-5)}, v{SL+1}
    v_rsq_f32 v{SL+1}, v{SL+1}
    v_mul_f32_e64 v{SL+2}, -v{SL}, v{SL+1}""")
    for i in range(8): a(f'v_mov_b32_dpp v{RS+i}, v{SL+1} row_newbcast:{i} row_mask:0xf bank_mask:0xf')
    for i in range(8): a(f'v_mov_b32_dpp v{NB+i}, v{SL+2} row_newbcast:{i} row_mask:0xf bank_mask:0xf')
    a.bg_on = False; left = a.bg[a.bg_i:]
    PK = SL+24
    for j in range(3):
        y = ACC2+8*j
        for p in range(4): a(f'v_pk_fma_f32 {V(y+2*p,2)}, {V(y+2*p,2)}, {V(RS+2*p,2)}, {V(NB+2*p,2)}')
        for p in range(4): a(f'v_cvt_pk_bf16_f32 v{PK+4*j+p}, v{y+2*p}, v{y+2*p+1}')
        a(f'buffer_store_dwordx4 {V(PK+4*j,4)}, v{vZS}, {srd(SWS)}, s{sZST+j} offen sc1')
    stamp(a, 7)
    D = cfg.get('depth', 10); RING = 128
    vZ = (vL16, vXG, vXG+1); zt = {}
    def zload(a, gi, reg):
        r, i = divmod(gi, 32)
        return a.one(f'buffer_load_dwordx4 {V(reg,4)}, v{vZ[r]}, {srd(SWS)}, s{sZO+i//4} offen offset:{(i%4)*1024} sc1')
    RG = lambda gi: RING + (gi % D)*4
    def probe(a): a.tok['pr'] = a.one(f'buffer_load_dword v30, v{vPR}, {srd(SWS)}, s{sT+1} offen sc1')
    bgset(a, left+SCH('d', 'R13.R14')+sum((WO(k) for k in range(NEARLY)), []), cfg.get('dgap', 56))
    DL = lambda pq, mt: ACC2 + (pq*2+mt)*4
    DH = lambda pq, mt: (48 if pq == 0 else 116) + mt*4
    ST_ = lambda sg, pq: 80 + (sg % 2)*16 + pq*8
    TPK = (112, 124)
    a(f"""v_and_b32 v24, 15, v0
    s_lshl_b32 s3, s{sT}, 4
    s_add_u32 s3, s3, 1
    v_add_u32 v24, s3, v24
    v_cvt_f32_u32 v24, v24
    v_mul_f32 v24, {H(1/512)}, v24
    s_lshl_b32 s3, s{sROT}, 6
    v_lshrrev_b32 v25, 4, v0
    v_lshl_add_u32 v25, v25, 3, s3
    v_cvt_f32_u32 v25, v25
    v_mul_f32 v25, v25, v24
    v_fract_f32 v88, v25
    v_mul_f32 v25, {H(32.0)}, v24""")
    for i in range(1, 8): a(f'v_add_f32 v{88+i}, v{87+i}, v24')
    for i in range(8): a(f'v_add_f32 v{104+i}, v{88+i}, v25')
    a('v_cos_f32 v25, v25')
    for i in range(8): a(f'v_cos_f32 v{80+i}, v{88+i}')
    a('v_add_f32 v25, v25, v25')
    cvt = lambda sg, pq: [f'v_cvt_pk_bf16_f32 v{TPK[pq]+i}, v{ST_(sg,pq)+2*i}, v{ST_(sg,pq)+2*i+1}' for i in range(4)]
    upd = lambda sg, pq: [f'v_fma_f32 v{ST_(sg,pq)+i}, v25, v{ST_(sg+1,pq)+i}, -v{ST_(sg,pq)+i}' for i in range(8)]
    for t in cvt(0, 0): a(t)
    PRPOS = cfg.get('prpos', 8)
    assert (D-2)//2 < PRPOS <= 8 and 9 <= D <= 16 and NEARLY <= 12
    pf = [probe] + [(lambda a, gi=gi: zt.__setitem__(gi, zload(a, gi, RG(gi)))) for gi in range(D-1)]
    def start_pf(a):
        bgset(a, pf + a.bg[a.bg_i:], cfg.get('pgap', 40))
    for sg in range(8):
        if sg == PRPOS: start_pf(a)
        for pq in range(2):
            if sg == 0 and pq == 0: fl = [f'v_sin_f32 v{88+i}, v{88+i}' for i in range(8)] + cvt(0, 1)
            elif sg == 0: fl = [f'v_cos_f32 v{96+i}, v{104+i}' for i in range(8)] + cvt(1, 0)
            elif sg == 1 and pq == 0: fl = [f'v_sin_f32 v{104+i}, v{104+i}' for i in range(8)] + cvt(1, 1)
            elif pq == 0: fl = upd(sg, 1) + cvt(sg, 1)
            elif sg < 7: fl = upd(sg+1, 0) + cvt(sg+1, 0)
            else: fl = [f'v_accvgpr_read_b32 v{96+i}, a{aR1A[i//4]+i%4}' for i in range(8)] + [f'v_cndmask_b32 v24, -1.0, 1.0, {S(sMA,2)}']
            for hf in range(2):
                for mt in range(2):
                    acc = V((DH if hf else DL)(pq, mt), 4)
                    a(f'v_mfma_f32_16x16x32_bf16 {acc}, {V(XF+((sg+8*hf)*2+mt)*4,4)}, {V(TPK[pq],4)}, {acc if sg else 0}')
                    for _ in range(4):
                        if fl:
                            t = fl.pop(0); tk = a.one(t)
                            if t.startswith('ds_'): a.tok['r1'] = tk
    a.tok['r1done'] = True
    if PRPOS == 8: start_pf(a)
    for pq in range(2):
        for p in range(4): a(f'v_pk_fma_f32 {V(DL(pq,0)+2*p,2)}, {V(DH(pq,0)+2*p,2)}, v[24:25], {V(DL(pq,0)+2*p,2)} op_sel_hi:[1,0,1]')
        for p in range(4): a(f'v_pk_mul_f32 {V(DL(pq,0)+2*p,2)}, {V(DL(pq,0)+2*p,2)}, {V(96+2*p,2)}')
        for p in range(4): a(f'v_cvt_pk_bf16_f32 v{WB+4*pq+p}, v{DL(pq,0)+2*p}, v{DL(pq,0)+2*p+1}')
    a.bg_flush(len(pf)); a.bg_on = False
    for pq in range(2): a.tok['pqs'] = a.one(f'buffer_store_dwordx4 {V(WB+4*pq,4)}, v{vL16}, {srd(SWS)}, s{sPQST} offen offset:{1024*pq} sc1')
    stamp(a, 8)
    bgend(a)
    for k in range(16):
        if f'R{k}' not in used and f'X{k}' not in used:
            for f in RD(k): run(a, f)
    assert all(a.tok['srn', k] == 1 for k in range(16)) and len([u for u in used if u != 'N']) == len(set(used) - {'N'})
    assert 'E' in used or all(f'E{i}' in used for i in range(len(clr)))
    assert all(t in used for t in ('D', 'K', 'T', 'W14', 'W15')) and (('C' in used or all(f'C{i}' in used for i in range(len(clr2)))) != ('cp2' in cfg))
    stamp(a, 9)
    a.wait(vm=a.tok['pr'])
    a.label('L_pr_chk')
    a('v_cmp_eq_u32 vcc, -1, v30\n s_cbranch_vccnz L_pr_retry')
    a.label('L_pr_ok')
    stamp(a, 10)
    vRW = vXW; vRR = vXW+1
    a(f's_cmp_eq_u32 s{sNP}, 2\n s_cbranch_scc1 L_pathB')
    b = a.fork()
    slow = []
    from gen2 import tail
    env = dict(globals()); env.update(locals())
    tail(a, 3, env)
    b.label('L_pathB')
    tail(b, 2, env)
    r = Asm(); r.out = a.out; r.tok['dbgok'] = r.tok['stok'] = r.tok['sig1'] = True
    r.label('L_dbg_retry')
    dbg_load(r); r('s_waitcnt vmcnt(0)')
    retry(r, 'L_dbg_chk', 'L_dbg_ok')
    r.label('L_rdy_retry')
    rdy_load(r); r('s_waitcnt vmcnt(0)')
    retry(r, 'L_rdy_chk', 'L_rdy_ok')
    r.label('L_st_retry')
    r(f's_cmp_gt_u32 s{sCNT}, {LIMIT}\n s_cbranch_scc1 L_st_ok\n s_add_u32 s{sCNT}, s{sCNT}, 1')
    st_loads(r); r('s_waitcnt vmcnt(0)\n s_branch L_st_chk')
    r.label('L_pr_retry')
    r(f's_cmp_gt_u32 s{sCNT}, {LIMIT}\n s_cbranch_scc1 L_pr_ok\n s_add_u32 s{sCNT}, s{sCNT}, 1')
    probe(r); r('s_waitcnt vmcnt(0)\n v_cmp_eq_u32 vcc, -1, v30\n s_cbranch_vccnz L_pr_retry')
    for gi in range(D-1): zload(r, gi, RG(gi))
    r('s_waitcnt vmcnt(0)\n s_branch L_pr_ok')
    for f in slow: f(r)
    r.label('L_end'); r('s_endpgm')
    r.raw('L_codeend:')
    hdr = open('parallel_sum__spectral_fnet__mixer_gmlp__prompt.s.ref').read().split('; @launch')[0] if cfg.get('hdr', True) else ''
    txt = hdr + f'''; @launch grid=(256,1,1) block=(256,1,1) lds=163840
.amdgcn_target "amdgcn-amd-amdhsa--gfx950"
.text
.globl {KN}
.p2align 8
.type {KN},@function
{KN}:
''' + '\n'.join(a.out) + f'''
.section .rodata,"a"
.p2align 6
.amdhsa_kernel {KN}
  .amdhsa_next_free_vgpr 512
  .amdhsa_next_free_sgpr 102
  .amdhsa_accum_offset 256
  .amdhsa_group_segment_fixed_size 0
  .amdhsa_kernarg_size 104
  .amdhsa_user_sgpr_count 2
  .amdhsa_user_sgpr_kernarg_segment_ptr 1
  .amdhsa_system_sgpr_workgroup_id_x 1
.end_amdhsa_kernel
'''
    return txt
if __name__ == '__main__':
    cfg = {}
    for kv in sys.argv[2:]:
        k, v = kv.split('='); cfg[k] = int(v) if v.lstrip('-').isdigit() else v
    open(sys.argv[1], 'w').write(gen(cfg))
```

```python
import sys, json, gen
c = dict(json.load(open(sys.argv[1]))['best'])
for kv in sys.argv[3:]:
    k, v = kv.split('='); c[k] = int(v) if v.lstrip('-').isdigit() else v
open(sys.argv[2], 'w').write(gen.gen(c))
```
